```python
import torch

def _softmax(x, axis=-1):
    return torch.softmax(x, dim=axis)
def _gelu(x):
    return torch.nn.functional.gelu(x, approximate="tanh")
def _silu(x):
    return torch.nn.functional.silu(x)
def _sigmoid(x):
    return torch.sigmoid(x)
def _layernorm(x, axis=-1, eps=1e-5):
    m = x.mean(dim=axis, keepdim=True)
    v = x.var(dim=axis, keepdim=True, unbiased=False)
    return (x - m) / torch.sqrt(v + eps)
def _scatter_add(tgt, idx, src, axis=0):
    return tgt.clone().index_add_(axis, idx, src)
def _segment_sum(src, seg, n):
    out = torch.zeros((n,) + src.shape[1:], dtype=src.dtype)
    return out.index_add_(0, seg, src)
def _pad(x, pw):
    flat = tuple(v for pair in reversed(pw) for v in pair)
    return torch.nn.functional.pad(x, flat)

kernel_name = 'sequential_preLN__ssm_conv_h3__dense_activation_gelu__prompt'

def setup_inputs():

    _w = (lambda a: (lambda t: t.to(torch.bfloat16) if t.is_floating_point() else t)(torch.as_tensor(a)))
    def _A_setup():
        B, S, D = 1, 2048, 448
        ks = 4
        return {
            "q": _w((lambda *s: torch.randn(*s, dtype=torch.bfloat16) * 0.05)(B, S, D)),
            "k": _w((lambda *s: torch.randn(*s, dtype=torch.bfloat16) * 0.2)(B, S, D)),
            "v": _w((lambda *s: torch.randn(*s, dtype=torch.bfloat16) * 0.2)(B, S, D)),
            "shift_k": _w((lambda *s: torch.randn(*s, dtype=torch.bfloat16) * 0.2)(D, ks) * 0.5),
            "ssm_k": _w((lambda *s: torch.randn(*s, dtype=torch.bfloat16) * 0.4)(D, S) * (1.0 / S ** 0.5)),
            "ssm_D": _w((lambda *s: torch.randn(*s, dtype=torch.bfloat16) * 0.2)(D)),
        }
    _A_in = _A_setup()

    def _B_setup():
        B, S, D, F = 1, 2048, 448, 1792
        return {
            "x": _w((lambda *s: torch.randn(*s, dtype=torch.bfloat16) * 0.05)(B, S, D)),
            "w1": _w((lambda *s: torch.randn(*s, dtype=torch.bfloat16) * 0.4)(D, F) * (D ** -0.5)),
            "b1": _w((lambda *s: torch.randn(*s, dtype=torch.bfloat16) * 12.8)(F) * 0.01),
            "w2": _w((lambda *s: torch.randn(*s, dtype=torch.bfloat16) * 0.2)(F, D) * (F ** -0.5)),
            "b2": _w((lambda *s: torch.randn(*s, dtype=torch.bfloat16) * 1.6)(D) * 0.01),
        }
    _B_in = _B_setup()

    return {
        "A_q": _A_in["q"],
        "A_k": _A_in["k"],
        "A_v": _A_in["v"],
        "A_shift_k": _A_in["shift_k"],
        "A_ssm_k": _A_in["ssm_k"],
        "A_ssm_D": _A_in["ssm_D"],
        "B_x": _B_in["x"],
        "B_w1": _B_in["w1"],
        "B_b1": _B_in["b1"],
        "B_w2": _B_in["w2"],
        "B_b2": _B_in["b2"],
    }

def reference(A_q, A_k, A_v, A_shift_k, A_ssm_k, A_ssm_D, B_x, B_w1, B_b1, B_w2, B_b2):
    def _A_ref(q, k, v, shift_k, ssm_k, ssm_D):
        B, S, D = q.shape
        ks = shift_k.shape[-1]
        k_pad = _pad(k, ((0, 0), (ks - 1, 0), (0, 0)))
        k_shift = torch.zeros_like(k)
        for t in range(ks):
            k_shift = k_shift + k_pad[:, t:t + S, :] * shift_k[:, ks - 1 - t][None, None, :]
        kv = k_shift * v
        L = 2 * S
        kv_pad = _pad(kv, ((0, 0), (0, S), (0, 0)))
        kf_pad = _pad(ssm_k, ((0, 0), (0, S)))
        kv_f = (lambda x, axes=(-2,-1): torch.fft.rfft2(x.float(), dim=axes))(kv_pad[:, None, :, :], axes=(1, 2))
        kf_f = (lambda x, axes=(-2,-1): torch.fft.rfft2(x.float(), dim=axes))(kf_pad[:, None, :], axes=(1, 2))
        kf_f = (lambda x, *d: x.permute(*d))(kf_f, 1, 2, 0)
        y_f = kv_f * kf_f[None, :, :, :]
        y = (lambda x, s, axes=(-2,-1): torch.fft.irfft2(x, s=s, dim=axes).to(torch.bfloat16))(y_f, (1, L), axes=(1, 2))[:, 0, :S, :]
        y = y + kv * ssm_D[None, None, :]
        return q * y

    def _B_ref(x, w1, b1, w2, b2):
        h = torch.einsum("bsd,df->bsf", x, w1) + b1
        h = _gelu(h)
        return torch.einsum("bsf,fd->bsd", h, w2) + b2

    x = A_q
    h = x + _A_ref(_layernorm(x, axis=-1), A_k, A_v, A_shift_k, A_ssm_k, A_ssm_D)
    h2 = h + _B_ref(_layernorm(h, axis=-1), B_w1, B_b1, B_w2, B_b2)
    return h2
```

```python
import re

REG_RE = re.compile(r'^(-|abs\()?\s*([vas])(?:\[(\d+):(\d+)\]|(\d+))\)?$')

def parse_reg(tok):
    tok = tok.strip()
    if tok in ('vcc', 'exec', 'm0', 'scc'):
        return [(tok, 0)] if tok in ('m0', 'scc') else [(tok, 0), (tok, 1)]
    if tok in ('vcc_lo', 'exec_lo'): return [(tok[:-3], 0)]
    if tok in ('vcc_hi', 'exec_hi'): return [(tok[:-3], 1)]
    m = REG_RE.match(tok)
    if not m: return []
    k = m.group(2)
    if m.group(3) is not None:
        return [(k, i) for i in range(int(m.group(3)), int(m.group(4)) + 1)]
    return [(k, int(m.group(5)))]

TRANS = ('v_exp_f32', 'v_log_f32', 'v_rcp_f32', 'v_rsq_f32', 'v_sqrt_f32', 'v_sin_f32', 'v_cos_f32', 'v_rcp_iflag_f32')

class Ins:
    def __init__(self, text):
        self.text = text
        t = text.split(';')[0].strip()
        self.label = t.endswith(':')
        self.dirv = t.startswith('.')
        parts = t.split(None, 1)
        self.op = parts[0] if parts else ''
        rest = parts[1] if len(parts) > 1 else ''
        ops = []
        cur = ''; depth = 0
        for ch in rest:
            if ch in '[(': depth += 1
            if ch in '])': depth -= 1
            if ch == ',' and depth == 0:
                ops.append(cur.strip()); cur = ''
            else: cur += ch
        if cur.strip(): ops.append(cur.strip())
        self.mods = ''
        if ops:
            sp = ops[-1].split(None, 1)
            ops[-1] = sp[0]
            if len(sp) > 1: self.mods = sp[1]
        self.ops = ops
        self.classify()

    def classify(self):
        op = self.op; ops = self.ops
        R = lambda i: parse_reg(ops[i]) if i < len(ops) else []
        self.kind = 'other'; self.w = []; self.r = []
        self.passes = 0; self.srcC = []; self.srcAB = []
        self.store_data = []
        self.dpp = 'dpp' in op or 'quad_perm' in self.mods or 'row_' in self.mods
        if self.label or self.dirv or not op: return
        if op.startswith('v_mfma'):
            self.kind = 'mfma'
            self.passes = 8 if '32x32' in op else 4
            self.w = R(0); self.srcAB = R(1) + R(2); self.srcC = R(3); self.r = self.srcAB + self.srcC
        elif op.startswith('v_cmp'):
            self.kind = 'valu'; self.w = R(0); self.r = sum((R(i) for i in range(1, len(ops))), [])
            if op.startswith('v_cmpx'): self.w += [('exec', 0), ('exec', 1)]
        elif op.startswith('v_readfirstlane') or op.startswith('v_readlane'):
            self.kind = 'valu'; self.w = R(0); self.r = sum((R(i) for i in range(1, len(ops))), [])
        elif op.startswith('v_permlane') and 'swap' in op:
            self.kind = 'valu'; self.w = R(0) + R(1); self.r = R(0) + R(1)
        elif op.startswith('v_'):
            self.kind = 'valu'
            self.w = R(0); start = 1
            if '_co_' in op and len(ops) > 1 and (ops[1] == 'vcc' or ops[1].startswith('s[')):
                self.w += R(1); start = 2
            self.r = sum((R(i) for i in range(start, len(ops))), [])
            if op.startswith(('v_fmac', 'v_dot2c', 'v_pk_fmac', 'v_writelane')): self.r += R(0)
            if op.startswith('v_cndmask') and len(ops) == 3: self.r += [('vcc', 0), ('vcc', 1)]
            if self.dpp: self.r += R(0)
        elif op.startswith(('global_load_lds', )) or (op.startswith('buffer_load') and ' lds' in (' ' + self.mods)):
            self.kind = 'vmem'; self.lds_dma = True
            self.r = sum((R(i) for i in range(0, len(ops))), []) + [('m0', 0)]
        elif op.startswith(('global_load', 'buffer_load')):
            self.kind = 'vmem'; self.w = R(0); self.r = sum((R(i) for i in range(1, len(ops))), [])
        elif op.startswith('global_store'):
            self.kind = 'vmem'; self.r = sum((R(i) for i in range(0, len(ops))), [])
            if 'x4' in op or 'x3' in op: self.store_data = R(1)
        elif op.startswith('buffer_store'):
            self.kind = 'vmem'; self.r = sum((R(i) for i in range(0, len(ops))), [])
            if 'x4' in op or 'x3' in op: self.store_data = R(0)
        elif op.startswith(('global_atomic', 'buffer_atomic')):
            self.kind = 'vmem'; self.r = sum((R(i) for i in range(0, len(ops))), [])
            if 'sc0' in self.mods: self.w = R(0)
        elif op.startswith('ds_read') or op.startswith('ds_bpermute') or op.startswith('ds_swizzle'):
            self.kind = 'ds'; self.w = R(0); self.r = sum((R(i) for i in range(1, len(ops))), [])
        elif op.startswith('ds_write'):
            self.kind = 'ds'; self.r = sum((R(i) for i in range(0, len(ops))), [])
        elif op.startswith('s_load') or op.startswith('s_memtime') or op.startswith('s_memrealtime'):
            self.kind = 'smem'; self.w = R(0); self.r = R(1)
        elif op.startswith('s_'):
            self.kind = 'salu'
            if op.startswith(('s_cmp', 's_cbranch', 's_branch', 's_waitcnt', 's_nop', 's_barrier', 's_sleep', 's_endpgm', 's_setprio', 's_bitcmp')):
                self.r = sum((R(i) for i in range(0, len(ops))), [])
            else:
                self.w = R(0); self.r = sum((R(i) for i in range(1, len(ops))), [])
                if 'saveexec' in op: self.w += [('exec', 0), ('exec', 1)]; self.r += [('exec', 0), ('exec', 1)]
    def states(self):
        if self.label or self.dirv or not self.op: return 0
        if self.op == 's_nop': return int(self.ops[0], 0) + 1
        return 1

def check_hazards(lines):
    ins = [Ins(l) for l in lines]
    errs = []
    n = len(ins)
    WIN = 24
    for j in range(n):
        c = ins[j]
        if c.states() == 0: continue
        dist = 0
        i = j - 1
        while i >= 0 and dist < WIN:
            p = ins[i]
            if p.states() == 0:
                i -= 1; continue
            need = 0; why = ''
            pw = set(p.w); cr = set(c.r); cw = set(c.w)
            def upd(nd, wy):
                nonlocal need, why
                if nd > need: need, why = nd, wy
            if p.kind == 'valu':
                vw = {x for x in pw if x[0] in 'va'}
                sw = {x for x in pw if x[0] in ('s', 'vcc', 'exec')}
                if c.op.startswith(('v_readfirstlane', 'v_readlane')) and vw & cr: upd(1, 'valu->readlane')
                if c.kind == 'vmem' and sw & cr: upd(5, 'valu sgpr->vmem')
                if c.kind == 'valu' and sw & cr: upd(2, 'valu sgpr/vcc->valu const')
                if c.kind == 'valu' and c.dpp and vw & cr: upd(2, 'valu->dpp')
                if c.op.startswith('v_permlane') and vw & cr: upd(2, 'valu->permlane')
                if p.op.split('_e')[0] in TRANS or any(p.op.startswith(t) for t in TRANS):
                    if c.kind in ('valu', 'mfma', 'vmem', 'ds') and not any(c.op.startswith(t) for t in TRANS) and vw & cr: upd(1, 'trans->use')
                if c.kind == 'mfma' and vw & cr: upd(2, 'valu->mfma')
                if c.kind == 'salu' and sw & cr and not c.op.startswith('s_cbranch') and 'saveexec' not in c.op: upd(1, 'valu sgpr->salu (pad)')
            if p.op.startswith('v_dot2'):
                if set(p.w) & (cr | cw):
                    same = c.op == p.op
                    isC = same and len(c.ops) >= 4 and set(parse_reg(c.ops[3])) & set(p.w) and not (set(parse_reg(c.ops[1]) + parse_reg(c.ops[2])) & set(p.w))
                    isC = isC or (same and p.op.startswith('v_dot2c') and not (set(parse_reg(c.ops[1]) + parse_reg(c.ops[2])) & set(p.w)))
                    if not isC: upd(3, 'dot2->use')
            if p.kind == 'salu' and ('m0', 0) in pw and getattr(c, 'lds_dma', False): upd(1, 'm0->ldsdma')
            if p.store_data and c.kind in ('valu',) and set(p.store_data) & cw: upd(2, 'store data WAR')
            if p.store_data and c.kind in ('vmem', 'ds', 'mfma') and set(p.store_data) & cw: upd(1, 'store data WAR (non valu)')
            if p.kind == 'mfma':
                big = p.passes == 8
                if c.kind == 'mfma':
                    if pw & set(c.srcAB): upd(12 if big else 8, 'mfma D->mfma AB')
                    if pw & set(c.srcC):
                        if not (set(c.srcC) == pw and c.passes == p.passes): upd(10 if big else 6, 'mfma D->mfma C partial')
                    if pw & cw and not (pw & set(c.srcC)): upd(12 if big else 8, 'mfma D WAW')
                elif c.kind in ('valu', 'vmem', 'ds'):
                    if pw & (cr | cw): upd(12 if big else 8, 'mfma D->valu/mem')
                if c.kind == 'valu' and set(p.srcC) & cw: upd(7 if big else 3, 'mfma srcC WAR')
            if dist < need:
                errs.append(f"hazard [{why}] need {need} have {dist}: line {i}: '{p.text.strip()}' -> line {j}: '{c.text.strip()}'")
            dist += p.states()
            i -= 1
    return errs

class Asm:
    def __init__(self):
        self.lines = []
        self.nlabel = 0
    def __call__(self, s):
        for l in s.split('\n'):
            l = l.strip()
            if l: self.lines.append(l)
    def label(self, base='L'):
        self.nlabel += 1
        return f"{base}_{self.nlabel}"
    def text(self):
        out = []
        for l in self.lines:
            out.append(l if (l.endswith(':') or l.startswith('.')) else '    ' + l)
        return '\n'.join(out)
```

```python
import sys, os
sys.path.insert(0, os.path.dirname(os.path.abspath(__file__)))
from asmlib import *

NAME = "sequential_preLN__ssm_conv_h3__dense_activation_gelu__prompt"
E = lambda k, d: int(os.environ.get(k, str(d)))
STAMPS = E("STAMPS", 0)
PD2 = E("PD2", 11)
PD3 = E("PD3", 6)
W1THR = E("W1THR", 0)
NMAIN = 224
NWG = NMAIN + 1
S, D, F = 2048, 448, 1792
WS_STAMP = 0x80000
WS_UR = 0x100000
WS_X2 = 0x300000
WS_H2 = 0x500000
WS_ST = 0x700000
WS_W2F = 0x800000
WS_HF = 0xA00000
CL_S1 = 0; CL_AUX = 8; CL_S2 = 16; CL_S3 = 32
L_W1 = 0
L_X = 0x1C000
L_UT = L_X + 0x0000
L_XT = L_X + 0x2000
L_KA = L_X + 0x4000 + 64
L_UR = L_X + 0x8100
L_AUG = L_X + 0xA500
LDS_BYTES = 163840
SPIN = 2000000
KN = NAME + "_kernel"

A = Asm()

def stamp(i):
    if not STAMPS: return
    l = A.label("st")
    A(f"""s_cmp_lg_u32 s3, 0
    s_cbranch_scc1 {l}
    s_memtime s[92:93]
    s_waitcnt lgkmcnt(0)
    s_lshl_b32 s94, s2, 8
    s_add_u32 s94, s94, {WS_STAMP + 4*i}
    v_mov_b32 v250, s94
    v_mov_b32 v251, s92
    s_mov_b64 s[90:91], exec
    s_mov_b64 exec, 1
    global_store_dword v250, v251, s[34:35]
    s_mov_b64 exec, s[90:91]
    {l}:""")

def wave0_only(label):
    A(f"s_cmp_lg_u32 s3, 0\ns_cbranch_scc1 {label}")

def emit_signal(line_sreg):
    A(f"""s_lshl_b32 s67, {line_sreg}, 7
    v_mov_b32 v240, s67
    v_mov_b32 v241, 1
    s_mov_b64 s[64:65], exec
    s_mov_b64 exec, 1
    global_atomic_add v240, v241, s[34:35] sc1
    s_mov_b64 exec, s[64:65]""")

def emit_poll(addr_v, target, base="s[34:35]", tmp="v242"):
    lp = A.label("poll"); done = A.label("polld")
    A(f"""s_mov_b32 s68, {SPIN}
    {lp}:
    global_load_dword {tmp}, {addr_v}, {base} sc1
    s_waitcnt vmcnt(0)
    v_cmp_ne_u32 vcc, {target}, {tmp}
    s_cbranch_vccz {done}
    s_sub_u32 s68, s68, 1
    s_cmp_lg_u32 s68, 0
    s_cbranch_scc1 {lp}
    {done}:""")

def ws_base(sreg, off):
    A(f"s_add_u32 s{sreg}, s34, {off}\ns_addc_u32 s{sreg+1}, s35, 0")

def srd(base, ptr, size):
    A(f"s_mov_b32 s{base}, s{ptr}\ns_mov_b32 s{base+1}, s{ptr+1}\ns_mov_b32 s{base+2}, {size}\ns_mov_b32 s{base+3}, 0x20000")

A(f"""s_cmp_gt_u32 s2, {NMAIN}
s_cbranch_scc1 L_END
s_load_dwordx16 s[8:23], s[0:1], 0
s_load_dwordx8 s[24:31], s[0:1], 64
s_load_dwordx4 s[32:35], s[0:1], 96
s_getpc_b64 s[88:89]
L_PC:
v_and_b32 v1, 63, v0
v_lshrrev_b32 v2, 6, v0
s_lshr_b32 s42, s2, 5
v_readfirstlane_b32 s3, v2
s_and_b32 s43, s2, 31
s_mov_b32 s70, 0x05040100
s_mov_b32 s71, 0x07060302
s_mov_b32 s72, 0xffff0000
s_mov_b32 s73, 0x3f803f80
s_cmp_eq_u32 s2, {NMAIN}
s_cbranch_scc1 L_INIT""")

A(f"""v_lshrrev_b32 v2, 3, v0
v_and_b32 v3, 7, v0
s_mul_i32 s66, s43, {64*896}
s_lshl_b32 s67, s42, 7
s_add_u32 s66, s66, s67
v_mul_u32_u24 v4, 1792, v2
v_lshl_add_u32 v4, v3, 4, v4
v_add_u32 v7, s66, v4
v_subrev_u32 v92, 2688, v7
v_subrev_u32 v93, 1792, v7
v_subrev_u32 v94, 896, v7
s_lshl_b32 s67, s42, 9
v_lshl_add_u32 v8, v3, 6, s67""")
A(f"""s_lshr_b32 s66, s2, 1
s_mul_i32 s66, s66, {16*896}
s_and_b32 s67, s2, 1
s_mul_i32 s67, s67, 448
s_add_u32 s66, s66, s67
s_mov_b32 s67, 2341
v_mul_lo_u32 v110, v0, s67
v_lshrrev_b32 v110, 16, v110
v_mul_u32_u24 v111, 28, v110
v_sub_u32 v111, v0, v111
v_mul_u32_u24 v110, 896, v110
v_lshl_add_u32 v110, v111, 4, v110
v_add_u32 v110, s66, v110
v_add_u32 v112, 256, v0
v_mul_lo_u32 v113, v112, s67
v_lshrrev_b32 v113, 16, v113
v_mul_u32_u24 v111, 28, v113
v_sub_u32 v111, v112, v111
v_mul_u32_u24 v113, 896, v113
v_lshl_add_u32 v113, v111, 4, v113
v_add_u32 v113, s66, v113
s_lshr_b32 s37, s2, 3
s_lshl_b32 s66, s37, 10
s_min_u32 s66, s66, L_CODE_END-{KN}-1024
v_lshl_add_u32 v114, v1, 4, s66
s_lshl_b32 s69, s3, 10
s_add_u32 m0, s69, {L_W1}
s_waitcnt lgkmcnt(0)""")
srd(44, 10, S*D*2)
A(f"""buffer_load_dwordx4 v[10:13], v92, s[44:47], 0 offen
buffer_load_dwordx4 v[14:17], v93, s[44:47], 0 offen
buffer_load_dwordx4 v[18:21], v94, s[44:47], 0 offen
buffer_load_dwordx4 v[22:25], v7, s[44:47], 0 offen
buffer_load_dwordx4 v[26:29], v7, s[44:47], 0 offen offset:896
global_load_dwordx4 v[46:49], v8, s[14:15]
global_load_dwordx4 v[50:53], v8, s[14:15] offset:16
global_load_dwordx4 v[54:57], v8, s[14:15] offset:32
global_load_dwordx4 v[58:61], v8, s[14:15] offset:48
global_load_dwordx4 v[30:33], v7, s[12:13]
global_load_dwordx4 v[34:37], v7, s[12:13] offset:896
global_load_dwordx4 v[38:41], v7, s[8:9]
global_load_dwordx4 v[42:45], v7, s[8:9] offset:896
global_load_lds_dwordx4 v110, s[26:27]""")
l3 = A.label("x3"); lx = A.label("xd")
A(f"""s_cmp_eq_u32 s3, 3
s_cbranch_scc1 {l3}
s_add_u32 m0, m0, 4096
s_nop 0
global_load_lds_dwordx4 v113, s[26:27]
s_branch {lx}
{l3}:
s_sub_u32 s88, s88, L_PC-{KN}
s_subb_u32 s89, s89, 0
global_load_dwordx4 v[116:119], v114, s[88:89]
{lx}:""")
lns = A.label("nost")
A(f"""s_cmp_lt_u32 s42, 4
s_cselect_b32 s76, 1, 0
s_cmp_ge_u32 s3, 2
s_cselect_b32 s76, s76, 0
s_cmp_eq_u32 s76, 0
s_cbranch_scc1 {lns}
s_lshl_b32 s66, s43, 6
s_lshl_b32 s67, s42, 4
s_add_u32 s66, s66, s67
s_sub_u32 s67, s3, 2
s_lshl_b32 s67, s67, 3
s_add_u32 s66, s66, s67
v_lshrrev_b32 v120, 3, v1
v_add_u32 v120, s66, v120
v_mul_u32_u24 v121, 896, v120
v_and_b32 v122, 7, v1
v_lshl_add_u32 v121, v122, 4, v121""")
for i in range(7):
    A(f"global_load_dwordx4 v[{64+4*i}:{67+4*i}], v121, s[8:9] offset:{128*i}")
A(f"{lns}:")
ws_base(52, WS_UR); ws_base(54, WS_X2); ws_base(56, WS_H2); ws_base(58, WS_ST); ws_base(60, WS_HF); ws_base(62, WS_W2F)
stamp(0)
A(f"""v_sub_u32 v96, 31, v2
v_lshrrev_b32 v97, 2, v96
v_xor_b32 v97, v97, v3
v_lshlrev_b32 v97, 4, v97
v_and_b32 v96, 3, v96
v_lshl_add_u32 v97, v96, 2, v97
v_lshl_add_u32 v95, v3, 10, v97
v_add_u32 v95, {L_UT}, v95
v_lshrrev_b32 v96, 1, v2
v_xor_b32 v96, v96, v3
v_lshlrev_b32 v96, 4, v96
v_and_b32 v97, 1, v2
v_lshl_add_u32 v96, v97, 3, v96
v_lshl_add_u32 v96, v3, 10, v96
v_add_u32 v96, {L_XT}, v96
v_lshrrev_b32 v98, 6, v0
v_xor_b32 v99, v3, v98
v_lshlrev_b32 v99, 4, v99
v_lshl_add_u32 v100, v2, 7, v99
v_add_u32 v100, {L_UT}, v100
v_xor_b32 v101, 64, v100
v_add_u32 v101, 4096, v101
s_lshl_b32 s66, s42, 18
s_sub_u32 s67, 31, s43
s_lshl_b32 s67, s67, 7
s_add_u32 s66, s66, s67
v_lshlrev_b32 v102, 12, v2
v_lshl_add_u32 v102, v3, 4, v102
v_add_u32 v102, s66, v102
v_add_u32 v103, {32*4096}, v102
v_and_b32 v104, 15, v0
v_lshrrev_b32 v105, 4, v0
v_xor_b32 v106, v104, v98
v_lshlrev_b32 v106, 4, v106
v_lshl_add_u32 v106, v105, 8, v106
v_add_u32 v106, {L_XT}, v106
v_xor_b32 v107, 64, v106
v_add_u32 v107, 4096, v107
s_lshl_b32 s66, s42, 18
s_lshl_b32 s67, s43, 8
s_add_u32 s66, s66, s67
v_lshlrev_b32 v108, 13, v105
v_lshl_add_u32 v108, v104, 4, v108
v_add_u32 v108, s66, v108
v_add_u32 v109, {16*8192}, v108""")
A(f"""v_lshrrev_b32 v123, 5, v1
v_bfe_u32 v124, v1, 2, 2
v_lshl_add_u32 v123, v123, 2, v124
v_mul_u32_u24 v123, 448, v123
v_bfe_u32 v124, v1, 4, 1
v_lshl_add_u32 v123, v124, 5, v123
v_and_b32 v124, 3, v1
v_lshl_add_u32 v123, v124, 3, v123
s_lshl_b32 s66, s3, 6
s_add_u32 s66, s66, {L_W1}
v_add_u32 v123, s66, v123
s_and_b32 s66, s2, 1
s_mul_i32 s66, s66, 7
s_add_u32 s66, s66, s3
s_mul_i32 s66, s66, 112
s_lshr_b32 s67, s2, 1
s_add_u32 s66, s66, s67
s_lshl_b32 s66, s66, 10
v_lshl_add_u32 v124, v1, 4, s66""")
lw1 = A.label("wa"); lw2 = A.label("wb")
A(f"""s_cmp_eq_u32 s76, 0
s_cbranch_scc1 {lw1}
s_waitcnt vmcnt(11)
s_branch {lw2}
{lw1}:
s_waitcnt vmcnt(4)
{lw2}:""")
K = lambda j, p: f"v{10 + 4*j + p}"
T = 126
for p in range(4):
    seq = []
    for half in range(2):
        i = 2*p + half
        sel = "s70" if half == 0 else "s71"
        t = T + 8*half
        seq.append([
            f"v_perm_b32 v{t}, {K(2,p)}, {K(3,p)}, {sel}",
            f"v_perm_b32 v{t+1}, {K(0,p)}, {K(1,p)}, {sel}",
            f"v_perm_b32 v{t+2}, {K(3,p)}, {K(4,p)}, {sel}",
            f"v_perm_b32 v{t+3}, {K(1,p)}, {K(2,p)}, {sel}",
            f"v_dot2_f32_bf16 v{t+4}, v{t}, v{46+2*i}, 0",
            f"v_dot2_f32_bf16 v{t+5}, v{t+2}, v{46+2*i}, 0",
            f"v_dot2_f32_bf16 v{t+4}, v{t+1}, v{47+2*i}, v{t+4}",
            f"v_dot2_f32_bf16 v{t+5}, v{t+3}, v{47+2*i}, v{t+5}",
            (f"v_lshlrev_b32 v{t+6}, 16, v{30+p}" if half == 0 else f"v_and_b32 v{t+6}, s72, v{30+p}"),
            (f"v_lshlrev_b32 v{t+7}, 16, v{34+p}" if half == 0 else f"v_and_b32 v{t+7}, s72, v{34+p}"),
            f"v_mul_f32 v{t+4}, v{t+4}, v{t+6}",
            f"v_mul_f32 v{t+5}, v{t+5}, v{t+7}",
            f"v_cvt_pk_bf16_f32 v{t+4}, v{t+5}, v{t+4}",
            f"ds_write_b32 v95, v{t+4} offset:{128*i}",
        ])
    for k in range(len(seq[0])):
        A(seq[0][k]); A(seq[1][k])
A("s_waitcnt vmcnt(0)")
for p in range(4):
    A(f"ds_write2_b32 v96, v{38+p}, v{42+p} offset0:{64*p} offset1:{64*p+1}")
A("""s_waitcnt lgkmcnt(0)
s_barrier
ds_read_b128 v[10:13], v100
ds_read_b128 v[14:17], v101
ds_read_b128 v[18:21], v106
ds_read_b128 v[22:25], v107
ds_read_b64_tr_b16 v[26:27], v123
ds_read_b64_tr_b16 v[28:29], v123 offset:3584
ds_read_b64_tr_b16 v[30:31], v123 offset:256
ds_read_b64_tr_b16 v[32:33], v123 offset:3840
s_waitcnt lgkmcnt(7)
global_store_dwordx4 v102, v[10:13], s[52:53] sc1
s_waitcnt lgkmcnt(6)
global_store_dwordx4 v103, v[14:17], s[52:53] sc1
s_waitcnt lgkmcnt(5)
global_store_dwordx4 v108, v[18:21], s[54:55] sc1
s_waitcnt lgkmcnt(4)
global_store_dwordx4 v109, v[22:25], s[54:55] sc1
s_waitcnt lgkmcnt(2)
global_store_dwordx4 v124, v[26:29], s[62:63] sc1""")
lsk = A.label("w2s")
A(f"""s_cmp_eq_u32 s3, 3
s_cbranch_scc1 {lsk}
v_add_u32 v124, {4*112*1024}, v124
s_waitcnt lgkmcnt(0)
global_store_dwordx4 v124, v[30:33], s[62:63] sc1
{lsk}:""")
lns = A.label("nost2")
A(f"s_cmp_eq_u32 s76, 0\ns_cbranch_scc1 {lns}")
b = 64
A(f"v_dot2_f32_bf16 v10, v{b}, s73, 0\nv_dot2_f32_bf16 v11, v{b}, v{b}, 0\nv_dot2_f32_bf16 v12, v{b+1}, s73, 0\nv_dot2_f32_bf16 v13, v{b+1}, v{b+1}, 0")
for i in range(2, 28, 2):
    A(f"v_dot2_f32_bf16 v10, v{b+i}, s73, v10\nv_dot2_f32_bf16 v11, v{b+i}, v{b+i}, v11\nv_dot2_f32_bf16 v12, v{b+i+1}, s73, v12\nv_dot2_f32_bf16 v13, v{b+i+1}, v{b+i+1}, v13")
A("""s_nop 2
v_add_f32 v10, v10, v12
v_add_f32 v11, v11, v13
s_nop 1
v_add_f32_dpp v10, v10, v10 quad_perm:[1,0,3,2] row_mask:0xf bank_mask:0xf
v_add_f32_dpp v11, v11, v11 quad_perm:[1,0,3,2] row_mask:0xf bank_mask:0xf
s_nop 1
v_add_f32_dpp v10, v10, v10 quad_perm:[2,3,0,1] row_mask:0xf bank_mask:0xf
v_add_f32_dpp v11, v11, v11 quad_perm:[2,3,0,1] row_mask:0xf bank_mask:0xf
s_nop 1
v_add_f32_dpp v10, v10, v10 row_half_mirror row_mask:0xf bank_mask:0xf
v_add_f32_dpp v11, v11, v11 row_half_mirror row_mask:0xf bank_mask:0xf
s_mov_b32 s66, 0x3b124925
v_mul_f32 v10, s66, v10
v_mul_f32 v11, s66, v11
v_fma_f32 v11, -v10, v10, v11
v_add_f32 v11, 0x3727c5ac, v11
v_rsq_f32 v11, v11
v_lshlrev_b32 v120, 2, v120
v_cmp_eq_u32 vcc, 0, v122
v_mul_f32 v12, -v10, v11
v_add_u32 v121, 8192, v120
s_and_saveexec_b64 s[64:65], vcc
global_store_dword v120, v11, s[58:59] sc1
global_store_dword v121, v12, s[58:59] sc1
s_mov_b64 exec, s[64:65]""")
A(f"{lns}:")
stamp(1)
A("s_waitcnt vmcnt(0)\ns_barrier")
stamp(2)

A(f"""s_and_b32 s36, s2, 7
s_lshl_b32 s38, s36, 1
s_cmp_ge_u32 s37, 14
s_addc_u32 s38, s38, 0
s_cmp_ge_u32 s37, 14
s_cselect_b32 s66, 14, 0
s_sub_u32 s39, s37, s66
s_mul_i32 s66, s37, 37
s_lshr_b32 s66, s66, 8
s_lshl_b32 s40, s36, 2
s_add_u32 s40, s40, s66
s_mul_i32 s66, s66, 7
s_sub_u32 s41, s37, s66""")
lw0 = A.label("w1w0"); lw3 = A.label("w1w3"); ljoin = A.label("w1join"); lw1dma = A.label("w1dma"); laddr = A.label("w1addr")
A(f"s_cmp_eq_u32 s3, 0\ns_cbranch_scc1 {lw0}")
srd(48, 16, D*S*2); srd(44, 22, D*F*2)
A(f"""v_lshlrev_b32 v10, 4, v1
v_lshrrev_b32 v11, 4, v1
v_lshlrev_b32 v12, 2, v11
v_and_b32 v13, 15, v1
v_xor_b32 v12, v12, v13
v_lshlrev_b32 v12, 4, v12
v_mul_u32_u24 v11, 3584, v11
v_add_u32 v11, v11, v12
s_lshl_b32 s66, s39, 8
v_add_u32 v11, s66, v11
s_cmp_eq_u32 s3, 3
s_cbranch_scc1 {lw3}
s_sub_u32 s66, s3, 1
s_lshl_b32 s67, s2, 1
s_add_u32 s67, s67, s66
s_lshl_b32 s67, s67, 12
s_load_dword s76, s[16:17], s67
s_mul_i32 s66, s66, 8320
s_add_u32 m0, s66, {L_KA}
s_add_u32 s77, s66, {L_KA + 4160 - 4}
v_mov_b32 v13, s77""")
for j in range(4):
    A(f"s_nop 0\nbuffer_load_dwordx4 v10, s[48:51], s67 offen lds\ns_add_u32 m0, m0, 1024\ns_add_u32 s67, s67, 1024")
A(f"s_add_u32 m0, m0, {4160-4096}\ns_sub_u32 s67, s67, {4096-2}")
for j in range(4):
    A(f"s_nop 0\nbuffer_load_dwordx4 v10, s[48:51], s67 offen lds\ns_add_u32 m0, m0, 1024\ns_add_u32 s67, s67, 1024")
A(f"""s_waitcnt lgkmcnt(0)
s_lshl_b32 s76, s76, 16
v_mov_b32 v12, s76
ds_write_b32 v13, v12
s_sub_u32 s66, s3, 1
s_lshl_b32 s66, s66, 5
s_mov_b32 s69, 8
s_branch {lw1dma}
{lw3}:
s_mov_b32 s66, 64
s_mov_b32 s69, 12
{lw1dma}:
s_lshl_b32 s67, s39, 3
s_add_u32 s67, s67, s66
s_lshl_b32 s66, s66, 10
s_add_u32 m0, s66, {L_W1}""")
lp = A.label("w1l")
A(f"""{lp}:
s_cmp_ge_u32 s67, 112
s_cselect_b32 s66, 112, 0
s_sub_u32 s67, s67, s66
s_mul_i32 s66, s67, 14336""")
for j in range(4):
    A(f"buffer_load_dwordx4 v11, s[44:47], s66 offen lds\ns_add_u32 m0, m0, 1024\ns_add_u32 s66, s66, 14336")
if W1THR: A(f"s_waitcnt vmcnt({W1THR})")
A(f"""s_add_u32 s67, s67, 4
s_sub_u32 s69, s69, 1
s_cmp_lg_u32 s69, 0
s_cbranch_scc1 {lp}
s_branch {laddr}""")
A(f"""{lw0}:
v_mov_b32 v243, 0""")
emit_poll("v243", 1, base="s[32:33]")
A(f"""s_lshl_b32 s66, s42, 7
s_add_u32 s67, s36, {CL_AUX}
s_lshl_b32 s67, s67, 7
v_mov_b32 v240, s66
v_mov_b32 v241, s67
v_cmp_eq_u32 vcc, 0, v1
s_mov_b64 s[64:65], exec
s_nop 0
v_cndmask_b32 v240, v241, v240, vcc
v_mov_b32 v241, 1
s_mov_b64 exec, 3
global_atomic_add v240, v241, s[34:35] sc1
s_mov_b64 exec, s[64:65]
v_lshrrev_b32 v10, 5, v1
v_mul_u32_u24 v10, 4608, v10
v_and_b32 v11, 31, v1
v_lshl_add_u32 v10, v11, 4, v10
v_add_u32 v10, {L_UR + 4096}, v10
v_mov_b32 v12, 0
v_mov_b32 v13, 0
v_mov_b32 v14, 0
v_mov_b32 v15, 0
ds_write_b128 v10, v[12:15]
{laddr}:""")
XV, STV = 170, 178
A(f"""s_lshl_b32 s66, s2, 2
s_load_dword s74, s[18:19], s66
v_and_b32 v194, 15, v1
v_lshrrev_b32 v195, 4, v1
v_lshlrev_b32 v196, 4, v194
v_lshl_add_u32 v196, v195, 2, v196
s_lshl_b32 s66, s3, 9
v_add_u32 v196, s66, v196
v_lshlrev_b32 v197, 2, v196
v_mov_b32 v198, v197
s_lshl_b32 s66, s2, 13
v_add_u32 v197, s66, v197
s_lshr_b32 s66, s3, 1
s_and_b32 s67, s3, 1
s_mul_i32 s68, s66, 8320
s_lshl_b32 s69, s67, 8
s_sub_u32 s68, s68, s69
s_add_u32 s68, s68, {L_KA - 32}
v_add_u32 v199, 1, v194
v_lshrrev_b32 v199, 1, v199
v_lshl_add_u32 v199, v195, 2, v199
v_lshlrev_b32 v199, 2, v199
v_and_b32 v200, 1, v194
v_cmp_eq_u32 vcc, 0, v200
v_mov_b32 v201, 4160
v_add_u32 v199, s68, v199
v_cndmask_b32 v201, 0, v201, vcc
v_add_u32 v199, v199, v201
v_add_u32 v200, 1024, v199
v_add_u32 v201, 2048, v199
v_add_u32 v202, 3072, v199
s_mul_i32 s68, s66, 4608
s_sub_u32 s68, s68, s69
s_add_u32 s68, s68, {L_UR + 736}
v_lshlrev_b32 v203, 5, v194
v_sub_u32 v203, s68, v203
v_lshl_add_u32 v203, v195, 4, v203
s_cmp_eq_u32 s67, 0
s_cselect_b32 s68, 64, 0
v_lshl_add_u32 v204, v195, 3, v194
v_add_u32 v204, s68, v204
s_mov_b32 s75, 0xffff""")
for k in range(4):
    A(f"""v_cmp_le_u32 vcc, {15-2*k}, v204
    v_mov_b32 v205, s75
    s_nop 0
    v_cndmask_b32 v{206+k}, 0, v205, vcc
    v_cmp_le_u32 vcc, {14-2*k}, v204
    v_mov_b32 v205, s72
    s_nop 0
    v_cndmask_b32 v205, 0, v205, vcc
    v_or_b32 v{206+k}, v{206+k}, v205""")
A(f"""v_lshlrev_b32 v211, 4, v1
s_lshl_b32 s66, s3, 13
v_add_u32 v212, s66, v211
v_add_u32 v212, {L_X}, v212
s_lshl_b32 s66, s3, 11
v_add_u32 v213, s66, v211
v_add_u32 v213, {L_X}, v213
s_lshl_b32 s66, s3, 10
s_sub_u32 s66, {L_UR + 4088 - 512}, s66
v_lshlrev_b32 v210, 5, v194
v_lshl_add_u32 v210, v195, 3, v210
v_sub_u32 v210, s66, v210
v_and_b32 v214, 7, v1
v_add_u32 v214, {CL_AUX}, v214
v_lshlrev_b32 v214, 7, v214
s_mul_i32 s66, s41, {2*112*1024}
s_mul_i32 s67, s3, {28*1024}
s_add_u32 s81, s66, s67""")
srd(84, 62, F*D*2)
ACC = 138
for j in range(32): A(f"v_mov_b32 v{ACC+j}, 0")
lnw0 = A.label("w1n0")
A(f"s_cmp_lg_u32 s3, 0\ns_cbranch_scc1 {lnw0}")
A(f"s_lshl_b32 s66, s42, 7\nv_mov_b32 v16, s66")
emit_poll("v16", "32")
stamp(3)
A(f"""v_lshlrev_b32 v10, 4, v1
s_lshl_b32 s66, s2, 13
v_add_u32 v10, s66, v10
s_mov_b32 m0, {L_UR}""")
for c in range(2):
    for j in range(4):
        A(f"s_nop 0\nglobal_load_lds_dwordx4 v10, s[52:53] sc1\nv_add_u32 v10, 1024, v10\ns_add_u32 m0, m0, {1024 if j < 3 else 4608-3072}")
A(f"""s_waitcnt vmcnt(0) lgkmcnt(0)
s_branch {ljoin}
{lnw0}:
s_cmp_eq_u32 s3, 3
s_cbranch_scc1 {ljoin}
s_waitcnt vmcnt(32) lgkmcnt(0)
{ljoin}:
s_barrier""")
stamp(4)

AB = [10, 42]; UB = [74, 106]
def conv_loads(s, buf):
    L = []
    for m in range(8):
        L.append(f"ds_read_b128 v[{UB[buf]+4*m}:{UB[buf]+4*m+3}], v203 offset:{64*(59-8*m-s)}")
    for n in range(8):
        base = 199 + (n >> 1)
        o = (n & 1)*128 + 16*(7-s)
        L.append(f"ds_read2_b32 v[{AB[buf]+4*n}:{AB[buf]+4*n+1}], v{base} offset0:{o} offset1:{o+1}")
        L.append(f"ds_read2_b32 v[{AB[buf]+4*n+2}:{AB[buf]+4*n+3}], v{base} offset0:{o+2} offset1:{o+3}")
    return L
def w2f_load(dd, kk):
    L = []
    if kk % 4 == 0:
        L += [f"s_add_u32 s82, s41, {kk>>2}", "s_cmp_ge_u32 s82, 7", "s_cselect_b32 s83, 7, 0", "s_sub_u32 s82, s82, s83", "s_lshl_b32 s82, s82, 12",
              f"s_add_u32 s82, s82, s81"]
        if dd: L += [f"s_add_u32 s82, s82, {112*1024}"]
    a = 4*(dd*28 + kk)
    L += [f"buffer_load_dwordx4 a[{a}:{a+3}], v211, s[84:87], s82 offen offset:{1024*(kk&3)} sc1"]
    return L
for l in conv_loads(0, 0): A(l)
A(f"""global_load_dwordx4 v[{XV}:{XV+3}], v197, s[54:55] sc1
global_load_dwordx4 v[{XV+4}:{XV+7}], v197, s[54:55] offset:1024 sc1
global_load_dword v215, v214, s[34:35] sc1
s_waitcnt lgkmcnt(0)""")
stamp(19)
nw = 0
for s in range(4):
    buf = s & 1
    nxt = conv_loads(s+1, buf ^ 1) if s < 3 else []
    if s == 3:
        for k in range(4): A(f"v_and_b32 v{AB[buf]+k}, v{206+k}, v{AB[buf]+k}")
        A("s_nop 1")
    if s == 1:
        lok = A.label("auxok"); lp = A.label("auxp")
        A(f"""s_cmp_lg_u32 s3, 0
        s_cbranch_scc1 {lok}
        s_waitcnt vmcnt(0)
        v_cmp_ne_u32 vcc, 28, v215
        s_cbranch_vccz {lok}""")
        emit_poll("v214", "28")
        A(f"""{lok}:
        s_barrier
        v_add_u32 v216, 8192, v198
        global_load_dwordx4 v[{STV}:{STV+3}], v198, s[58:59] sc1
        global_load_dwordx4 v[{STV+4}:{STV+7}], v216, s[58:59] sc1
        global_load_dwordx4 v[{STV+8}:{STV+11}], v198, s[58:59] offset:1024 sc1
        global_load_dwordx4 v[{STV+12}:{STV+15}], v216, s[58:59] offset:1024 sc1""")
    pairs = [(m, n) for m in range(8) for n in range(8 - m)]
    for idx, (m, n) in enumerate(pairs):
        j = m + n
        A(f"v_mfma_f32_16x16x32_bf16 v[{ACC+4*j}:{ACC+4*j+3}], v[{AB[buf]+4*n}:{AB[buf]+4*n+3}], v[{UB[buf]+4*m}:{UB[buf]+4*m+3}], v[{ACC+4*j}:{ACC+4*j+3}]")
        if idx < len(nxt): A(nxt[idx])
        if s >= 1 and idx % 4 == 3 and nw < 28:
            for l in w2f_load(0, nw): A(l)
            nw += 1
    if s < 3: A("s_waitcnt lgkmcnt(0)")
while nw < 28:
    for l in w2f_load(0, nw): A(l)
    nw += 1
stamp(5)
A("s_barrier")
for j in range(8):
    A(f"ds_write_b128 v212, v[{ACC+4*j}:{ACC+4*j+3}] offset:{1024*j}")
A("s_waitcnt lgkmcnt(0)\ns_barrier")
PB = 10
for jj in range(2):
    for w_ in range(4):
        A(f"ds_read_b128 v[{PB+16*jj+4*w_}:{PB+16*jj+4*w_+3}], v213 offset:{8192*w_+1024*jj}")
for jj in range(2):
    for c in range(2):
        A(f"ds_read_b64 v[{42+4*jj+2*c}:{43+4*jj+2*c}], v210 offset:{(512 if jj == 0 else 0) + 4608*c}")
A(f"""s_and_b32 s75, s74, s72
s_lshl_b32 s74, s74, 16
s_waitcnt vmcnt(28)""")
P2 = lambda r: f"v[{r}:{r+1}]"
for jj in range(2):
    P = PB + 16*jj
    X = XV + 4*jj; SA = STV + 8*jj; SB = SA + 4
    t = 50
    for c in range(2):
        q = t + 8*c
        for i in range(4):
            A(f"v_lshlrev_b32 v{q+i}, 16, v{X+i}" if c == 0 else f"v_and_b32 v{q+i}, s72, v{X+i}")
        for i in (0, 2):
            A(f"v_pk_fma_f32 {P2(q+4+i)}, {P2(q+i)}, {P2(SA+i)}, {P2(SB+i)}")
    A(f"s_waitcnt lgkmcnt({8 if jj == 0 else 0})")
    if jj == 0: A("s_waitcnt lgkmcnt(2)")
    for i in (0, 2):
        A(f"v_pk_add_f32 {P2(P+i)}, {P2(P+i)}, {P2(P+4+i)}\nv_pk_add_f32 {P2(P+8+i)}, {P2(P+8+i)}, {P2(P+12+i)}")
    for c in range(2):
        U = 42 + 4*jj + 2*c
        Y = P + 8*c
        u = 66 + 4*c
        A(f"v_and_b32 v{u}, s72, v{U+1}\nv_lshlrev_b32 v{u+1}, 16, v{U+1}\nv_and_b32 v{u+2}, s72, v{U}\nv_lshlrev_b32 v{u+3}, 16, v{U}")
        sel = "op_sel:[0,0,0] op_sel_hi:[1,0,1]" if c == 0 else "op_sel:[0,1,0] op_sel_hi:[1,1,1]"
        for i in (0, 2):
            A(f"v_pk_fma_f32 {P2(Y+i)}, {P2(u+i)}, s[74:75], {P2(Y+i)} {sel}")
        q = t + 8*c
        for i in (0, 2):
            A(f"v_pk_fma_f32 {P2(Y+i)}, {P2(q+4+i)}, {P2(Y+i)}, {P2(q+i)}")
    for i in range(4):
        A(f"v_cvt_pk_bf16_f32 v{74+4*jj+i}, v{P+i}, v{P+8+i}")
    A(f"global_store_dwordx4 v197, v[{74+4*jj}:{77+4*jj}], s[56:57] offset:{1024*jj} sc1")
stamp(6)
A("s_waitcnt vmcnt(0)\ns_barrier")
lw = A.label("s2w0")
wave0_only(lw)
A(f"s_add_u32 s66, s36, {CL_S2}")
emit_signal("s66")
A(f"{lw}:")
stamp(7)

A(f"""v_lshrrev_b32 v10, 5, v1
v_bfe_u32 v11, v1, 2, 2
v_lshl_add_u32 v10, v10, 3, v11
v_lshlrev_b32 v10, 8, v10
v_bfe_u32 v12, v1, 4, 1
v_bfe_u32 v13, v1, 1, 1
v_lshl_add_u32 v12, v12, 1, v13
v_lshlrev_b32 v12, 4, v12
v_add_u32 v10, v10, v12
v_and_b32 v12, 1, v1
v_lshl_add_u32 v10, v12, 3, v10
s_lshl_b32 s66, s3, 12
v_add_u32 v10, s66, v10
v_lshlrev_b32 v11, 6, v11""")
for ft in range(4):
    A(f"v_xor_b32 v{2+ft}, {64*ft}, v11\nv_add_u32 v{2+ft}, v{2+ft}, v10\nv_add_u32 v{6+ft}, 65536, v{2+ft}")
A(f"""v_lshlrev_b32 v12, 4, v1
v_add_u32 v12, s66, v12
v_add_u32 v13, 65536, v12
s_lshl_b32 s66, s39, 7
s_lshl_b32 s67, s3, 5
s_add_u32 s66, s66, s67
v_and_b32 v14, 31, v1
v_add_u32 v14, s66, v14
v_lshlrev_b32 v14, 1, v14
global_load_ushort v15, v14, s[24:25]""")
CB = 16
def cv_reads(i):
    L = []
    for ft in range(4):
        base, off = (2+ft, 16384*i) if i < 4 else (6+ft, 16384*(i-4))
        r = CB + 16*i + 4*ft
        L += [f"ds_read_b64_tr_b16 v[{r}:{r+1}], v{base} offset:{off}", f"ds_read_b64_tr_b16 v[{r+2}:{r+3}], v{base} offset:{off+1024}"]
    return L
def cv_writes(i):
    base, off = (12, 16384*i) if i < 4 else (13, 16384*(i-4))
    return [f"ds_write_b128 v{base}, v[{CB+16*i+4*ft}:{CB+16*i+4*ft+3}] offset:{off+1024*ft}" for ft in range(4)]
for l in cv_reads(0): A(l)
for i in range(7):
    if i < 6:
        for l in cv_reads(i+1): A(l)
        A("s_waitcnt lgkmcnt(8)")
    else:
        A("s_waitcnt lgkmcnt(0)")
    for l in cv_writes(i): A(l)
    if i < 6: A("s_waitcnt lgkmcnt(8)") if False else None
A("s_waitcnt lgkmcnt(0)\ns_barrier")
A(f"""s_lshl_b32 s66, s3, 10
v_lshl_add_u32 v6, v1, 4, s66
v_add_u32 v7, 57344, v6""")
for half in range(2):
    base = "v6" if half == 0 else "v7"
    for k in range(14):
        A(f"ds_read_b128 v[{64+56*half+4*k}:{67+56*half+4*k}], {base} offset:{4096*k}")
    if half == 1: pass
for half in range(2):
    for k in range(14):
        idx = 14*half + k
        A(f"s_waitcnt lgkmcnt({min(15, 27-idx)})")
        for r in range(4):
            reg = 64+56*half+4*k+r
            if idx == 0:
                A(f"v_dot2_f32_bf16 v{42+r}, v{reg}, s73, 0")
            else:
                A(f"v_dot2_f32_bf16 v{42+r}, v{reg}, s73, v{42+r}")
A(f"""s_nop 2
v_add_f32 v42, v42, v43
v_add_f32 v44, v44, v45
s_nop 0
v_add_f32 v42, v42, v44
v_mov_b32 v43, v42
s_nop 1
v_permlane32_swap_b32 v42, v43
s_nop 1
v_add_f32 v42, v42, v43
v_cvt_pk_bf16_f32 v43, -v42, -v42
v_and_b32 v44, s72, v43
v_add_f32 v44, v42, v44
v_cvt_pk_bf16_f32 v44, -v44, -v44
s_waitcnt vmcnt(0)
v_perm_b32 v46, v44, v43, s70
v_perm_b32 v47, v15, v43, s70
v_mov_b32 v48, v15
v_mov_b32 v49, 0
v_cmp_gt_u32 vcc, 32, v1
v_lshlrev_b32 v50, 4, v1
s_lshl_b32 s66, s3, 10
s_add_u32 s66, s66, {L_AUG}
v_cndmask_b32 v46, 0, v46, vcc
v_cndmask_b32 v47, 0, v47, vcc
v_cndmask_b32 v48, 0, v48, vcc
v_add_u32 v50, s66, v50
ds_write_b128 v50, v[46:49]
v_lshrrev_b32 v10, 5, v1
v_lshlrev_b32 v10, 15, v10
v_and_b32 v11, 31, v1
v_lshl_add_u32 v10, v11, 2, v10
s_lshl_b32 s66, s38, 9
s_lshl_b32 s67, s3, 7
s_add_u32 s66, s66, s67
v_add_u32 v2, s66, v10
v_add_u32 v3, 8192, v2
v_add_u32 v4, 16384, v2
v_add_u32 v5, 24576, v2""")
srd(48, 56, S*D*2)
A(f"""v_lshlrev_b32 v6, 4, v1
v_add_u32 v7, 57344, v6
s_lshl_b32 s77, s39, 1
s_waitcnt lgkmcnt(0)""")
stamp(8)
lw = A.label("s2p")
wave0_only(lw)
A(f"v_and_b32 v16, 7, v1\nv_add_u32 v16, {CL_S2}, v16\nv_lshlrev_b32 v16, 7, v16\nv_mov_b32 v17, 28")
emit_poll("v16", "v17")
A(f"{lw}:\ns_barrier")
stamp(9)

BF = 16
TL = [128, 144, 160, 176]
AF = 192
def ldB(ks):
    A("s_lshl_b32 s76, s77, 16")
    for r in range(4):
        A(f"buffer_load_dword v{BF+4*ks+r}, v{2+r}, s[48:51], s76 offen sc1")
    A("s_add_u32 s77, s77, 1\ns_cmp_eq_u32 s77, 28\ns_cselect_b32 s77, 0, s77")
for ks in range(PD2): ldB(ks)
def afrag_addr(ks, ft):
    return ("v6", 4096*ks + 1024*ft) if ks < 14 else ("v7", 4096*(ks-14) + 1024*ft)
def ldA(dst, ks, ft):
    b, o = afrag_addr(ks, ft)
    A(f"ds_read_b128 v[{dst}:{dst+3}], {b} offset:{o}")
ldA(AF, 0, 0); ldA(AF+4, 0, 1)
nW2 = 0
for ks in range(28):
    cur = AF + 8*(ks & 1); nxt = AF + 8*((ks+1) & 1)
    issued_last = min(ks + PD2 - 1, 27)
    n_out = 4*(issued_last - ks) + nW2
    A(f"s_waitcnt vmcnt({n_out})")
    if ks in (0, 7, 14, 21): stamp(20 + ks//7)
    b = BF + 4*ks
    for r in range(4):
        if ks == 0 and r < 2:
            A(f"v_dot2_f32_bf16 v{208+(r&1)}, v{b+r}, s73, 0")
            A(f"v_dot2_f32_bf16 v{210+(r&1)}, v{b+r}, v{b+r}, 0")
        else:
            A(f"v_dot2_f32_bf16 v{208+(r&1)}, v{b+r}, s73, v{208+(r&1)}")
            A(f"v_dot2_f32_bf16 v{210+(r&1)}, v{b+r}, v{b+r}, v{210+(r&1)}")
    A("s_waitcnt lgkmcnt(0)")
    if ks < 27:
        ldA(nxt, ks+1, 0); ldA(nxt+4, ks+1, 1)
    for t in range(2):
        c = "0" if ks == 0 else f"v[{TL[t]}:{TL[t]+15}]"
        A(f"v_mfma_f32_32x32x16_bf16 v[{TL[t]}:{TL[t]+15}], v[{cur+4*t}:{cur+4*t+3}], v[{b}:{b+3}], {c}")
    if ks + PD2 <= 27: ldB(ks + PD2)
stamp(10)
A(f"""v_add_u32 v10, {L_AUG}, v6
ds_read_b128 v[{AF}:{AF+3}], v10
ds_read_b128 v[{AF+4}:{AF+7}], v10 offset:1024
ds_read_b128 v[{AF+8}:{AF+11}], v10 offset:2048
ds_read_b128 v[{AF+12}:{AF+15}], v10 offset:3072
v_add_f32 v208, v208, v209
v_add_f32 v210, v210, v211
v_mov_b32 v209, v208
v_mov_b32 v211, v210
v_lshlrev_b32 v9, 4, v1
s_nop 0
v_permlane32_swap_b32 v208, v209
v_permlane32_swap_b32 v210, v211
s_mov_b32 s66, 0x3b124925
s_nop 0
v_add_f32 v208, v208, v209
v_add_f32 v210, v210, v211
v_mul_f32 v208, s66, v208
v_mul_f32 v210, s66, v210
v_fma_f32 v210, -v208, v208, v210
v_add_f32 v210, 0x3727c5ac, v210
v_rsq_f32 v211, v210
v_sqrt_f32 v214, v210
s_mov_b32 s66, 0xc0135761
s_mov_b32 s67, 0xbdd2d3e8
v_mul_f32 v213, s66, v211
v_mul_f32 v212, v211, v211
v_mul_f32 v212, v212, v211
v_mul_f32 v212, s67, v212
v_cvt_pk_bf16_f32 v209, v208, v208
v_and_b32 v215, s72, v209
v_sub_f32 v215, v208, v215
v_cvt_pk_bf16_f32 v220, v214, v214
v_and_b32 v221, s72, v220
v_sub_f32 v221, v214, v221
v_and_b32 v217, s72, v220
v_cvt_pk_bf16_f32 v215, v215, v215
v_and_b32 v215, 0xffff, v215
v_or_b32 v217, v217, v215
v_cvt_pk_bf16_f32 v218, v221, 0
v_mov_b32 v216, v209
v_mov_b32 v219, 0
v_cmp_gt_u32 vcc, 32, v1
s_nop 1
v_cndmask_b32 v216, 0, v216, vcc
v_cndmask_b32 v217, 0, v217, vcc
v_cndmask_b32 v218, 0, v218, vcc
s_waitcnt lgkmcnt(0)
s_nop 0""")
for t in range(2):
    A(f"v_mfma_f32_32x32x16_bf16 v[{TL[t]}:{TL[t]+15}], v[{AF+4*t}:{AF+4*t+3}], v[216:219], v[{TL[t]}:{TL[t]+15}]")
for t in (2, 3):
    A(f"v_mfma_f32_32x32x16_bf16 v[{TL[t]}:{TL[t]+15}], v[{AF+4*t}:{AF+4*t+3}], v[216:219], 0")
A(f"""s_lshl_b32 s66, s38, 2
s_add_u32 s66, s66, s3
s_mul_i32 s66, s66, 56
s_lshl_b32 s67, s39, 2
s_add_u32 s66, s66, s67
s_lshl_b32 s66, s66, 11
v_lshl_add_u32 v8, v1, 4, s66
v_add_u32 v11, 4096, v8""")
GT = 220
def gelu_np(tile, grp):
    w = [TL[tile] + 4*grp + e for e in range(4)]
    t = [GT + 4*(grp & 1) + e for e in range(4)]
    L = []
    L += [f"v_mul_f32 v{t[e]}, v{w[e]}, v{w[e]}" for e in range(4)]
    L += [f"v_fma_f32 v{t[e]}, v{t[e]}, v212, v213" for e in range(4)]
    L += [f"v_mul_f32 v{t[e]}, v{t[e]}, v{w[e]}" for e in range(4)]
    L += [f"v_exp_f32 v{t[e]}, v{t[e]}" for e in range(4)]
    L += [f"v_fma_f32 v{t[e]}, v{t[e]}, v214, v214" for e in range(4)]
    L += [f"v_rcp_f32 v{t[e]}, v{t[e]}" for e in range(4)]
    L += [f"v_mul_f32 v{w[e]}, v{w[e]}, v{t[e]}" for e in range(4)]
    o = 228 + 8*(tile & 1) + 2*grp
    L += [f"v_cvt_pk_bf16_f32 v{o}, v{w[0]}, v{w[1]}", f"v_cvt_pk_bf16_f32 v{o+1}, v{w[2]}, v{w[3]}"]
    return L
def gelu_pk(tile, grp):
    L = []
    w = [TL[tile] + 8*grp + 2*e for e in range(4)]
    t = [GT + 2*e for e in range(4)]
    P = lambda r: f"v[{r}:{r+1}]"
    L += [f"v_pk_mul_f32 {P(t[e])}, {P(w[e])}, {P(w[e])}" for e in range(4)]
    L += [f"v_pk_fma_f32 {P(t[e])}, {P(t[e])}, v[212:213], v[212:213] op_sel:[0,0,1] op_sel_hi:[1,0,1]" for e in range(4)]
    L += [f"v_pk_mul_f32 {P(t[e])}, {P(t[e])}, {P(w[e])}" for e in range(4)]
    L += [f"v_exp_f32 v{t[e]+k}, v{t[e]+k}" for e in range(4) for k in range(2)]
    L += [f"v_pk_fma_f32 {P(t[e])}, {P(t[e])}, v[214:215], v[214:215] op_sel_hi:[1,0,0]" for e in range(4)]
    L += [f"v_rcp_f32 v{t[e]+k}, v{t[e]+k}" for e in range(4) for k in range(2)]
    L += [f"v_pk_mul_f32 {P(w[e])}, {P(w[e])}, {P(t[e])}" for e in range(4)]
    o = 228 + 8*(tile & 1) + 4*grp
    L += [f"v_cvt_pk_bf16_f32 v{o+e}, v{w[e]}, v{w[e]+1}" for e in range(4)]
    return L
def h_store(tile):
    o = 228 + 8*(tile & 1)
    if tile < 2:
        return [f"global_store_dwordx4 v8, v[{o}:{o+3}], s[60:61] offset:{2048*tile} sc1", f"global_store_dwordx4 v8, v[{o+4}:{o+7}], s[60:61] offset:{2048*tile+1024} sc1"]
    return [f"global_store_dwordx4 v11, v[{o}:{o+3}], s[60:61] offset:{2048*(tile-2)} sc1", f"global_store_dwordx4 v11, v[{o+4}:{o+7}], s[60:61] offset:{2048*(tile-2)+1024} sc1"]
def w2f_loadB(kk):
    return [l.replace("v211", "v9") for l in w2f_load(1, kk)]
for t in (2, 3):
    g = []
    for grp in range(4): g += gelu_np(t - 2, grp)
    g += h_store(t - 2)
    ldA(AF, 0, t); ldA(AF+4, 1, t)
    for ks in range(28):
        cur = AF + 4*(ks % 4)
        if ks + 2 < 28: ldA(AF + 4*((ks+2) % 4), ks+2, t)
        A(f"s_waitcnt lgkmcnt({min(2, 27-ks)})")
        b = BF + 4*ks
        A(f"v_mfma_f32_32x32x16_bf16 v[{TL[t]}:{TL[t]+15}], v[{cur}:{cur+3}], v[{b}:{b+3}], v[{TL[t]}:{TL[t]+15}]")
        lo = len(g)*ks//28; hi = len(g)*(ks+1)//28
        for x in g[lo:hi]: A(x)
        if ks % 2 == 1 and nW2 < 28:
            for l in w2f_loadB(nW2): A(l)
            nW2 += 1
stamp(11)
A(f"""s_lshr_b32 s66, s3, 1
s_and_b32 s67, s3, 1
s_lshl_b32 s68, s40, 1
s_add_u32 s68, s68, s66
s_lshl_b32 s68, s68, 7
s_lshl_b32 s69, s41, 1
s_add_u32 s69, s69, s67
s_lshl_b32 s76, s69, 17
s_add_u32 s68, s68, s76
v_lshrrev_b32 v12, 5, v1
v_lshlrev_b32 v13, 14, v12
v_and_b32 v14, 31, v1
v_lshl_add_u32 v13, v14, 2, v13
v_add_u32 v13, s68, v13""")
for j in range(4):
    A(f"buffer_load_dword v{16+2*j}, v13, s[48:51], 0 offen sc1")
    A(f"v_add_u32 v14, 8192, v13")
    A(f"buffer_load_dword v{17+2*j}, v14, s[48:51], 0 offen sc1")
    if j < 3: A("v_add_u32 v13, 32768, v13")
A(f"""s_lshl_b32 s69, s69, 6
v_lshl_add_u32 v12, v12, 3, s69""")
for j in range(4):
    A(f"global_load_dwordx2 v[{24+2*j}:{25+2*j}], v12, s[28:29] offset:{16*j}")
for t in (2, 3):
    for grp in range(2):
        for x in gelu_pk(t, grp): A(x)
    for x in h_store(t): A(x)
stamp(12)
A("s_waitcnt vmcnt(0)\ns_barrier")
lw = A.label("s3w0")
wave0_only(lw)
A(f"s_add_u32 s66, s38, {CL_S3}")
emit_signal("s66")
A(f"{lw}:")
stamp(13)

ACC3 = 32; RING = 96; NS = 20
A(f"""s_lshl_b32 s66, s40, 1
s_mul_i32 s66, s66, {112*1024}
s_mul_i32 s67, s3, {28*1024}
s_add_u32 s81, s66, s67
v_lshlrev_b32 v2, 4, v1
v_add_u32 v3, {112*1024}, v2""")
srd(44, 60, S*F*2)
lw = A.label("s3p")
wave0_only(lw)
A(f"s_add_u32 s66, s38, {CL_S3}\ns_lshl_b32 s66, s66, 7\nv_mov_b32 v10, s66")
emit_poll("v10", "14")
A(f"{lw}:\ns_barrier")
stamp(14)
def ldH(kk):
    slot = kk % NS
    if kk % 4 == 0:
        A(f"s_add_u32 s82, s41, {kk>>2}\ns_cmp_ge_u32 s82, 7\ns_cselect_b32 s83, 7, 0\ns_sub_u32 s82, s82, s83\ns_lshl_b32 s82, s82, 12\ns_add_u32 s82, s82, s81")
    for tj in range(2):
        r = RING + 8*slot + 4*tj
        A(f"buffer_load_dwordx4 v[{r}:{r+3}], v{2+tj}, s[44:47], s82 offen offset:{1024*(kk&3)} sc1")
for kk in range(PD3): ldH(kk)
for kk in range(28):
    A(f"s_waitcnt vmcnt({2*(min(kk+PD3-1, 27) - kk)})")
    slot = kk % NS
    for tj in range(2):
        for dd in range(2):
            T_ = ACC3 + 16*(2*tj + dd)
            a = 4*(dd*28 + kk)
            r = RING + 8*slot + 4*tj
            c = "0" if kk == 0 else f"v[{T_}:{T_+15}]"
            A(f"v_mfma_f32_32x32x16_bf16 v[{T_}:{T_+15}], a[{a}:{a+3}], v[{r}:{r+3}], {c}")
    if kk + PD3 < 28: ldH(kk + PD3)
stamp(15)
A(f"""v_lshlrev_b32 v4, 4, v1
s_lshl_b32 s66, s3, 14
v_add_u32 v5, s66, v4
s_lshl_b32 s66, s3, 12
v_add_u32 v4, s66, v4
s_lshr_b32 s66, s3, 1
s_and_b32 s67, s3, 1
s_lshl_b32 s68, s40, 1
s_add_u32 s68, s68, s66
s_lshl_b32 s68, s68, 5
v_and_b32 v6, 31, v1
v_add_u32 v6, s68, v6
v_mul_u32_u24 v6, 896, v6
s_lshl_b32 s69, s41, 1
s_add_u32 s69, s69, s67
s_lshl_b32 s69, s69, 6
v_lshrrev_b32 v7, 5, v1
v_lshl_add_u32 v6, v7, 4, v6
v_add_u32 v6, s69, v6""")
for T_ in range(4):
    for q in range(4):
        r = ACC3 + 16*T_ + 4*q
        A(f"ds_write_b128 v5, v[{r}:{r+3}] offset:{4096*T_ + 1024*q}")
for j in range(4):
    for c in range(2):
        k = 4*j + 2*c
        A(f"""v_lshlrev_b32 v{160+k}, 16, v{16+2*j+c}
        v_and_b32 v{161+k}, s72, v{16+2*j+c}
        v_lshlrev_b32 v{176+k}, 16, v{24+2*j+c}
        v_and_b32 v{177+k}, s72, v{24+2*j+c}""")
for k in range(0, 16, 2):
    A(f"v_pk_add_f32 {P2(160+k)}, {P2(160+k)}, {P2(176+k)}")
A("s_waitcnt lgkmcnt(0)\ns_barrier")
RB = 96
for w_ in range(4):
    for q in range(4):
        r = RB + 16*w_ + 4*q
        A(f"ds_read_b128 v[{r}:{r+3}], v4 offset:{16384*w_ + 1024*q}")
A("s_waitcnt lgkmcnt(8)")
for k in range(0, 16, 2): A(f"v_pk_add_f32 {P2(RB+k)}, {P2(RB+k)}, {P2(RB+16+k)}")
for k in range(0, 16, 2): A(f"v_pk_add_f32 {P2(RB+k)}, {P2(RB+k)}, {P2(160+k)}")
A("s_waitcnt lgkmcnt(0)")
for k in range(0, 16, 2): A(f"v_pk_add_f32 {P2(RB+32+k)}, {P2(RB+32+k)}, {P2(RB+48+k)}")
for k in range(0, 16, 2): A(f"v_pk_add_f32 {P2(RB+k)}, {P2(RB+k)}, {P2(RB+32+k)}")
for k in range(8): A(f"v_cvt_pk_bf16_f32 v{192+k}, v{RB+2*k}, v{RB+2*k+1}")
A("""s_nop 1
v_permlane32_swap_b32 v192, v194
v_permlane32_swap_b32 v193, v195
v_permlane32_swap_b32 v196, v198
v_permlane32_swap_b32 v197, v199
s_nop 1
global_store_dwordx4 v6, v[192:195], s[30:31]
global_store_dwordx4 v6, v[196:199], s[30:31] offset:32""")
stamp(16)
A("s_branch L_END")

A(f"""L_INIT:
s_waitcnt lgkmcnt(0)
v_mov_b32 v4, 0
v_mov_b32 v5, 0
v_mov_b32 v6, 0
v_mov_b32 v7, 0
v_lshlrev_b32 v2, 4, v0
global_store_dwordx4 v2, v[4:7], s[34:35] sc1
v_add_u32 v3, 4096, v2
global_store_dwordx4 v3, v[4:7], s[34:35] sc1
s_waitcnt vmcnt(0)
s_barrier
s_cmp_lg_u32 s3, 0
s_cbranch_scc1 L_END
v_mov_b32 v2, 0
v_mov_b32 v3, 1
s_mov_b64 exec, 1
global_store_dword v2, v3, s[32:33] sc1
L_END:
s_endpgm
L_CODE_END:""")

errs = check_hazards(A.lines)
for e in errs: print("HAZARD:", e, file=sys.stderr)
hdr = open(f"cdna_kernels/{NAME}.s.ref").read().split(".amdgcn_target")[0]
hdr = "\n".join(l for l in hdr.splitlines() if not l.startswith("; @launch"))
out = [hdr.rstrip(), f"; @launch grid=({NWG},1,1) block=(256,1,1) lds={LDS_BYTES}",
 '.amdgcn_target "amdgcn-amd-amdhsa--gfx950"', ".text", f".globl {KN}", ".p2align 8", f".type {KN},@function", f"{KN}:",
 A.text(), '.section .rodata,"a"', ".p2align 6", f".amdhsa_kernel {KN}",
 "  .amdhsa_next_free_vgpr 512", "  .amdhsa_next_free_sgpr 96", "  .amdhsa_accum_offset 256", "  .amdhsa_group_segment_fixed_size 0",
 "  .amdhsa_kernarg_size 112", "  .amdhsa_user_sgpr_count 2", "  .amdhsa_user_sgpr_kernarg_segment_ptr 1", "  .amdhsa_system_sgpr_workgroup_id_x 1",
 "  .amdhsa_float_denorm_mode_32 3", ".end_amdhsa_kernel", ""]
dst = os.environ.get("OUT", f"cdna_kernels/{NAME}.s")
open(dst, "w").write("\n".join(out))
print("wrote", dst, "instructions:", sum(1 for l in A.lines if not l.endswith(':')), "hazards:", len(errs))
```

```python
import sys, os
sys.path.insert(0, os.path.dirname(os.path.abspath(__file__)))
from asmlib import *

NAME = "sequential_preLN__ssm_conv_h3__dense_activation_gelu__prompt"
E = lambda k, d: int(os.environ.get(k, str(d)))
STAMPS = E("STAMPS", 0)
PD2 = E("PD2", 11)
PD3 = E("PD3", 6)
W1THR = E("W1THR", 0)
NMAIN = 224
NWG = NMAIN + 1
S, D, F = 2048, 448, 1792
WS_STAMP = 0x80000
WS_UR = 0x100000
WS_X2 = 0x300000
WS_H2 = 0x500000
WS_ST = 0x700000
WS_W2F = 0x800000
WS_HF = 0xA00000
CL_S1 = 0; CL_AUX = 8; CL_S2 = 16; CL_S3 = 32
L_W1 = 0
L_X = 0x1C000
L_UT = L_X + 0x0000
L_XT = L_X + 0x2000
L_KA = L_X + 0x4000 + 64
L_UR = L_X + 0x8100
L_AUG = L_X + 0xA500
LDS_BYTES = 163840
SPIN = 2000000
KN = NAME + "_kernel"

A = Asm()

def stamp(i):
    if not STAMPS: return
    l = A.label("st")
    A(f"""s_cmp_lg_u32 s3, 0
    s_cbranch_scc1 {l}
    s_memtime s[92:93]
    s_waitcnt lgkmcnt(0)
    s_lshl_b32 s94, s2, 8
    s_add_u32 s94, s94, {WS_STAMP + 4*i}
    v_mov_b32 v250, s94
    v_mov_b32 v251, s92
    s_mov_b64 s[90:91], exec
    s_mov_b64 exec, 1
    global_store_dword v250, v251, s[34:35]
    s_mov_b64 exec, s[90:91]
    {l}:""")

def rstamp(i, xcc=False):
    if not STAMPS: return
    l = A.label("rt")
    A(f"""s_cmp_lg_u32 s3, 0
    s_cbranch_scc1 {l}
    {"s_getreg_b32 s92, hwreg(HW_REG_XCC_ID)" if xcc else "s_memrealtime s[92:93]"}
    s_waitcnt lgkmcnt(0)
    s_lshl_b32 s94, s2, 8
    s_add_u32 s94, s94, {WS_STAMP + 4*i}
    v_mov_b32 v250, s94
    v_mov_b32 v251, s92
    s_mov_b64 s[90:91], exec
    s_mov_b64 exec, 1
    global_store_dword v250, v251, s[34:35]
    s_mov_b64 exec, s[90:91]
    {l}:""")

def wave0_only(label):
    A(f"s_cmp_lg_u32 s3, 0\ns_cbranch_scc1 {label}")

def emit_signal(line_sreg):
    A(f"""s_lshl_b32 s67, {line_sreg}, 7
    v_mov_b32 v245, s67
    v_mov_b32 v246, 1
    s_mov_b64 s[64:65], exec
    s_mov_b64 exec, 1
    global_atomic_add v245, v246, s[34:35] sc1
    s_mov_b64 exec, s[64:65]""")

def emit_poll(addr_v, target, base="s[34:35]", tmp="v247"):
    lp = A.label("poll"); done = A.label("polld")
    A(f"""s_mov_b32 s68, {SPIN}
    {lp}:
    global_load_dword {tmp}, {addr_v}, {base} sc1
    s_waitcnt vmcnt(0)
    v_cmp_ne_u32 vcc, {target}, {tmp}
    s_cbranch_vccz {done}
    s_sub_u32 s68, s68, 1
    s_cmp_lg_u32 s68, 0
    s_cbranch_scc1 {lp}
    {done}:""")

def ws_base(sreg, off):
    A(f"s_add_u32 s{sreg}, s34, {off}\ns_addc_u32 s{sreg+1}, s35, 0")

def srd(base, ptr, size):
    A(f"s_mov_b32 s{base}, s{ptr}\ns_mov_b32 s{base+1}, s{ptr+1}\ns_mov_b32 s{base+2}, {size}\ns_mov_b32 s{base+3}, 0x20000")

if STAMPS: A("s_memrealtime s[78:79]")
A(f"""s_cmp_gt_u32 s2, {NMAIN}
s_cbranch_scc1 L_END
s_load_dwordx16 s[8:23], s[0:1], 0
s_load_dwordx8 s[24:31], s[0:1], 64
s_load_dwordx4 s[32:35], s[0:1], 96
s_getpc_b64 s[88:89]
L_PC:
v_and_b32 v1, 63, v0
v_lshrrev_b32 v2, 6, v0
s_lshr_b32 s42, s2, 5
v_readfirstlane_b32 s3, v2
s_and_b32 s43, s2, 31
s_mov_b32 s70, 0x05040100
s_mov_b32 s71, 0x07060302
s_mov_b32 s72, 0xffff0000
s_mov_b32 s73, 0x3f803f80
s_cmp_eq_u32 s2, {NMAIN}
s_cbranch_scc1 L_INIT""")

A(f"""v_lshrrev_b32 v2, 3, v0
v_and_b32 v3, 7, v0
s_mul_i32 s66, s43, {64*896}
s_lshl_b32 s67, s42, 7
s_add_u32 s66, s66, s67
v_mul_u32_u24 v4, 1792, v2
v_lshl_add_u32 v4, v3, 4, v4
v_add_u32 v7, s66, v4
v_subrev_u32 v92, 2688, v7
v_subrev_u32 v93, 1792, v7
v_subrev_u32 v94, 896, v7
s_lshl_b32 s67, s42, 9
v_lshl_add_u32 v8, v3, 6, s67""")
A(f"""s_lshr_b32 s66, s2, 1
s_mul_i32 s66, s66, {16*896}
s_and_b32 s67, s2, 1
s_mul_i32 s67, s67, 448
s_add_u32 s66, s66, s67
s_mov_b32 s67, 2341
v_mul_lo_u32 v110, v0, s67
v_lshrrev_b32 v110, 16, v110
v_mul_u32_u24 v111, 28, v110
v_sub_u32 v111, v0, v111
v_mul_u32_u24 v110, 896, v110
v_lshl_add_u32 v110, v111, 4, v110
v_add_u32 v110, s66, v110
v_add_u32 v112, 256, v0
v_mul_lo_u32 v113, v112, s67
v_lshrrev_b32 v113, 16, v113
v_mul_u32_u24 v111, 28, v113
v_sub_u32 v111, v112, v111
v_mul_u32_u24 v113, 896, v113
v_lshl_add_u32 v113, v111, 4, v113
v_add_u32 v113, s66, v113
s_lshr_b32 s37, s2, 3
s_lshl_b32 s66, s37, 10
s_min_u32 s66, s66, L_CODE_END-{KN}-1024
v_lshl_add_u32 v114, v1, 4, s66
s_lshl_b32 s69, s3, 10
s_add_u32 m0, s69, {L_W1}
s_waitcnt lgkmcnt(0)""")
if STAMPS: A("s_memrealtime s[96:97]")
srd(44, 10, S*D*2)
A(f"""buffer_load_dwordx4 v[10:13], v92, s[44:47], 0 offen
buffer_load_dwordx4 v[14:17], v93, s[44:47], 0 offen
buffer_load_dwordx4 v[18:21], v94, s[44:47], 0 offen
buffer_load_dwordx4 v[22:25], v7, s[44:47], 0 offen
buffer_load_dwordx4 v[26:29], v7, s[44:47], 0 offen offset:896
global_load_dwordx4 v[46:49], v8, s[14:15]
global_load_dwordx4 v[50:53], v8, s[14:15] offset:16
global_load_dwordx4 v[54:57], v8, s[14:15] offset:32
global_load_dwordx4 v[58:61], v8, s[14:15] offset:48
global_load_dwordx4 v[30:33], v7, s[12:13]
global_load_dwordx4 v[34:37], v7, s[12:13] offset:896
global_load_dwordx4 v[38:41], v7, s[8:9]
global_load_dwordx4 v[42:45], v7, s[8:9] offset:896
global_load_lds_dwordx4 v110, s[26:27]""")
l3 = A.label("x3"); lx = A.label("xd")
A(f"""s_cmp_eq_u32 s3, 3
s_cbranch_scc1 {l3}
s_add_u32 m0, m0, 4096
s_nop 0
global_load_lds_dwordx4 v113, s[26:27]
s_branch {lx}
{l3}:
s_sub_u32 s88, s88, L_PC-{KN}
s_subb_u32 s89, s89, 0
global_load_dwordx4 v[116:119], v114, s[88:89]
{lx}:""")
lns = A.label("nost")
A(f"""s_cmp_lt_u32 s42, 4
s_cselect_b32 s76, 1, 0
s_cmp_ge_u32 s3, 2
s_cselect_b32 s76, s76, 0
s_cmp_eq_u32 s76, 0
s_cbranch_scc1 {lns}
s_lshl_b32 s66, s43, 6
s_lshl_b32 s67, s42, 4
s_add_u32 s66, s66, s67
s_sub_u32 s67, s3, 2
s_lshl_b32 s67, s67, 3
s_add_u32 s66, s66, s67
v_lshrrev_b32 v120, 3, v1
v_add_u32 v120, s66, v120
v_mul_u32_u24 v121, 896, v120
v_and_b32 v122, 7, v1
v_lshl_add_u32 v121, v122, 4, v121""")
for i in range(7):
    A(f"global_load_dwordx4 v[{64+4*i}:{67+4*i}], v121, s[8:9] offset:{128*i}")
A(f"{lns}:")
ws_base(52, WS_UR); ws_base(54, WS_X2); ws_base(56, WS_H2); ws_base(58, WS_ST); ws_base(60, WS_HF); ws_base(62, WS_W2F)
stamp(0)
rstamp(30)
rstamp(31, True)
if STAMPS:
    for (i, r) in ((28, 78), (29, 96)):
        l = A.label("rt0")
        A(f"""s_cmp_lg_u32 s3, 0
        s_cbranch_scc1 {l}
        s_lshl_b32 s94, s2, 8
        s_add_u32 s94, s94, {WS_STAMP + 4*i}
        v_mov_b32 v250, s94
        v_mov_b32 v251, s{r}
        s_mov_b64 s[90:91], exec
        s_mov_b64 exec, 1
        global_store_dword v250, v251, s[34:35]
        s_mov_b64 exec, s[90:91]
        {l}:""")
A(f"""v_sub_u32 v96, 31, v2
v_lshrrev_b32 v97, 2, v96
v_xor_b32 v97, v97, v3
v_lshlrev_b32 v97, 4, v97
v_and_b32 v96, 3, v96
v_lshl_add_u32 v97, v96, 2, v97
v_lshl_add_u32 v95, v3, 10, v97
v_add_u32 v95, {L_UT}, v95
v_lshrrev_b32 v96, 1, v2
v_xor_b32 v96, v96, v3
v_lshlrev_b32 v96, 4, v96
v_and_b32 v97, 1, v2
v_lshl_add_u32 v96, v97, 3, v96
v_lshl_add_u32 v96, v3, 10, v96
v_add_u32 v96, {L_XT}, v96
v_lshrrev_b32 v98, 6, v0
v_xor_b32 v99, v3, v98
v_lshlrev_b32 v99, 4, v99
v_lshl_add_u32 v100, v2, 7, v99
v_add_u32 v100, {L_UT}, v100
v_xor_b32 v101, 64, v100
v_add_u32 v101, 4096, v101
s_lshl_b32 s66, s42, 18
s_sub_u32 s67, 31, s43
s_lshl_b32 s67, s67, 7
s_add_u32 s66, s66, s67
v_lshlrev_b32 v102, 12, v2
v_lshl_add_u32 v102, v3, 4, v102
v_add_u32 v102, s66, v102
v_add_u32 v103, {32*4096}, v102
v_and_b32 v104, 15, v0
v_lshrrev_b32 v105, 4, v0
v_xor_b32 v106, v104, v98
v_lshlrev_b32 v106, 4, v106
v_lshl_add_u32 v106, v105, 8, v106
v_add_u32 v106, {L_XT}, v106
v_xor_b32 v107, 64, v106
v_add_u32 v107, 4096, v107
s_lshl_b32 s66, s42, 18
s_lshl_b32 s67, s43, 8
s_add_u32 s66, s66, s67
v_lshlrev_b32 v108, 13, v105
v_lshl_add_u32 v108, v104, 4, v108
v_add_u32 v108, s66, v108
v_add_u32 v109, {16*8192}, v108""")
A(f"""v_lshrrev_b32 v123, 5, v1
v_bfe_u32 v124, v1, 2, 2
v_lshl_add_u32 v123, v123, 2, v124
v_mul_u32_u24 v123, 448, v123
v_bfe_u32 v124, v1, 4, 1
v_lshl_add_u32 v123, v124, 5, v123
v_and_b32 v124, 3, v1
v_lshl_add_u32 v123, v124, 3, v123
s_lshl_b32 s66, s3, 6
s_add_u32 s66, s66, {L_W1}
v_add_u32 v123, s66, v123
s_and_b32 s66, s2, 1
s_mul_i32 s66, s66, 7
s_add_u32 s66, s66, s3
s_mul_i32 s66, s66, 112
s_lshr_b32 s67, s2, 1
s_add_u32 s66, s66, s67
s_lshl_b32 s66, s66, 10
v_lshl_add_u32 v124, v1, 4, s66""")
lw1 = A.label("wa"); lw2 = A.label("wb")
A(f"""s_cmp_eq_u32 s76, 0
s_cbranch_scc1 {lw1}
s_waitcnt vmcnt(11)
s_branch {lw2}
{lw1}:
s_waitcnt vmcnt(4)
{lw2}:""")
K = lambda j, p: f"v{10 + 4*j + p}"
T = 126
for p in range(4):
    seq = []
    for half in range(2):
        i = 2*p + half
        sel = "s70" if half == 0 else "s71"
        t = T + 8*half
        seq.append([
            f"v_perm_b32 v{t}, {K(2,p)}, {K(3,p)}, {sel}",
            f"v_perm_b32 v{t+1}, {K(0,p)}, {K(1,p)}, {sel}",
            f"v_perm_b32 v{t+2}, {K(3,p)}, {K(4,p)}, {sel}",
            f"v_perm_b32 v{t+3}, {K(1,p)}, {K(2,p)}, {sel}",
            f"v_dot2_f32_bf16 v{t+4}, v{t}, v{46+2*i}, 0",
            f"v_dot2_f32_bf16 v{t+5}, v{t+2}, v{46+2*i}, 0",
            f"v_dot2_f32_bf16 v{t+4}, v{t+1}, v{47+2*i}, v{t+4}",
            f"v_dot2_f32_bf16 v{t+5}, v{t+3}, v{47+2*i}, v{t+5}",
            (f"v_lshlrev_b32 v{t+6}, 16, v{30+p}" if half == 0 else f"v_and_b32 v{t+6}, s72, v{30+p}"),
            (f"v_lshlrev_b32 v{t+7}, 16, v{34+p}" if half == 0 else f"v_and_b32 v{t+7}, s72, v{34+p}"),
            f"v_mul_f32 v{t+4}, v{t+4}, v{t+6}",
            f"v_mul_f32 v{t+5}, v{t+5}, v{t+7}",
            f"v_cvt_pk_bf16_f32 v{t+4}, v{t+5}, v{t+4}",
            f"ds_write_b32 v95, v{t+4} offset:{128*i}",
        ])
    for k in range(len(seq[0])):
        A(seq[0][k]); A(seq[1][k])
A("s_waitcnt vmcnt(0)")
for p in range(4):
    A(f"ds_write2_b32 v96, v{38+p}, v{42+p} offset0:{64*p} offset1:{64*p+1}")
A("""v_mov_b32 v248, 0
global_load_dword v249, v248, s[32:33] sc1
s_waitcnt lgkmcnt(0)
s_barrier
ds_read_b128 v[10:13], v100
ds_read_b128 v[14:17], v101
ds_read_b128 v[18:21], v106
ds_read_b128 v[22:25], v107
ds_read_b64_tr_b16 v[26:27], v123
ds_read_b64_tr_b16 v[28:29], v123 offset:3584
ds_read_b64_tr_b16 v[30:31], v123 offset:256
ds_read_b64_tr_b16 v[32:33], v123 offset:3840
s_waitcnt lgkmcnt(7)
global_store_dwordx4 v102, v[10:13], s[52:53] sc1
s_waitcnt lgkmcnt(6)
global_store_dwordx4 v103, v[14:17], s[52:53] sc1
s_waitcnt lgkmcnt(5)
global_store_dwordx4 v108, v[18:21], s[54:55] sc1
s_waitcnt lgkmcnt(4)
global_store_dwordx4 v109, v[22:25], s[54:55] sc1
s_waitcnt lgkmcnt(2)
global_store_dwordx4 v124, v[26:29], s[62:63] sc1""")
lsk = A.label("w2s")
A(f"""s_cmp_eq_u32 s3, 3
s_cbranch_scc1 {lsk}
v_add_u32 v124, {4*112*1024}, v124
s_waitcnt lgkmcnt(0)
global_store_dwordx4 v124, v[30:33], s[62:63] sc1
{lsk}:""")
lns = A.label("nost2")
A(f"s_cmp_eq_u32 s76, 0\ns_cbranch_scc1 {lns}")
b = 64
A(f"v_dot2_f32_bf16 v10, v{b}, s73, 0\nv_dot2_f32_bf16 v11, v{b}, v{b}, 0\nv_dot2_f32_bf16 v12, v{b+1}, s73, 0\nv_dot2_f32_bf16 v13, v{b+1}, v{b+1}, 0")
for i in range(2, 28, 2):
    A(f"v_dot2_f32_bf16 v10, v{b+i}, s73, v10\nv_dot2_f32_bf16 v11, v{b+i}, v{b+i}, v11\nv_dot2_f32_bf16 v12, v{b+i+1}, s73, v12\nv_dot2_f32_bf16 v13, v{b+i+1}, v{b+i+1}, v13")
A("""s_nop 2
v_add_f32 v10, v10, v12
v_add_f32 v11, v11, v13
s_nop 1
v_add_f32_dpp v10, v10, v10 quad_perm:[1,0,3,2] row_mask:0xf bank_mask:0xf
v_add_f32_dpp v11, v11, v11 quad_perm:[1,0,3,2] row_mask:0xf bank_mask:0xf
s_nop 1
v_add_f32_dpp v10, v10, v10 quad_perm:[2,3,0,1] row_mask:0xf bank_mask:0xf
v_add_f32_dpp v11, v11, v11 quad_perm:[2,3,0,1] row_mask:0xf bank_mask:0xf
s_nop 1
v_add_f32_dpp v10, v10, v10 row_half_mirror row_mask:0xf bank_mask:0xf
v_add_f32_dpp v11, v11, v11 row_half_mirror row_mask:0xf bank_mask:0xf
s_mov_b32 s66, 0x3b124925
v_mul_f32 v10, s66, v10
v_mul_f32 v11, s66, v11
v_fma_f32 v11, -v10, v10, v11
v_add_f32 v11, 0x3727c5ac, v11
v_rsq_f32 v11, v11
v_lshlrev_b32 v120, 2, v120
v_cmp_eq_u32 vcc, 0, v122
v_mul_f32 v12, -v10, v11
v_add_u32 v121, 8192, v120
s_and_saveexec_b64 s[64:65], vcc
global_store_dword v120, v11, s[58:59] sc1
global_store_dword v121, v12, s[58:59] sc1
s_mov_b64 exec, s[64:65]""")
A(f"{lns}:")
stamp(1)
A("s_waitcnt vmcnt(0)\ns_barrier")
stamp(2)
rstamp(32)

A(f"""s_and_b32 s36, s2, 7
s_lshl_b32 s38, s36, 1
s_cmp_ge_u32 s37, 14
s_addc_u32 s38, s38, 0
s_cmp_ge_u32 s37, 14
s_cselect_b32 s66, 14, 0
s_sub_u32 s39, s37, s66
s_mul_i32 s66, s37, 37
s_lshr_b32 s66, s66, 8
s_lshl_b32 s40, s36, 2
s_add_u32 s40, s40, s66
s_mul_i32 s66, s66, 7
s_sub_u32 s41, s37, s66""")
lw0 = A.label("w1w0"); lw3 = A.label("w1w3"); ljoin = A.label("w1join"); lw1dma = A.label("w1dma"); laddr = A.label("w1addr")
A(f"s_cmp_eq_u32 s3, 0\ns_cbranch_scc1 {lw0}")
srd(48, 16, D*S*2); srd(44, 22, D*F*2)
A(f"""v_lshlrev_b32 v10, 4, v1
v_lshrrev_b32 v11, 4, v1
v_lshlrev_b32 v12, 2, v11
v_and_b32 v13, 15, v1
v_xor_b32 v12, v12, v13
v_lshlrev_b32 v12, 4, v12
v_mul_u32_u24 v11, 3584, v11
v_add_u32 v11, v11, v12
s_lshl_b32 s66, s39, 8
v_add_u32 v11, s66, v11
s_cmp_eq_u32 s3, 3
s_cbranch_scc1 {lw3}
s_sub_u32 s66, s3, 1
s_lshl_b32 s67, s2, 1
s_add_u32 s67, s67, s66
s_lshl_b32 s67, s67, 12
s_load_dword s76, s[16:17], s67
s_mul_i32 s66, s66, 8320
s_add_u32 m0, s66, {L_KA}
s_add_u32 s77, s66, {L_KA + 4160 - 4}
v_mov_b32 v13, s77""")
for j in range(4):
    A(f"s_nop 0\nbuffer_load_dwordx4 v10, s[48:51], s67 offen lds\ns_add_u32 m0, m0, 1024\ns_add_u32 s67, s67, 1024")
A(f"s_add_u32 m0, m0, {4160-4096}\ns_sub_u32 s67, s67, {4096-2}")
for j in range(4):
    A(f"s_nop 0\nbuffer_load_dwordx4 v10, s[48:51], s67 offen lds\ns_add_u32 m0, m0, 1024\ns_add_u32 s67, s67, 1024")
A(f"""s_waitcnt lgkmcnt(0)
s_lshl_b32 s76, s76, 16
v_mov_b32 v12, s76
ds_write_b32 v13, v12
s_sub_u32 s66, s3, 1
s_lshl_b32 s66, s66, 5
s_mov_b32 s69, 8
s_branch {lw1dma}
{lw3}:
s_mov_b32 s66, 64
s_mov_b32 s69, 12
{lw1dma}:
s_mov_b32 s67, s66
s_lshl_b32 s66, s66, 10
s_add_u32 m0, s66, {L_W1}""")
lp = A.label("w1l")
A(f"""{lp}:
s_cmp_ge_u32 s67, 112
s_cselect_b32 s66, 112, 0
s_sub_u32 s67, s67, s66
s_mul_i32 s66, s67, 14336""")
for j in range(4):
    if E("NOW1", 0): continue
    A(f"buffer_load_dwordx4 v11, s[44:47], s66 offen lds\ns_add_u32 m0, m0, 1024\ns_add_u32 s66, s66, 14336")
if W1THR: A(f"s_waitcnt vmcnt({W1THR})")
A(f"""s_add_u32 s67, s67, 4
s_sub_u32 s69, s69, 1
s_cmp_lg_u32 s69, 0
s_cbranch_scc1 {lp}
s_branch {laddr}""")
lio = A.label("initok")
A(f"""{lw0}:
v_cmp_ne_u32 vcc, 1, v249
s_cbranch_vccz {lio}""")
emit_poll("v248", 1, base="s[32:33]")
A(f"{lio}:")
A(f"""s_lshl_b32 s66, s42, 7
s_add_u32 s67, s36, {CL_AUX}
s_lshl_b32 s67, s67, 7
v_mov_b32 v245, s66
v_mov_b32 v246, s67
v_cmp_eq_u32 vcc, 0, v1
s_mov_b64 s[64:65], exec
s_nop 0
v_cndmask_b32 v245, v246, v245, vcc
v_mov_b32 v246, 1
s_mov_b64 exec, 3
global_atomic_add v245, v246, s[34:35] sc1
s_mov_b64 exec, s[64:65]
v_lshrrev_b32 v10, 5, v1
v_mul_u32_u24 v10, 4608, v10
v_and_b32 v11, 31, v1
v_lshl_add_u32 v10, v11, 4, v10
v_add_u32 v10, {L_UR + 4096}, v10
v_mov_b32 v12, 0
v_mov_b32 v13, 0
v_mov_b32 v14, 0
v_mov_b32 v15, 0
ds_write_b128 v10, v[12:15]
{laddr}:""")
XV, STV = 170, 178
A(f"""s_lshl_b32 s66, s2, 2
s_load_dword s74, s[18:19], s66
v_and_b32 v194, 15, v1
v_lshrrev_b32 v195, 4, v1
v_lshlrev_b32 v196, 4, v194
v_lshl_add_u32 v196, v195, 2, v196
s_lshl_b32 s66, s3, 9
v_add_u32 v196, s66, v196
v_lshlrev_b32 v197, 2, v196
v_mov_b32 v198, v197
s_lshl_b32 s66, s2, 13
v_add_u32 v197, s66, v197
s_lshr_b32 s66, s3, 1
s_and_b32 s67, s3, 1
s_mul_i32 s68, s66, 8320
s_lshl_b32 s69, s67, 8
s_sub_u32 s68, s68, s69
s_add_u32 s68, s68, {L_KA - 32}
v_add_u32 v199, 1, v194
v_lshrrev_b32 v199, 1, v199
v_lshl_add_u32 v199, v195, 2, v199
v_lshlrev_b32 v199, 2, v199
v_and_b32 v200, 1, v194
v_cmp_eq_u32 vcc, 0, v200
v_mov_b32 v201, 4160
v_add_u32 v199, s68, v199
v_cndmask_b32 v201, 0, v201, vcc
v_add_u32 v199, v199, v201
v_add_u32 v200, 1024, v199
v_add_u32 v201, 2048, v199
v_add_u32 v202, 3072, v199
s_mul_i32 s68, s66, 4608
s_sub_u32 s68, s68, s69
s_add_u32 s68, s68, {L_UR + 736}
v_lshlrev_b32 v203, 5, v194
v_sub_u32 v203, s68, v203
v_lshl_add_u32 v203, v195, 4, v203
s_cmp_eq_u32 s67, 0
s_cselect_b32 s68, 64, 0
v_lshl_add_u32 v204, v195, 3, v194
v_add_u32 v204, s68, v204
s_mov_b32 s75, 0xffff""")
for k in range(4):
    A(f"""v_cmp_le_u32 vcc, {15-2*k}, v204
    v_mov_b32 v205, s75
    s_nop 0
    v_cndmask_b32 v{206+k}, 0, v205, vcc
    v_cmp_le_u32 vcc, {14-2*k}, v204
    v_mov_b32 v205, s72
    s_nop 0
    v_cndmask_b32 v205, 0, v205, vcc
    v_or_b32 v{206+k}, v{206+k}, v205""")
A(f"""v_lshlrev_b32 v211, 4, v1
s_lshl_b32 s66, s3, 13
v_add_u32 v212, s66, v211
v_add_u32 v212, {L_X}, v212
s_lshl_b32 s66, s3, 11
v_add_u32 v213, s66, v211
v_add_u32 v213, {L_X}, v213
s_lshl_b32 s66, s3, 10
s_sub_u32 s66, {L_UR + 4088 - 512}, s66
v_lshlrev_b32 v210, 5, v194
v_lshl_add_u32 v210, v195, 3, v210
v_sub_u32 v210, s66, v210
v_and_b32 v214, 7, v1
v_add_u32 v214, {CL_AUX}, v214
v_lshlrev_b32 v214, 7, v214
s_mul_i32 s66, s41, {2*112*1024}
s_mul_i32 s67, s3, {28*1024}
s_add_u32 s81, s66, s67""")
srd(84, 62, F*D*2)
ACC = 138
for j in range(32): A(f"v_mov_b32 v{ACC+j}, 0")
lnw0 = A.label("w1n0")
A(f"s_cmp_lg_u32 s3, 0\ns_cbranch_scc1 {lnw0}")
A(f"s_lshl_b32 s66, s42, 7\nv_mov_b32 v16, s66")
emit_poll("v16", "32")
stamp(3)
A(f"""v_lshlrev_b32 v10, 4, v1
s_lshl_b32 s66, s2, 13
v_add_u32 v10, s66, v10
s_mov_b32 m0, {L_UR}""")
for c in range(2):
    for j in range(4):
        A(f"s_nop 0\nglobal_load_lds_dwordx4 v10, s[52:53] sc1\nv_add_u32 v10, 1024, v10\ns_add_u32 m0, m0, {1024 if j < 3 else 4608-3072}")
A(f"""s_waitcnt vmcnt(0) lgkmcnt(0)
s_branch {ljoin}
{lnw0}:
s_cmp_eq_u32 s3, 3
s_cbranch_scc1 {ljoin}
s_waitcnt vmcnt({0 if E("NOW1", 0) else 32}) lgkmcnt(0)
{ljoin}:
s_barrier""")
stamp(4)
rstamp(33)

AB = [10, 42]; UB = [74, 106]
def conv_loads(s, buf):
    L = []
    for m in range(8):
        L.append(f"ds_read_b128 v[{UB[buf]+4*m}:{UB[buf]+4*m+3}], v203 offset:{64*(59-8*m-s)}")
    for n in range(8):
        base = 199 + (n >> 1)
        o = (n & 1)*128 + 16*(7-s)
        L.append(f"ds_read2_b32 v[{AB[buf]+4*n}:{AB[buf]+4*n+1}], v{base} offset0:{o} offset1:{o+1}")
        L.append(f"ds_read2_b32 v[{AB[buf]+4*n+2}:{AB[buf]+4*n+3}], v{base} offset0:{o+2} offset1:{o+3}")
    return L
def w2f_load(dd, kk):
    L = []
    if kk % 4 == 0:
        L += [f"s_add_u32 s82, {'s41' if E('ROT3',0) else '0'}, {kk>>2}", "s_cmp_ge_u32 s82, 7", "s_cselect_b32 s83, 7, 0", "s_sub_u32 s82, s82, s83", "s_lshl_b32 s82, s82, 12",
              f"s_add_u32 s82, s82, s81"]
        if dd: L += [f"s_add_u32 s82, s82, {112*1024}"]
    a = 4*(dd*28 + kk)
    L += [f"buffer_load_dwordx4 a[{a}:{a+3}], v211, s[84:87], s82 offen offset:{1024*(kk&3)} sc1"]
    return L
for l in conv_loads(0, 0): A(l)
A(f"""global_load_dwordx4 v[{XV}:{XV+3}], v197, s[54:55] sc1
global_load_dwordx4 v[{XV+4}:{XV+7}], v197, s[54:55] offset:1024 sc1
global_load_dword v215, v214, s[34:35] sc1
s_waitcnt lgkmcnt(0)""")
stamp(19)
nw = 0
for s in range(4):
    buf = s & 1
    nxt = conv_loads(s+1, buf ^ 1) if s < 3 else []
    if s == 3:
        for k in range(4): A(f"v_and_b32 v{AB[buf]+k}, v{206+k}, v{AB[buf]+k}")
        A("s_nop 1")
    if s == 1:
        lok = A.label("auxok"); lp = A.label("auxp")
        A(f"""s_cmp_lg_u32 s3, 0
        s_cbranch_scc1 {lok}
        s_waitcnt vmcnt(0)
        v_cmp_ne_u32 vcc, 28, v215
        s_cbranch_vccz {lok}""")
        emit_poll("v214", "28")
        A(f"""{lok}:
        s_barrier
        v_add_u32 v216, 8192, v198
        global_load_dwordx4 v[{STV}:{STV+3}], v198, s[58:59] sc1
        global_load_dwordx4 v[{STV+4}:{STV+7}], v216, s[58:59] sc1
        global_load_dwordx4 v[{STV+8}:{STV+11}], v198, s[58:59] offset:1024 sc1
        global_load_dwordx4 v[{STV+12}:{STV+15}], v216, s[58:59] offset:1024 sc1""")
    pairs = [(m, n) for m in range(8) for n in range(8 - m)]
    for idx, (m, n) in enumerate(pairs):
        j = m + n
        A(f"v_mfma_f32_16x16x32_bf16 v[{ACC+4*j}:{ACC+4*j+3}], v[{AB[buf]+4*n}:{AB[buf]+4*n+3}], v[{UB[buf]+4*m}:{UB[buf]+4*m+3}], v[{ACC+4*j}:{ACC+4*j+3}]")
        if idx < len(nxt): A(nxt[idx])
        if s >= 1 and idx % 4 == 3 and nw < 28 and not E("NOW2A", 0):
            for l in w2f_load(0, nw): A(l)
            nw += 1
    if s < 3: A("s_waitcnt lgkmcnt(0)")
while nw < 28 and not E("NOW2A", 0):
    for l in w2f_load(0, nw): A(l)
    nw += 1
stamp(5)
A("s_barrier")
for j in range(8):
    A(f"ds_write_b128 v212, v[{ACC+4*j}:{ACC+4*j+3}] offset:{1024*j}")
A("s_waitcnt lgkmcnt(0)\ns_barrier")
PB = 10
for jj in range(2):
    for w_ in range(4):
        A(f"ds_read_b128 v[{PB+16*jj+4*w_}:{PB+16*jj+4*w_+3}], v213 offset:{8192*w_+1024*jj}")
for jj in range(2):
    for c in range(2):
        A(f"ds_read_b64 v[{42+4*jj+2*c}:{43+4*jj+2*c}], v210 offset:{(512 if jj == 0 else 0) + 4608*c}")
A(f"""s_and_b32 s75, s74, s72
s_lshl_b32 s74, s74, 16
s_waitcnt vmcnt({0 if E("NOW2A", 0) else 28})""")
P2 = lambda r: f"v[{r}:{r+1}]"
for jj in range(2):
    P = PB + 16*jj
    X = XV + 4*jj; SA = STV + 8*jj; SB = SA + 4
    t = 50
    for c in range(2):
        q = t + 8*c
        for i in range(4):
            A(f"v_lshlrev_b32 v{q+i}, 16, v{X+i}" if c == 0 else f"v_and_b32 v{q+i}, s72, v{X+i}")
        for i in (0, 2):
            A(f"v_pk_fma_f32 {P2(q+4+i)}, {P2(q+i)}, {P2(SA+i)}, {P2(SB+i)}")
    A(f"s_waitcnt lgkmcnt({8 if jj == 0 else 0})")
    if jj == 0: A("s_waitcnt lgkmcnt(2)")
    for i in (0, 2):
        A(f"v_pk_add_f32 {P2(P+i)}, {P2(P+i)}, {P2(P+4+i)}\nv_pk_add_f32 {P2(P+8+i)}, {P2(P+8+i)}, {P2(P+12+i)}")
    for c in range(2):
        U = 42 + 4*jj + 2*c
        Y = P + 8*c
        u = 66 + 4*c
        A(f"v_and_b32 v{u}, s72, v{U+1}\nv_lshlrev_b32 v{u+1}, 16, v{U+1}\nv_and_b32 v{u+2}, s72, v{U}\nv_lshlrev_b32 v{u+3}, 16, v{U}")
        sel = "op_sel:[0,0,0] op_sel_hi:[1,0,1]" if c == 0 else "op_sel:[0,1,0] op_sel_hi:[1,1,1]"
        for i in (0, 2):
            A(f"v_pk_fma_f32 {P2(Y+i)}, {P2(u+i)}, s[74:75], {P2(Y+i)} {sel}")
        q = t + 8*c
        for i in (0, 2):
            A(f"v_pk_fma_f32 {P2(Y+i)}, {P2(q+4+i)}, {P2(Y+i)}, {P2(q+i)}")
    for i in range(4):
        A(f"v_cvt_pk_bf16_f32 v{74+4*jj+i}, v{P+i}, v{P+8+i}")
    A(f"global_store_dwordx4 v197, v[{74+4*jj}:{77+4*jj}], s[56:57] offset:{1024*jj} sc1")
stamp(6)
A("s_waitcnt vmcnt(0)\ns_barrier")
lw = A.label("s2w0")
wave0_only(lw)
A(f"s_add_u32 s66, s36, {CL_S2}")
emit_signal("s66")
A(f"{lw}:")
stamp(7)
rstamp(34)

A(f"""v_lshrrev_b32 v10, 5, v1
v_bfe_u32 v11, v1, 2, 2
v_lshl_add_u32 v10, v10, 3, v11
v_lshlrev_b32 v10, 8, v10
v_bfe_u32 v12, v1, 4, 1
v_bfe_u32 v13, v1, 1, 1
v_lshl_add_u32 v12, v12, 1, v13
v_lshlrev_b32 v12, 4, v12
v_add_u32 v10, v10, v12
v_and_b32 v12, 1, v1
v_lshl_add_u32 v10, v12, 3, v10
s_lshl_b32 s66, s3, 12
v_add_u32 v10, s66, v10
v_lshlrev_b32 v11, 6, v11""")
for ft in range(4):
    A(f"v_xor_b32 v{2+ft}, {64*ft}, v11\nv_add_u32 v{2+ft}, v{2+ft}, v10\nv_add_u32 v{6+ft}, 65536, v{2+ft}")
A(f"""v_lshlrev_b32 v12, 4, v1
v_add_u32 v12, s66, v12
v_add_u32 v13, 65536, v12
s_lshl_b32 s66, s39, 7
s_lshl_b32 s67, s3, 5
s_add_u32 s66, s66, s67
v_and_b32 v14, 31, v1
v_add_u32 v14, s66, v14
v_lshlrev_b32 v14, 1, v14
global_load_ushort v15, v14, s[24:25]""")
CB = 16
def cv_reads(i):
    L = []
    for ft in range(4):
        base, off = (2+ft, 16384*i) if i < 4 else (6+ft, 16384*(i-4))
        r = CB + 16*i + 4*ft
        L += [f"ds_read_b64_tr_b16 v[{r}:{r+1}], v{base} offset:{off}", f"ds_read_b64_tr_b16 v[{r+2}:{r+3}], v{base} offset:{off+1024}"]
    return L
def cv_writes(i):
    base, off = (12, 16384*i) if i < 4 else (13, 16384*(i-4))
    return [f"ds_write_b128 v{base}, v[{CB+16*i+4*ft}:{CB+16*i+4*ft+3}] offset:{off+1024*ft}" for ft in range(4)]
for l in cv_reads(0): A(l)
for i in range(7):
    if i < 6:
        for l in cv_reads(i+1): A(l)
        A("s_waitcnt lgkmcnt(8)")
    else:
        A("s_waitcnt lgkmcnt(0)")
    for l in cv_writes(i): A(l)
    for kk in range(4*i, 4*i+4):
        for l in w2f_load(1, kk): A(l)
A("s_waitcnt lgkmcnt(0)\ns_barrier")
A(f"""s_lshl_b32 s66, s3, 10
v_lshl_add_u32 v6, v1, 4, s66
v_add_u32 v7, 57344, v6""")
for half in range(2):
    base = "v6" if half == 0 else "v7"
    for k in range(14):
        A(f"ds_read_b128 v[{64+56*half+4*k}:{67+56*half+4*k}], {base} offset:{4096*k}")
    if half == 1: pass
for half in range(2):
    for k in range(14):
        idx = 14*half + k
        A(f"s_waitcnt lgkmcnt({min(15, 27-idx)})")
        for r in range(4):
            reg = 64+56*half+4*k+r
            if idx == 0:
                A(f"v_dot2_f32_bf16 v{42+r}, v{reg}, s73, 0")
            else:
                A(f"v_dot2_f32_bf16 v{42+r}, v{reg}, s73, v{42+r}")
A(f"""s_nop 2
v_add_f32 v42, v42, v43
v_add_f32 v44, v44, v45
s_nop 0
v_add_f32 v42, v42, v44
v_mov_b32 v43, v42
s_nop 1
v_permlane32_swap_b32 v42, v43
s_nop 1
v_add_f32 v42, v42, v43
v_cvt_pk_bf16_f32 v43, -v42, -v42
v_and_b32 v44, s72, v43
v_add_f32 v44, v42, v44
v_cvt_pk_bf16_f32 v44, -v44, -v44
s_waitcnt vmcnt(28)
v_perm_b32 v46, v44, v43, s70
v_perm_b32 v47, v15, v43, s70
v_mov_b32 v48, v15
v_mov_b32 v49, 0
v_cmp_gt_u32 vcc, 32, v1
v_lshlrev_b32 v50, 4, v1
s_lshl_b32 s66, s3, 10
s_add_u32 s66, s66, {L_AUG}
v_cndmask_b32 v46, 0, v46, vcc
v_cndmask_b32 v47, 0, v47, vcc
v_cndmask_b32 v48, 0, v48, vcc
v_add_u32 v50, s66, v50
ds_write_b128 v50, v[46:49]
v_lshrrev_b32 v10, 5, v1
v_lshlrev_b32 v2, 13, v10
v_and_b32 v11, 31, v1
v_lshl_add_u32 v2, v11, 4, v2
s_lshl_b32 s66, s38, 9
s_lshl_b32 s67, s3, 15
s_add_u32 s66, s66, s67
v_add_u32 v2, s66, v2
v_add_u32 v3, 15360, v2
v_lshlrev_b32 v4, 11, v10
v_lshl_add_u32 v4, v11, 2, v4
s_lshl_b32 s66, s3, 7
s_add_u32 s66, s66, {L_X}
v_add_u32 v4, s66, v4""")
srd(48, 56, S*D*2)
A(f"""v_lshlrev_b32 v6, 4, v1
v_add_u32 v7, 57344, v6
v_add_u32 v5, {L_AUG}, v6
s_mov_b32 s77, {'s39' if not E('NOROT2',0) else '0'}
s_lshl_b32 s78, s3, 11
s_add_u32 s78, s78, {L_X}
s_waitcnt lgkmcnt(0)""")
stamp(8)
lw = A.label("s2p")
wave0_only(lw)
A(f"v_and_b32 v16, 7, v1\nv_add_u32 v16, {CL_S2}, v16\nv_lshlrev_b32 v16, 7, v16\nv_mov_b32 v17, 28")
emit_poll("v16", "v17")
A(f"{lw}:\ns_barrier")
stamp(9)

BF = 16
TL = [128, 144, 160, 176]
AF = 192
NSLOT = 6; PDC = 5
def dmaH(c, part=None):
    L = [[f"s_add_u32 m0, s78, {8192*(c % NSLOT)}", f"s_mov_b32 s76, {c << 17}", "buffer_load_dwordx4 v2, s[48:51], s76 offen sc1 lds"],
         ["buffer_load_dwordx4 v3, s[48:51], s76 offen offset:1024 sc1 lds"]]
    for p in ((0, 1) if part is None else (part,)):
        for x in L[p]: A(x)
for c in range(PDC): dmaH(c)
for t in range(4):
    A(f"ds_read_b128 a[{224+4*t}:{227+4*t}], v5 offset:{1024*t}")
def afrag_addr(ks, ft):
    return ("v6", 4096*ks + 1024*ft) if ks < 14 else ("v7", 4096*(ks-14) + 1024*ft)
def ldA(ks, ft):
    b, o = afrag_addr(ks, ft)
    r = AF + 16*(ks & 1) + 4*ft
    A(f"ds_read_b128 v[{r}:{r+3}], {b} offset:{o}")
def M(ks, t):
    b = BF + 4*ks
    r = AF + 16*(ks & 1) + 4*t
    cc = "0" if ks == 0 else f"v[{TL[t]}:{TL[t]+15}]"
    A(f"v_mfma_f32_32x32x16_bf16 v[{TL[t]}:{TL[t]+15}], v[{r}:{r+3}], v[{b}:{b+3}], {cc}")
def rdB(c, ksl):
    so = 32*(c % NSLOT)
    b = BF + 4*(2*c + ksl)
    A(f"ds_read2st64_b32 v[{b}:{b+1}], v4 offset0:{so+16*ksl} offset1:{so+16*ksl+2}")
    A(f"ds_read2st64_b32 v[{b+2}:{b+3}], v4 offset0:{so+16*ksl+4} offset1:{so+16*ksl+6}")
for t in range(4): ldA(0, t)
for c in range(15):
    if c < 14:
        A(f"s_waitcnt vmcnt({2*(min(c+PDC-1, 13) - c)}) lgkmcnt(0)")
        A("s_barrier")
    else:
        A("s_waitcnt lgkmcnt(0)")
    if c in (0, 4, 8, 12): stamp(20 + c//4)
    if c == 0:
        rdB(0, 0); rdB(0, 1); dmaH(PDC)
        continue
    k0, k1, k2 = 2*c-2, 2*c-1, 2*c
    M(k0, 0); ldA(k1, 0); ldA(k1, 1)
    M(k0, 1); ldA(k1, 2); ldA(k1, 3)
    M(k0, 2)
    if c < 14: rdB(c, 0)
    M(k0, 3)
    if c < 14: rdB(c, 1)
    A(f"s_waitcnt lgkmcnt({4 if c < 14 else 0})")
    M(k1, 0)
    if c < 14: ldA(k2, 0); ldA(k2, 1)
    M(k1, 1)
    if c < 14: ldA(k2, 2); ldA(k2, 3)
    M(k1, 2)
    if c + PDC <= 13: dmaH(c + PDC, 0)
    M(k1, 3)
    if c + PDC <= 13: dmaH(c + PDC, 1)
stamp(10)
ST0 = 232
for ks in range(28):
    b = BF + 4*ks
    for r in range(4):
        if E("NODOT", 0): continue
        if ks == 0 and r < 2:
            A(f"v_dot2_f32_bf16 v{ST0+(r&1)}, v{b+r}, s73, 0")
            A(f"v_dot2_f32_bf16 v{ST0+2+(r&1)}, v{b+r}, v{b+r}, 0")
        else:
            A(f"v_dot2_f32_bf16 v{ST0+(r&1)}, v{b+r}, s73, v{ST0+(r&1)}")
            A(f"v_dot2_f32_bf16 v{ST0+2+(r&1)}, v{b+r}, v{b+r}, v{ST0+2+(r&1)}")
A(f"""s_nop 1
v_add_f32 v232, v232, v233
v_add_f32 v234, v234, v235
v_mov_b32 v233, v232
v_mov_b32 v235, v234
v_lshlrev_b32 v9, 4, v1
s_nop 0
v_permlane32_swap_b32 v232, v233
v_permlane32_swap_b32 v234, v235
s_mov_b32 s66, 0x3b124925
s_nop 0
v_add_f32 v232, v232, v233
v_add_f32 v234, v234, v235
v_mul_f32 v232, s66, v232
v_mul_f32 v234, s66, v234
v_fma_f32 v234, -v232, v232, v234
v_add_f32 v234, 0x3727c5ac, v234
v_rsq_f32 v235, v234
v_sqrt_f32 v230, v234
s_mov_b32 s66, 0xc0135761
s_mov_b32 s67, 0xbdd2d3e8
v_mul_f32 v229, s66, v235
v_mul_f32 v228, v235, v235
v_mul_f32 v228, v228, v235
v_mul_f32 v228, s67, v228
v_cvt_pk_bf16_f32 v233, v232, v232
v_and_b32 v231, s72, v233
v_sub_f32 v231, v232, v231
v_cvt_pk_bf16_f32 v236, v230, v230
v_and_b32 v237, s72, v236
v_sub_f32 v237, v230, v237
v_and_b32 v225, s72, v236
v_cvt_pk_bf16_f32 v231, v231, v231
v_and_b32 v231, 0xffff, v231
v_or_b32 v225, v225, v231
v_cvt_pk_bf16_f32 v226, v237, 0
v_mov_b32 v224, v233
v_mov_b32 v227, 0
v_cmp_gt_u32 vcc, 32, v1
s_lshl_b32 s66, s38, 2
s_add_u32 s66, s66, s3
v_cndmask_b32 v224, 0, v224, vcc
v_cndmask_b32 v225, 0, v225, vcc
v_cndmask_b32 v226, 0, v226, vcc
s_mul_i32 s66, s66, 56
s_lshl_b32 s67, s39, 2""")
for t in range(4):
    A(f"v_mfma_f32_32x32x16_bf16 v[{TL[t]}:{TL[t]+15}], a[{224+4*t}:{227+4*t}], v[224:227], v[{TL[t]}:{TL[t]+15}]")
A(f"""s_add_u32 s66, s66, s67
s_lshl_b32 s66, s66, 11
v_lshl_add_u32 v8, v1, 4, s66
v_add_u32 v11, 4096, v8""")
GT = 236
def gelu_pk(tile, grp):
    L = []
    w = [TL[tile] + 8*grp + 2*e for e in range(4)]
    t = [GT + 2*e for e in range(4)]
    P = lambda r: f"v[{r}:{r+1}]"
    L += [f"v_pk_mul_f32 {P(t[e])}, {P(w[e])}, {P(w[e])}" for e in range(4)]
    L += [f"v_pk_fma_f32 {P(t[e])}, {P(t[e])}, v[228:229], v[228:229] op_sel:[0,0,1] op_sel_hi:[1,0,1]" for e in range(4)]
    L += [f"v_pk_mul_f32 {P(t[e])}, {P(t[e])}, {P(w[e])}" for e in range(4)]
    L += [f"v_exp_f32 v{t[e]+k}, v{t[e]+k}" for e in range(4) for k in range(2)]
    L += [f"v_pk_fma_f32 {P(t[e])}, {P(t[e])}, v[230:231], v[230:231] op_sel_hi:[1,0,0]" for e in range(4)]
    L += [f"v_rcp_f32 v{t[e]+k}, v{t[e]+k}" for e in range(4) for k in range(2)]
    L += [f"v_pk_mul_f32 {P(w[e])}, {P(w[e])}, {P(t[e])}" for e in range(4)]
    return L
def cvts(tile):
    o = AF + 8*(tile & 1)
    return [f"v_cvt_pk_bf16_f32 v{o+k}, v{TL[tile]+2*k}, v{TL[tile]+2*k+1}" for k in range(8)]
def h_store(tile):
    o = AF + 8*(tile & 1)
    base, off = ("v8", 2048*tile) if tile < 2 else ("v11", 2048*(tile-2))
    return [f"global_store_dwordx4 {base}, v[{o}:{o+3}], s[60:61] offset:{off} sc1", f"global_store_dwordx4 {base}, v[{o+4}:{o+7}], s[60:61] offset:{off+1024} sc1"]
def w2f_loadB(kk):
    return [l.replace("v211", "v9") for l in w2f_load(1, kk)]
stamp(11)
A(f"""s_lshr_b32 s66, s3, 1
s_and_b32 s67, s3, 1
s_lshl_b32 s68, s40, 1
s_add_u32 s68, s68, s66
s_lshl_b32 s68, s68, 7
s_lshl_b32 s69, s41, 1
s_add_u32 s69, s69, s67
s_lshl_b32 s76, s69, 17
s_add_u32 s68, s68, s76
v_lshrrev_b32 v12, 5, v1
v_lshlrev_b32 v13, 14, v12
v_and_b32 v14, 31, v1
v_lshl_add_u32 v13, v14, 2, v13
v_add_u32 v13, s68, v13""")
for j in range(4):
    A(f"buffer_load_dword v{16+2*j}, v13, s[48:51], 0 offen sc1")
    A(f"v_add_u32 v14, 8192, v13")
    A(f"buffer_load_dword v{17+2*j}, v14, s[48:51], 0 offen sc1")
    if j < 3: A("v_add_u32 v13, 32768, v13")
A(f"""s_lshl_b32 s69, s69, 6
v_lshl_add_u32 v12, v12, 3, s69""")
for j in range(4):
    A(f"global_load_dwordx2 v[{24+2*j}:{25+2*j}], v12, s[28:29] offset:{16*j}")
A("s_nop 3")
for t in range(4):
    for grp in range(2):
        for x in gelu_pk(t, grp): A(x)
    for x in cvts(t) + h_store(t): A(x)
stamp(12)
A("s_waitcnt vmcnt(0)\ns_barrier")
lw = A.label("s3w0")
wave0_only(lw)
A(f"s_add_u32 s66, s38, {CL_S3}")
emit_signal("s66")
A(f"{lw}:")
stamp(13)
rstamp(36)

ACC3 = 32; RING = 96; NS = 20
A(f"""s_lshl_b32 s66, s40, 1
s_mul_i32 s66, s66, {112*1024}
s_mul_i32 s67, s3, {28*1024}
s_add_u32 s81, s66, s67
v_lshlrev_b32 v2, 4, v1
v_add_u32 v3, {112*1024}, v2""")
srd(44, 60, S*F*2)
lw = A.label("s3p")
wave0_only(lw)
A(f"s_add_u32 s66, s38, {CL_S3}\ns_lshl_b32 s66, s66, 7\nv_mov_b32 v10, s66")
emit_poll("v10", "14")
A(f"{lw}:\ns_barrier")
stamp(14)
rstamp(37)
def ldH(kk):
    slot = kk % NS
    if kk % 4 == 0:
        A(f"s_add_u32 s82, {'s41' if E('ROT3',0) else '0'}, {kk>>2}\ns_cmp_ge_u32 s82, 7\ns_cselect_b32 s83, 7, 0\ns_sub_u32 s82, s82, s83\ns_lshl_b32 s82, s82, 12\ns_add_u32 s82, s82, s81")
    for tj in range(2):
        r = RING + 8*slot + 4*tj
        if E("NOLD3", 0): continue
        A(f"buffer_load_dwordx4 v[{r}:{r+3}], v{2+tj}, s[44:47], s82 offen offset:{1024*(kk&3)} {'' if E('NOSC3',0) else 'sc1'}")
for kk in range(PD3): ldH(kk)
for kk in range(28):
    A(f"s_waitcnt vmcnt({2*(min(kk+PD3-1, 27) - kk)})")
    slot = kk % NS
    for tj in range(2):
        for dd in range(2):
            T_ = ACC3 + 16*(2*tj + dd)
            a = 4*(dd*28 + kk)
            r = RING + 8*slot + 4*tj
            c = "0" if kk == 0 else f"v[{T_}:{T_+15}]"
            if E("NOMF3", 0): continue
            A(f"v_mfma_f32_32x32x16_bf16 v[{T_}:{T_+15}], a[{a}:{a+3}], v[{r}:{r+3}], {c}")
    if kk + PD3 < 28: ldH(kk + PD3)
stamp(15)
A(f"""v_lshlrev_b32 v4, 4, v1
s_lshl_b32 s66, s3, 14
v_add_u32 v5, s66, v4
s_lshl_b32 s66, s3, 12
v_add_u32 v4, s66, v4
s_lshr_b32 s66, s3, 1
s_and_b32 s67, s3, 1
s_lshl_b32 s68, s40, 1
s_add_u32 s68, s68, s66
s_lshl_b32 s68, s68, 5
v_and_b32 v6, 31, v1
v_add_u32 v6, s68, v6
v_mul_u32_u24 v6, 896, v6
s_lshl_b32 s69, s41, 1
s_add_u32 s69, s69, s67
s_lshl_b32 s69, s69, 6
v_lshrrev_b32 v7, 5, v1
v_lshl_add_u32 v6, v7, 4, v6
v_add_u32 v6, s69, v6""")
for T_ in range(4):
    for q in range(4):
        r = ACC3 + 16*T_ + 4*q
        A(f"ds_write_b128 v5, v[{r}:{r+3}] offset:{4096*T_ + 1024*q}")
for j in range(4):
    for c in range(2):
        k = 4*j + 2*c
        A(f"""v_lshlrev_b32 v{160+k}, 16, v{16+2*j+c}
        v_and_b32 v{161+k}, s72, v{16+2*j+c}
        v_lshlrev_b32 v{176+k}, 16, v{24+2*j+c}
        v_and_b32 v{177+k}, s72, v{24+2*j+c}""")
for k in range(0, 16, 2):
    A(f"v_pk_add_f32 {P2(160+k)}, {P2(160+k)}, {P2(176+k)}")
A("s_waitcnt lgkmcnt(0)\ns_barrier")
RB = 96
for w_ in range(4):
    for q in range(4):
        r = RB + 16*w_ + 4*q
        A(f"ds_read_b128 v[{r}:{r+3}], v4 offset:{16384*w_ + 1024*q}")
A("s_waitcnt lgkmcnt(8)")
for k in range(0, 16, 2): A(f"v_pk_add_f32 {P2(RB+k)}, {P2(RB+k)}, {P2(RB+16+k)}")
for k in range(0, 16, 2): A(f"v_pk_add_f32 {P2(RB+k)}, {P2(RB+k)}, {P2(160+k)}")
A("s_waitcnt lgkmcnt(0)")
for k in range(0, 16, 2): A(f"v_pk_add_f32 {P2(RB+32+k)}, {P2(RB+32+k)}, {P2(RB+48+k)}")
for k in range(0, 16, 2): A(f"v_pk_add_f32 {P2(RB+k)}, {P2(RB+k)}, {P2(RB+32+k)}")
for k in range(8): A(f"v_cvt_pk_bf16_f32 v{192+k}, v{RB+2*k}, v{RB+2*k+1}")
A("""s_nop 1
v_permlane32_swap_b32 v192, v194
v_permlane32_swap_b32 v193, v195
v_permlane32_swap_b32 v196, v198
v_permlane32_swap_b32 v197, v199
s_nop 1
global_store_dwordx4 v6, v[192:195], s[30:31]
global_store_dwordx4 v6, v[196:199], s[30:31] offset:32""")
stamp(16)
rstamp(38)
A("s_branch L_END")

A(f"""L_INIT:
s_waitcnt lgkmcnt(0)
v_mov_b32 v4, 0
v_mov_b32 v5, 0
v_mov_b32 v6, 0
v_mov_b32 v7, 0
v_lshlrev_b32 v2, 4, v0
global_store_dwordx4 v2, v[4:7], s[34:35] sc1
v_add_u32 v3, 4096, v2
global_store_dwordx4 v3, v[4:7], s[34:35] sc1
s_waitcnt vmcnt(0)
s_barrier
s_cmp_lg_u32 s3, 0
s_cbranch_scc1 L_END
v_mov_b32 v2, 0
v_mov_b32 v3, 1
s_mov_b64 exec, 1
global_store_dword v2, v3, s[32:33] sc1
L_END:
s_endpgm
L_CODE_END:""")

errs = check_hazards(A.lines)
for e in errs: print("HAZARD:", e, file=sys.stderr)
hdr = open(f"cdna_kernels/{NAME}.s.ref").read().split(".amdgcn_target")[0]
hdr = "\n".join(l for l in hdr.splitlines() if not l.startswith("; @launch"))
out = [hdr.rstrip(), f"; @launch grid=({NWG},1,1) block=(256,1,1) lds={LDS_BYTES}",
 '.amdgcn_target "amdgcn-amd-amdhsa--gfx950"', ".text", f".globl {KN}", ".p2align 8", f".type {KN},@function", f"{KN}:",
 A.text(), '.section .rodata,"a"', ".p2align 6", f".amdhsa_kernel {KN}",
 "  .amdhsa_next_free_vgpr 512", "  .amdhsa_next_free_sgpr 100", "  .amdhsa_accum_offset 256", "  .amdhsa_group_segment_fixed_size 0",
 "  .amdhsa_kernarg_size 112", "  .amdhsa_user_sgpr_count 2", "  .amdhsa_user_sgpr_kernarg_segment_ptr 1", "  .amdhsa_system_sgpr_workgroup_id_x 1",
 "  .amdhsa_float_denorm_mode_32 3", ".end_amdhsa_kernel", ""]
dst = os.environ.get("OUT", f"cdna_kernels/{NAME}.s")
open(dst, "w").write("\n".join(out))
print("wrote", dst, "instructions:", sum(1 for l in A.lines if not l.endswith(':')), "hazards:", len(errs))
```

```python
import sys, os
sys.path.insert(0, os.path.dirname(os.path.abspath(__file__)))
from asmlib import *

NAME = "sequential_preLN__ssm_conv_h3__dense_activation_gelu__prompt"
E = lambda k, d: int(os.environ.get(k, str(d)))
STAMPS = E("STAMPS", 0)
PD2 = E("PD2", 11)
PD3 = E("PD3", 6)
W1THR = E("W1THR", 0)
NMAIN = 224
NWG = NMAIN + 1
S, D, F = 2048, 448, 1792
WS_STAMP = 0x80000
WS_UR = 0x100000
WS_X2 = 0x300000
WS_H2 = 0x500000
WS_ST = 0x700000
WS_W2F = 0x800000
WS_HF = 0xA00000
CL_S1 = 0; CL_AUX = 8; CL_S2 = 16; CL_S3 = 32
L_W1 = 0
L_X = 0x1C000
L_UT = L_X + 0x0000
L_XT = L_X + 0x2000
L_KA = L_X + 0x4000 + 64
L_UR = L_X + 0x8100
L_AUG = L_X + 0xA500
LDS_BYTES = 163840
SPIN = 2000000
KN = NAME + "_kernel"

A = Asm()

def stamp(i, wave=0):
    if not STAMPS: return
    l = A.label("st")
    A(f"""s_cmp_lg_u32 s3, {wave}
    s_cbranch_scc1 {l}
    s_memtime s[92:93]
    s_waitcnt lgkmcnt(0)
    s_lshl_b32 s94, s2, 8
    s_add_u32 s94, s94, {WS_STAMP + 4*i}
    v_mov_b32 v250, s94
    v_mov_b32 v251, s92
    s_mov_b64 s[90:91], exec
    s_mov_b64 exec, 1
    global_store_dword v250, v251, s[34:35]
    s_mov_b64 exec, s[90:91]
    {l}:""")

def rstamp(i, xcc=False):
    if not STAMPS: return
    l = A.label("rt")
    A(f"""s_cmp_lg_u32 s3, 0
    s_cbranch_scc1 {l}
    {"s_getreg_b32 s92, hwreg(HW_REG_XCC_ID)" if xcc else "s_memrealtime s[92:93]"}
    s_waitcnt lgkmcnt(0)
    s_lshl_b32 s94, s2, 8
    s_add_u32 s94, s94, {WS_STAMP + 4*i}
    v_mov_b32 v250, s94
    v_mov_b32 v251, s92
    s_mov_b64 s[90:91], exec
    s_mov_b64 exec, 1
    global_store_dword v250, v251, s[34:35]
    s_mov_b64 exec, s[90:91]
    {l}:""")

def wave0_only(label):
    A(f"s_cmp_lg_u32 s3, 0\ns_cbranch_scc1 {label}")

def emit_signal(line_sreg):
    A(f"""s_lshl_b32 s67, {line_sreg}, 7
    v_mov_b32 v245, s67
    v_mov_b32 v246, 1
    s_mov_b64 s[64:65], exec
    s_mov_b64 exec, 1
    global_atomic_add v245, v246, s[34:35] sc1
    s_mov_b64 exec, s[64:65]""")

def emit_poll(addr_v, target, base="s[34:35]", tmp="v247"):
    lp = A.label("poll"); done = A.label("polld")
    A(f"""s_mov_b32 s68, {SPIN}
    {lp}:
    global_load_dword {tmp}, {addr_v}, {base} sc1
    s_waitcnt vmcnt(0)
    v_cmp_ne_u32 vcc, {target}, {tmp}
    s_cbranch_vccz {done}
    s_sub_u32 s68, s68, 1
    s_cmp_lg_u32 s68, 0
    s_cbranch_scc1 {lp}
    {done}:""")

def ws_base(sreg, off):
    A(f"s_add_u32 s{sreg}, s34, {off}\ns_addc_u32 s{sreg+1}, s35, 0")

def srd(base, ptr, size):
    A(f"s_mov_b32 s{base}, s{ptr}\ns_mov_b32 s{base+1}, s{ptr+1}\ns_mov_b32 s{base+2}, {size}\ns_mov_b32 s{base+3}, 0x20000")

if STAMPS: A("s_memrealtime s[78:79]")
A(f"""s_cmp_gt_u32 s2, {NMAIN}
s_cbranch_scc1 L_END
s_load_dwordx16 s[8:23], s[0:1], 0
s_load_dwordx8 s[24:31], s[0:1], 64
s_load_dwordx4 s[32:35], s[0:1], 96
s_getpc_b64 s[88:89]
L_PC:
v_and_b32 v1, 63, v0
v_lshrrev_b32 v2, 6, v0
s_lshr_b32 s42, s2, 5
v_readfirstlane_b32 s3, v2
s_and_b32 s43, s2, 31
s_mov_b32 s70, 0x05040100
s_mov_b32 s71, 0x07060302
s_mov_b32 s72, 0xffff0000
s_mov_b32 s73, 0x3f803f80
s_cmp_eq_u32 s2, {NMAIN}
s_cbranch_scc1 L_INIT""")

A(f"""v_lshrrev_b32 v2, 3, v0
v_and_b32 v3, 7, v0
s_mul_i32 s66, s43, {64*896}
s_lshl_b32 s67, s42, 7
s_add_u32 s66, s66, s67
v_mul_u32_u24 v4, 1792, v2
v_lshl_add_u32 v4, v3, 4, v4
v_add_u32 v7, s66, v4
v_subrev_u32 v92, 2688, v7
v_subrev_u32 v93, 1792, v7
v_subrev_u32 v94, 896, v7
s_lshl_b32 s67, s42, 9
v_lshl_add_u32 v8, v3, 6, s67""")
A(f"""s_lshr_b32 s66, s2, 1
s_mul_i32 s66, s66, {16*896}
s_and_b32 s67, s2, 1
s_mul_i32 s67, s67, 448
s_add_u32 s66, s66, s67
s_mov_b32 s67, 2341
v_mul_lo_u32 v110, v0, s67
v_lshrrev_b32 v110, 16, v110
v_mul_u32_u24 v111, 28, v110
v_sub_u32 v111, v0, v111
v_mul_u32_u24 v110, 896, v110
v_lshl_add_u32 v110, v111, 4, v110
v_add_u32 v110, s66, v110
v_add_u32 v112, 256, v0
v_mul_lo_u32 v113, v112, s67
v_lshrrev_b32 v113, 16, v113
v_mul_u32_u24 v111, 28, v113
v_sub_u32 v111, v112, v111
v_mul_u32_u24 v113, 896, v113
v_lshl_add_u32 v113, v111, 4, v113
v_add_u32 v113, s66, v113
s_lshr_b32 s37, s2, 3
s_lshl_b32 s66, s37, 10
s_min_u32 s66, s66, L_CODE_END-{KN}-1024
v_lshl_add_u32 v114, v1, 4, s66
s_lshl_b32 s69, s3, 10
s_add_u32 m0, s69, {L_W1}
s_waitcnt lgkmcnt(0)""")
if STAMPS: A("s_memrealtime s[96:97]")
srd(44, 10, S*D*2)
A(f"""buffer_load_dwordx4 v[10:13], v92, s[44:47], 0 offen
buffer_load_dwordx4 v[14:17], v93, s[44:47], 0 offen
buffer_load_dwordx4 v[18:21], v94, s[44:47], 0 offen
buffer_load_dwordx4 v[22:25], v7, s[44:47], 0 offen
buffer_load_dwordx4 v[26:29], v7, s[44:47], 0 offen offset:896
global_load_dwordx4 v[46:49], v8, s[14:15]
global_load_dwordx4 v[50:53], v8, s[14:15] offset:16
global_load_dwordx4 v[54:57], v8, s[14:15] offset:32
global_load_dwordx4 v[58:61], v8, s[14:15] offset:48
global_load_dwordx4 v[30:33], v7, s[12:13]
global_load_dwordx4 v[34:37], v7, s[12:13] offset:896
global_load_dwordx4 v[38:41], v7, s[8:9]
global_load_dwordx4 v[42:45], v7, s[8:9] offset:896
global_load_lds_dwordx4 v110, s[26:27]""")
l3 = A.label("x3"); lx = A.label("xd")
A(f"""s_cmp_eq_u32 s3, 3
s_cbranch_scc1 {l3}
s_add_u32 m0, m0, 4096
s_nop 0
global_load_lds_dwordx4 v113, s[26:27]
s_branch {lx}
{l3}:
s_sub_u32 s88, s88, L_PC-{KN}
s_subb_u32 s89, s89, 0
global_load_dwordx4 v[116:119], v114, s[88:89]
{lx}:""")
lns = A.label("nost")
A(f"""s_cmp_lt_u32 s42, 4
s_cselect_b32 s76, 1, 0
s_cmp_ge_u32 s3, 2
s_cselect_b32 s76, s76, 0
s_cmp_eq_u32 s76, 0
s_cbranch_scc1 {lns}
s_lshl_b32 s66, s43, 6
s_lshl_b32 s67, s42, 4
s_add_u32 s66, s66, s67
s_sub_u32 s67, s3, 2
s_lshl_b32 s67, s67, 3
s_add_u32 s66, s66, s67
v_lshrrev_b32 v120, 3, v1
v_add_u32 v120, s66, v120
v_mul_u32_u24 v121, 896, v120
v_and_b32 v122, 7, v1
v_lshl_add_u32 v121, v122, 4, v121""")
for i in range(7):
    A(f"global_load_dwordx4 v[{64+4*i}:{67+4*i}], v121, s[8:9] offset:{128*i}")
A(f"{lns}:")
ws_base(52, WS_UR); ws_base(54, WS_X2); ws_base(56, WS_H2); ws_base(58, WS_ST); ws_base(60, WS_HF); ws_base(62, WS_W2F)
stamp(0)
rstamp(30)
rstamp(31, True)
if STAMPS:
    for (i, r) in ((28, 78), (29, 96)):
        l = A.label("rt0")
        A(f"""s_cmp_lg_u32 s3, 0
        s_cbranch_scc1 {l}
        s_lshl_b32 s94, s2, 8
        s_add_u32 s94, s94, {WS_STAMP + 4*i}
        v_mov_b32 v250, s94
        v_mov_b32 v251, s{r}
        s_mov_b64 s[90:91], exec
        s_mov_b64 exec, 1
        global_store_dword v250, v251, s[34:35]
        s_mov_b64 exec, s[90:91]
        {l}:""")
A(f"""v_sub_u32 v96, 31, v2
v_lshrrev_b32 v97, 2, v96
v_xor_b32 v97, v97, v3
v_lshlrev_b32 v97, 4, v97
v_and_b32 v96, 3, v96
v_lshl_add_u32 v97, v96, 2, v97
v_lshl_add_u32 v95, v3, 10, v97
v_add_u32 v95, {L_UT}, v95
v_lshrrev_b32 v96, 1, v2
v_xor_b32 v96, v96, v3
v_lshlrev_b32 v96, 4, v96
v_and_b32 v97, 1, v2
v_lshl_add_u32 v96, v97, 3, v96
v_lshl_add_u32 v96, v3, 10, v96
v_add_u32 v96, {L_XT}, v96
v_lshrrev_b32 v98, 6, v0
v_xor_b32 v99, v3, v98
v_lshlrev_b32 v99, 4, v99
v_lshl_add_u32 v100, v2, 7, v99
v_add_u32 v100, {L_UT}, v100
v_xor_b32 v101, 64, v100
v_add_u32 v101, 4096, v101
s_lshl_b32 s66, s42, 18
s_sub_u32 s67, 31, s43
s_lshl_b32 s67, s67, 7
s_add_u32 s66, s66, s67
v_lshlrev_b32 v102, 12, v2
v_lshl_add_u32 v102, v3, 4, v102
v_add_u32 v102, s66, v102
v_add_u32 v103, {32*4096}, v102
v_and_b32 v104, 15, v0
v_lshrrev_b32 v105, 4, v0
v_xor_b32 v106, v104, v98
v_lshlrev_b32 v106, 4, v106
v_lshl_add_u32 v106, v105, 8, v106
v_add_u32 v106, {L_XT}, v106
v_xor_b32 v107, 64, v106
v_add_u32 v107, 4096, v107
s_lshl_b32 s66, s42, 18
s_lshl_b32 s67, s43, 8
s_add_u32 s66, s66, s67
v_lshlrev_b32 v108, 13, v105
v_lshl_add_u32 v108, v104, 4, v108
v_add_u32 v108, s66, v108
v_add_u32 v109, {16*8192}, v108""")
A(f"""v_lshrrev_b32 v123, 5, v1
v_bfe_u32 v124, v1, 2, 2
v_lshl_add_u32 v123, v123, 2, v124
v_mul_u32_u24 v123, 448, v123
v_bfe_u32 v124, v1, 4, 1
v_lshl_add_u32 v123, v124, 5, v123
v_and_b32 v124, 3, v1
v_lshl_add_u32 v123, v124, 3, v123
s_lshl_b32 s66, s3, 6
s_add_u32 s66, s66, {L_W1}
v_add_u32 v123, s66, v123
s_and_b32 s66, s2, 1
s_mul_i32 s66, s66, 7
s_add_u32 s66, s66, s3
s_mul_i32 s66, s66, 112
s_lshr_b32 s67, s2, 1
s_add_u32 s66, s66, s67
s_lshl_b32 s66, s66, 10
v_lshl_add_u32 v124, v1, 4, s66""")
lw1 = A.label("wa"); lw2 = A.label("wb")
A(f"""s_cmp_eq_u32 s76, 0
s_cbranch_scc1 {lw1}
s_waitcnt vmcnt(11)
s_branch {lw2}
{lw1}:
s_waitcnt vmcnt(4)
{lw2}:""")
K = lambda j, p: f"v{10 + 4*j + p}"
T = 126
for p in range(4):
    seq = []
    for half in range(2):
        i = 2*p + half
        sel = "s70" if half == 0 else "s71"
        t = T + 8*half
        seq.append([
            f"v_perm_b32 v{t}, {K(2,p)}, {K(3,p)}, {sel}",
            f"v_perm_b32 v{t+1}, {K(0,p)}, {K(1,p)}, {sel}",
            f"v_perm_b32 v{t+2}, {K(3,p)}, {K(4,p)}, {sel}",
            f"v_perm_b32 v{t+3}, {K(1,p)}, {K(2,p)}, {sel}",
            f"v_dot2_f32_bf16 v{t+4}, v{t}, v{46+2*i}, 0",
            f"v_dot2_f32_bf16 v{t+5}, v{t+2}, v{46+2*i}, 0",
            f"v_dot2_f32_bf16 v{t+4}, v{t+1}, v{47+2*i}, v{t+4}",
            f"v_dot2_f32_bf16 v{t+5}, v{t+3}, v{47+2*i}, v{t+5}",
            (f"v_lshlrev_b32 v{t+6}, 16, v{30+p}" if half == 0 else f"v_and_b32 v{t+6}, s72, v{30+p}"),
            (f"v_lshlrev_b32 v{t+7}, 16, v{34+p}" if half == 0 else f"v_and_b32 v{t+7}, s72, v{34+p}"),
            f"v_mul_f32 v{t+4}, v{t+4}, v{t+6}",
            f"v_mul_f32 v{t+5}, v{t+5}, v{t+7}",
            f"v_cvt_pk_bf16_f32 v{t+4}, v{t+5}, v{t+4}",
            f"ds_write_b32 v95, v{t+4} offset:{128*i}",
        ])
    for k in range(len(seq[0])):
        A(seq[0][k]); A(seq[1][k])
A("s_waitcnt vmcnt(0)")
for p in range(4):
    A(f"ds_write2_b32 v96, v{38+p}, v{42+p} offset0:{64*p} offset1:{64*p+1}")
A("""v_mov_b32 v248, 0
global_load_dword v249, v248, s[32:33] sc1
s_waitcnt lgkmcnt(0)
s_barrier
ds_read_b128 v[10:13], v100
ds_read_b128 v[14:17], v101
ds_read_b128 v[18:21], v106
ds_read_b128 v[22:25], v107
ds_read_b64_tr_b16 v[26:27], v123
ds_read_b64_tr_b16 v[28:29], v123 offset:3584
ds_read_b64_tr_b16 v[30:31], v123 offset:256
ds_read_b64_tr_b16 v[32:33], v123 offset:3840
s_waitcnt lgkmcnt(7)
global_store_dwordx4 v102, v[10:13], s[52:53] sc1
s_waitcnt lgkmcnt(6)
global_store_dwordx4 v103, v[14:17], s[52:53] sc1
s_waitcnt lgkmcnt(5)
global_store_dwordx4 v108, v[18:21], s[54:55] sc1
s_waitcnt lgkmcnt(4)
global_store_dwordx4 v109, v[22:25], s[54:55] sc1
s_waitcnt lgkmcnt(2)
global_store_dwordx4 v124, v[26:29], s[62:63] sc1""")
lsk = A.label("w2s")
A(f"""s_cmp_eq_u32 s3, 3
s_cbranch_scc1 {lsk}
v_add_u32 v124, {4*112*1024}, v124
s_waitcnt lgkmcnt(0)
global_store_dwordx4 v124, v[30:33], s[62:63] sc1
{lsk}:""")
lns = A.label("nost2")
A(f"s_cmp_eq_u32 s76, 0\ns_cbranch_scc1 {lns}")
b = 64
A(f"v_dot2_f32_bf16 v10, v{b}, s73, 0\nv_dot2_f32_bf16 v11, v{b}, v{b}, 0\nv_dot2_f32_bf16 v12, v{b+1}, s73, 0\nv_dot2_f32_bf16 v13, v{b+1}, v{b+1}, 0")
for i in range(2, 28, 2):
    A(f"v_dot2_f32_bf16 v10, v{b+i}, s73, v10\nv_dot2_f32_bf16 v11, v{b+i}, v{b+i}, v11\nv_dot2_f32_bf16 v12, v{b+i+1}, s73, v12\nv_dot2_f32_bf16 v13, v{b+i+1}, v{b+i+1}, v13")
A("""s_nop 2
v_add_f32 v10, v10, v12
v_add_f32 v11, v11, v13
s_nop 1
v_add_f32_dpp v10, v10, v10 quad_perm:[1,0,3,2] row_mask:0xf bank_mask:0xf
v_add_f32_dpp v11, v11, v11 quad_perm:[1,0,3,2] row_mask:0xf bank_mask:0xf
s_nop 1
v_add_f32_dpp v10, v10, v10 quad_perm:[2,3,0,1] row_mask:0xf bank_mask:0xf
v_add_f32_dpp v11, v11, v11 quad_perm:[2,3,0,1] row_mask:0xf bank_mask:0xf
s_nop 1
v_add_f32_dpp v10, v10, v10 row_half_mirror row_mask:0xf bank_mask:0xf
v_add_f32_dpp v11, v11, v11 row_half_mirror row_mask:0xf bank_mask:0xf
s_mov_b32 s66, 0x3b124925
v_mul_f32 v10, s66, v10
v_mul_f32 v11, s66, v11
v_fma_f32 v11, -v10, v10, v11
v_add_f32 v11, 0x3727c5ac, v11
v_rsq_f32 v11, v11
v_lshlrev_b32 v120, 2, v120
v_cmp_eq_u32 vcc, 0, v122
v_mul_f32 v12, -v10, v11
v_add_u32 v121, 8192, v120
s_and_saveexec_b64 s[64:65], vcc
global_store_dword v120, v11, s[58:59] sc1
global_store_dword v121, v12, s[58:59] sc1
s_mov_b64 exec, s[64:65]""")
A(f"{lns}:")
stamp(1)
A("s_waitcnt vmcnt(0)\ns_barrier")
stamp(2)
rstamp(32)

A(f"""s_and_b32 s36, s2, 7
s_lshl_b32 s38, s36, 1
s_cmp_ge_u32 s37, 14
s_addc_u32 s38, s38, 0
s_cmp_ge_u32 s37, 14
s_cselect_b32 s66, 14, 0
s_sub_u32 s39, s37, s66
s_mul_i32 s66, s37, 37
s_lshr_b32 s66, s66, 8
s_lshl_b32 s40, s36, 2
s_add_u32 s40, s40, s66
s_mul_i32 s66, s66, 7
s_sub_u32 s41, s37, s66""")
lw0 = A.label("w1w0"); lw3 = A.label("w1w3"); ljoin = A.label("w1join"); lw1dma = A.label("w1dma"); laddr = A.label("w1addr")
A(f"s_cmp_eq_u32 s3, 0\ns_cbranch_scc1 {lw0}")
srd(48, 16, D*S*2); srd(44, 22, D*F*2)
A(f"""v_lshlrev_b32 v10, 4, v1
v_lshrrev_b32 v11, 4, v1
v_lshlrev_b32 v12, 2, v11
v_and_b32 v13, 15, v1
v_xor_b32 v12, v12, v13
v_lshlrev_b32 v12, 4, v12
v_mul_u32_u24 v11, 3584, v11
v_add_u32 v11, v11, v12
s_lshl_b32 s66, s39, 8
v_add_u32 v11, s66, v11
s_cmp_eq_u32 s3, 3
s_cbranch_scc1 {lw3}
s_sub_u32 s66, s3, 1
s_lshl_b32 s67, s2, 1
s_add_u32 s67, s67, s66
s_lshl_b32 s67, s67, 12
s_load_dword s76, s[16:17], s67
s_mul_i32 s66, s66, 8320
s_add_u32 m0, s66, {L_KA}
s_add_u32 s77, s66, {L_KA + 4160 - 4}
v_mov_b32 v13, s77""")
for j in range(4):
    A(f"s_nop 0\nbuffer_load_dwordx4 v10, s[48:51], s67 offen lds\ns_add_u32 m0, m0, 1024\ns_add_u32 s67, s67, 1024")
A(f"s_add_u32 m0, m0, {4160-4096}\ns_sub_u32 s67, s67, {4096-2}")
for j in range(4):
    A(f"s_nop 0\nbuffer_load_dwordx4 v10, s[48:51], s67 offen lds\ns_add_u32 m0, m0, 1024\ns_add_u32 s67, s67, 1024")
A(f"""s_waitcnt lgkmcnt(0)
s_lshl_b32 s76, s76, 16
v_mov_b32 v12, s76
ds_write_b32 v13, v12
s_sub_u32 s66, s3, 1
s_lshl_b32 s66, s66, 5
s_mov_b32 s69, 8
s_branch {lw1dma}
{lw3}:
s_mov_b32 s66, 64
s_mov_b32 s69, 12
{lw1dma}:
s_mov_b32 s67, s66
s_lshl_b32 s66, s66, 10
s_add_u32 m0, s66, {L_W1}""")
lp = A.label("w1l")
A(f"""{lp}:
s_cmp_ge_u32 s67, 112
s_cselect_b32 s66, 112, 0
s_sub_u32 s67, s67, s66
s_mul_i32 s66, s67, 14336""")
for j in range(4):
    if E("NOW1", 0): continue
    A(f"buffer_load_dwordx4 v11, s[44:47], s66 offen lds\ns_add_u32 m0, m0, 1024\ns_add_u32 s66, s66, 14336")
if W1THR: A(f"s_waitcnt vmcnt({W1THR})")
A(f"""s_add_u32 s67, s67, 4
s_sub_u32 s69, s69, 1
s_cmp_lg_u32 s69, 0
s_cbranch_scc1 {lp}""")
stamp(24, 3)
if E("FLOODWAIT", 0):
    A("s_waitcnt vmcnt(0)")
    stamp(25, 3)
A(f"s_branch {laddr}")
lio = A.label("initok")
A(f"""{lw0}:
v_cmp_ne_u32 vcc, 1, v249
s_cbranch_vccz {lio}""")
emit_poll("v248", 1, base="s[32:33]")
A(f"{lio}:")
A(f"""s_lshl_b32 s66, s42, 7
s_add_u32 s67, s36, {CL_AUX}
s_lshl_b32 s67, s67, 7
v_mov_b32 v245, s66
v_mov_b32 v246, s67
v_cmp_eq_u32 vcc, 0, v1
s_mov_b64 s[64:65], exec
s_nop 0
v_cndmask_b32 v245, v246, v245, vcc
v_mov_b32 v246, 1
s_mov_b64 exec, 3
global_atomic_add v245, v246, s[34:35] sc1
s_mov_b64 exec, s[64:65]
v_lshrrev_b32 v10, 5, v1
v_mul_u32_u24 v10, 4608, v10
v_and_b32 v11, 31, v1
v_lshl_add_u32 v10, v11, 4, v10
v_add_u32 v10, {L_UR + 4096}, v10
v_mov_b32 v12, 0
v_mov_b32 v13, 0
v_mov_b32 v14, 0
v_mov_b32 v15, 0
ds_write_b128 v10, v[12:15]
{laddr}:""")
XV, STV = 170, 178
A(f"""s_lshl_b32 s66, s2, 2
s_load_dword s74, s[18:19], s66
v_and_b32 v194, 15, v1
v_lshrrev_b32 v195, 4, v1
v_lshlrev_b32 v196, 4, v194
v_lshl_add_u32 v196, v195, 2, v196
s_lshl_b32 s66, s3, 9
v_add_u32 v196, s66, v196
v_lshlrev_b32 v197, 2, v196
v_mov_b32 v198, v197
s_lshl_b32 s66, s2, 13
v_add_u32 v197, s66, v197
s_lshr_b32 s66, s3, 1
s_and_b32 s67, s3, 1
s_mul_i32 s68, s66, 8320
s_lshl_b32 s69, s67, 8
s_sub_u32 s68, s68, s69
s_add_u32 s68, s68, {L_KA - 32}
v_add_u32 v199, 1, v194
v_lshrrev_b32 v199, 1, v199
v_lshl_add_u32 v199, v195, 2, v199
v_lshlrev_b32 v199, 2, v199
v_and_b32 v200, 1, v194
v_cmp_eq_u32 vcc, 0, v200
v_mov_b32 v201, 4160
v_add_u32 v199, s68, v199
v_cndmask_b32 v201, 0, v201, vcc
v_add_u32 v199, v199, v201
v_add_u32 v200, 1024, v199
v_add_u32 v201, 2048, v199
v_add_u32 v202, 3072, v199
s_mul_i32 s68, s66, 4608
s_sub_u32 s68, s68, s69
s_add_u32 s68, s68, {L_UR + 736}
v_lshlrev_b32 v203, 5, v194
v_sub_u32 v203, s68, v203
v_lshl_add_u32 v203, v195, 4, v203
s_cmp_eq_u32 s67, 0
s_cselect_b32 s68, 64, 0
v_lshl_add_u32 v204, v195, 3, v194
v_add_u32 v204, s68, v204
s_mov_b32 s75, 0xffff""")
for k in range(4):
    A(f"""v_cmp_le_u32 vcc, {15-2*k}, v204
    v_mov_b32 v205, s75
    s_nop 0
    v_cndmask_b32 v{206+k}, 0, v205, vcc
    v_cmp_le_u32 vcc, {14-2*k}, v204
    v_mov_b32 v205, s72
    s_nop 0
    v_cndmask_b32 v205, 0, v205, vcc
    v_or_b32 v{206+k}, v{206+k}, v205""")
A(f"""v_lshlrev_b32 v211, 4, v1
s_lshl_b32 s66, s3, 13
v_add_u32 v212, s66, v211
v_add_u32 v212, {L_X}, v212
s_lshl_b32 s66, s3, 11
v_add_u32 v213, s66, v211
v_add_u32 v213, {L_X}, v213
s_lshl_b32 s66, s3, 10
s_sub_u32 s66, {L_UR + 4088 - 512}, s66
v_lshlrev_b32 v210, 5, v194
v_lshl_add_u32 v210, v195, 3, v210
v_sub_u32 v210, s66, v210
v_and_b32 v214, 7, v1
v_add_u32 v214, {CL_AUX}, v214
v_lshlrev_b32 v214, 7, v214
s_mul_i32 s66, s41, {2*112*1024}
s_mul_i32 s67, s3, {28*1024}
s_add_u32 s81, s66, s67""")
srd(84, 62, F*D*2)
ACC = 138
for j in range(32): A(f"v_mov_b32 v{ACC+j}, 0")
lnw0 = A.label("w1n0")
A(f"s_cmp_lg_u32 s3, 0\ns_cbranch_scc1 {lnw0}")
A(f"s_lshl_b32 s66, s42, 7\nv_mov_b32 v16, s66")
emit_poll("v16", "32")
stamp(3)
A(f"""v_lshlrev_b32 v10, 4, v1
s_lshl_b32 s66, s2, 13
v_add_u32 v10, s66, v10
s_mov_b32 m0, {L_UR}""")
for c in range(2):
    for j in range(4):
        A(f"s_nop 0\nglobal_load_lds_dwordx4 v10, s[52:53] sc1\nv_add_u32 v10, 1024, v10\ns_add_u32 m0, m0, {1024 if j < 3 else 4608-3072}")
A(f"""s_waitcnt vmcnt(0) lgkmcnt(0)
s_branch {ljoin}
{lnw0}:
s_cmp_eq_u32 s3, 3
s_cbranch_scc1 {ljoin}
s_waitcnt vmcnt({0 if E("NOW1", 0) else 32}) lgkmcnt(0)
{ljoin}:
s_barrier""")
stamp(4)
rstamp(33)

AB = [10, 42]; UB = [74, 106]
def conv_loads(s, buf):
    L = []
    for m in range(8):
        L.append(f"ds_read_b128 v[{UB[buf]+4*m}:{UB[buf]+4*m+3}], v203 offset:{64*(59-8*m-s)}")
    for n in range(8):
        base = 199 + (n >> 1)
        o = (n & 1)*128 + 16*(7-s)
        L.append(f"ds_read2_b32 v[{AB[buf]+4*n}:{AB[buf]+4*n+1}], v{base} offset0:{o} offset1:{o+1}")
        L.append(f"ds_read2_b32 v[{AB[buf]+4*n+2}:{AB[buf]+4*n+3}], v{base} offset0:{o+2} offset1:{o+3}")
    return L
def w2f_load(dd, kk):
    L = []
    if kk % 4 == 0:
        L += [f"s_add_u32 s82, {'s41' if E('ROT3',0) else '0'}, {kk>>2}", "s_cmp_ge_u32 s82, 7", "s_cselect_b32 s83, 7, 0", "s_sub_u32 s82, s82, s83", "s_lshl_b32 s82, s82, 12",
              f"s_add_u32 s82, s82, s81"]
        if dd: L += [f"s_add_u32 s82, s82, {112*1024}"]
    a = 4*(dd*28 + kk)
    L += [f"buffer_load_dwordx4 a[{a}:{a+3}], v211, s[84:87], s82 offen offset:{1024*(kk&3)} sc1"]
    return L
for l in conv_loads(0, 0): A(l)
A(f"""global_load_dwordx4 v[{XV}:{XV+3}], v197, s[54:55] sc1
global_load_dwordx4 v[{XV+4}:{XV+7}], v197, s[54:55] offset:1024 sc1
global_load_dword v215, v214, s[34:35] sc1
s_waitcnt lgkmcnt(0)""")
stamp(19)
nw = 0
for s in range(4):
    buf = s & 1
    nxt = conv_loads(s+1, buf ^ 1) if s < 3 else []
    if s == 3:
        for k in range(4): A(f"v_and_b32 v{AB[buf]+k}, v{206+k}, v{AB[buf]+k}")
        A("s_nop 1")
    if s == 1:
        lok = A.label("auxok"); lp = A.label("auxp")
        A(f"""s_cmp_lg_u32 s3, 0
        s_cbranch_scc1 {lok}
        s_waitcnt vmcnt(0)
        v_cmp_ne_u32 vcc, 28, v215
        s_cbranch_vccz {lok}""")
        emit_poll("v214", "28")
        A(f"""{lok}:
        s_barrier
        v_add_u32 v216, 8192, v198
        global_load_dwordx4 v[{STV}:{STV+3}], v198, s[58:59] sc1
        global_load_dwordx4 v[{STV+4}:{STV+7}], v216, s[58:59] sc1
        global_load_dwordx4 v[{STV+8}:{STV+11}], v198, s[58:59] offset:1024 sc1
        global_load_dwordx4 v[{STV+12}:{STV+15}], v216, s[58:59] offset:1024 sc1""")
    pairs = [(m, n) for m in range(8) for n in range(8 - m)]
    for idx, (m, n) in enumerate(pairs):
        j = m + n
        A(f"v_mfma_f32_16x16x32_bf16 v[{ACC+4*j}:{ACC+4*j+3}], v[{AB[buf]+4*n}:{AB[buf]+4*n+3}], v[{UB[buf]+4*m}:{UB[buf]+4*m+3}], v[{ACC+4*j}:{ACC+4*j+3}]")
        if idx < len(nxt): A(nxt[idx])
        if s >= 1 and idx % 4 == 3 and nw < 28 and not E("NOW2A", 0):
            for l in w2f_load(0, nw): A(l)
            nw += 1
    if s < 3: A("s_waitcnt lgkmcnt(0)")
while nw < 28 and not E("NOW2A", 0):
    for l in w2f_load(0, nw): A(l)
    nw += 1
stamp(5)
A("s_barrier")
for j in range(8):
    A(f"ds_write_b128 v212, v[{ACC+4*j}:{ACC+4*j+3}] offset:{1024*j}")
A("s_waitcnt lgkmcnt(0)\ns_barrier")
PB = 10
for jj in range(2):
    for w_ in range(4):
        A(f"ds_read_b128 v[{PB+16*jj+4*w_}:{PB+16*jj+4*w_+3}], v213 offset:{8192*w_+1024*jj}")
for jj in range(2):
    for c in range(2):
        A(f"ds_read_b64 v[{42+4*jj+2*c}:{43+4*jj+2*c}], v210 offset:{(512 if jj == 0 else 0) + 4608*c}")
A(f"""s_and_b32 s75, s74, s72
s_lshl_b32 s74, s74, 16
s_waitcnt vmcnt({0 if E("NOW2A", 0) else 28})""")
P2 = lambda r: f"v[{r}:{r+1}]"
for jj in range(2):
    P = PB + 16*jj
    X = XV + 4*jj; SA = STV + 8*jj; SB = SA + 4
    t = 50
    for c in range(2):
        q = t + 8*c
        for i in range(4):
            A(f"v_lshlrev_b32 v{q+i}, 16, v{X+i}" if c == 0 else f"v_and_b32 v{q+i}, s72, v{X+i}")
        for i in (0, 2):
            A(f"v_pk_fma_f32 {P2(q+4+i)}, {P2(q+i)}, {P2(SA+i)}, {P2(SB+i)}")
    A(f"s_waitcnt lgkmcnt({8 if jj == 0 else 0})")
    if jj == 0: A("s_waitcnt lgkmcnt(2)")
    for i in (0, 2):
        A(f"v_pk_add_f32 {P2(P+i)}, {P2(P+i)}, {P2(P+4+i)}\nv_pk_add_f32 {P2(P+8+i)}, {P2(P+8+i)}, {P2(P+12+i)}")
    for c in range(2):
        U = 42 + 4*jj + 2*c
        Y = P + 8*c
        u = 66 + 4*c
        A(f"v_and_b32 v{u}, s72, v{U+1}\nv_lshlrev_b32 v{u+1}, 16, v{U+1}\nv_and_b32 v{u+2}, s72, v{U}\nv_lshlrev_b32 v{u+3}, 16, v{U}")
        sel = "op_sel:[0,0,0] op_sel_hi:[1,0,1]" if c == 0 else "op_sel:[0,1,0] op_sel_hi:[1,1,1]"
        for i in (0, 2):
            A(f"v_pk_fma_f32 {P2(Y+i)}, {P2(u+i)}, s[74:75], {P2(Y+i)} {sel}")
        q = t + 8*c
        for i in (0, 2):
            A(f"v_pk_fma_f32 {P2(Y+i)}, {P2(q+4+i)}, {P2(Y+i)}, {P2(q+i)}")
    for i in range(4):
        A(f"v_cvt_pk_bf16_f32 v{74+4*jj+i}, v{P+i}, v{P+8+i}")
    A(f"global_store_dwordx4 v197, v[{74+4*jj}:{77+4*jj}], s[56:57] offset:{1024*jj} sc1")
stamp(6)
A("s_waitcnt vmcnt(0)\ns_barrier")
lw = A.label("s2w0")
wave0_only(lw)
A(f"s_add_u32 s66, s36, {CL_S2}")
emit_signal("s66")
A(f"{lw}:")
stamp(7)
rstamp(34)

A(f"""v_lshrrev_b32 v10, 5, v1
v_bfe_u32 v11, v1, 2, 2
v_lshl_add_u32 v10, v10, 3, v11
v_lshlrev_b32 v10, 8, v10
v_bfe_u32 v12, v1, 4, 1
v_bfe_u32 v13, v1, 1, 1
v_lshl_add_u32 v12, v12, 1, v13
v_lshlrev_b32 v12, 4, v12
v_add_u32 v10, v10, v12
v_and_b32 v12, 1, v1
v_lshl_add_u32 v10, v12, 3, v10
s_lshl_b32 s66, s3, 12
v_add_u32 v10, s66, v10
v_lshlrev_b32 v11, 6, v11""")
for ft in range(4):
    A(f"v_xor_b32 v{2+ft}, {64*ft}, v11\nv_add_u32 v{2+ft}, v{2+ft}, v10\nv_add_u32 v{6+ft}, 65536, v{2+ft}")
A(f"""v_lshlrev_b32 v12, 4, v1
v_add_u32 v12, s66, v12
v_add_u32 v13, 65536, v12
s_lshl_b32 s66, s39, 7
s_lshl_b32 s67, s3, 5
s_add_u32 s66, s66, s67
v_and_b32 v14, 31, v1
v_add_u32 v14, s66, v14
v_lshlrev_b32 v14, 1, v14
global_load_ushort v15, v14, s[24:25]""")
CB = 16
def cv_reads(i):
    L = []
    for ft in range(4):
        base, off = (2+ft, 16384*i) if i < 4 else (6+ft, 16384*(i-4))
        r = CB + 16*i + 4*ft
        L += [f"ds_read_b64_tr_b16 v[{r}:{r+1}], v{base} offset:{off}", f"ds_read_b64_tr_b16 v[{r+2}:{r+3}], v{base} offset:{off+1024}"]
    return L
def cv_writes(i):
    base, off = (12, 16384*i) if i < 4 else (13, 16384*(i-4))
    return [f"ds_write_b128 v{base}, v[{CB+16*i+4*ft}:{CB+16*i+4*ft+3}] offset:{off+1024*ft}" for ft in range(4)]
for l in cv_reads(0): A(l)
for i in range(7):
    if i < 6:
        for l in cv_reads(i+1): A(l)
        A("s_waitcnt lgkmcnt(8)")
    else:
        A("s_waitcnt lgkmcnt(0)")
    for l in cv_writes(i): A(l)
    for kk in range(4*i, 4*i+4):
        for l in w2f_load(1, kk): A(l)
A("s_waitcnt lgkmcnt(0)\ns_barrier")
A(f"""s_lshl_b32 s66, s3, 10
v_lshl_add_u32 v6, v1, 4, s66
v_add_u32 v7, 57344, v6""")
for half in range(2):
    base = "v6" if half == 0 else "v7"
    for k in range(14):
        A(f"ds_read_b128 v[{64+56*half+4*k}:{67+56*half+4*k}], {base} offset:{4096*k}")
    if half == 1: pass
for half in range(2):
    for k in range(14):
        idx = 14*half + k
        A(f"s_waitcnt lgkmcnt({min(15, 27-idx)})")
        for r in range(4):
            reg = 64+56*half+4*k+r
            if idx == 0:
                A(f"v_dot2_f32_bf16 v{42+r}, v{reg}, s73, 0")
            else:
                A(f"v_dot2_f32_bf16 v{42+r}, v{reg}, s73, v{42+r}")
A(f"""s_nop 2
v_add_f32 v42, v42, v43
v_add_f32 v44, v44, v45
s_nop 0
v_add_f32 v42, v42, v44
v_mov_b32 v43, v42
s_nop 1
v_permlane32_swap_b32 v42, v43
s_nop 1
v_add_f32 v42, v42, v43
v_cvt_pk_bf16_f32 v43, -v42, -v42
v_and_b32 v44, s72, v43
v_add_f32 v44, v42, v44
v_cvt_pk_bf16_f32 v44, -v44, -v44
s_waitcnt vmcnt(28)
v_perm_b32 v46, v44, v43, s70
v_perm_b32 v47, v15, v43, s70
v_mov_b32 v48, v15
v_mov_b32 v49, 0
v_cmp_gt_u32 vcc, 32, v1
v_lshlrev_b32 v50, 4, v1
s_lshl_b32 s66, s3, 10
s_add_u32 s66, s66, {L_AUG}
v_cndmask_b32 v46, 0, v46, vcc
v_cndmask_b32 v47, 0, v47, vcc
v_cndmask_b32 v48, 0, v48, vcc
v_add_u32 v50, s66, v50
ds_write_b128 v50, v[46:49]
v_lshrrev_b32 v10, 5, v1
v_lshlrev_b32 v2, 13, v10
v_and_b32 v11, 31, v1
v_lshl_add_u32 v2, v11, 4, v2
s_lshl_b32 s66, s38, 9
s_lshl_b32 s67, s3, 15
s_add_u32 s66, s66, s67
v_add_u32 v2, s66, v2
v_add_u32 v3, 15360, v2
v_lshlrev_b32 v4, 11, v10
v_lshl_add_u32 v4, v11, 2, v4
s_lshl_b32 s66, s3, 7
s_add_u32 s66, s66, {L_X}
v_add_u32 v4, s66, v4""")
srd(48, 56, S*D*2)
A(f"""v_lshlrev_b32 v6, 4, v1
v_add_u32 v7, 57344, v6
v_add_u32 v5, {L_AUG}, v6
s_mov_b32 s77, {'s39' if not E('NOROT2',0) else '0'}
s_lshl_b32 s78, s3, 11
s_add_u32 s78, s78, {L_X}
s_waitcnt lgkmcnt(0)""")
stamp(8)
lw = A.label("s2p")
wave0_only(lw)
A(f"v_and_b32 v16, 7, v1\nv_add_u32 v16, {CL_S2}, v16\nv_lshlrev_b32 v16, 7, v16\nv_mov_b32 v17, 28")
emit_poll("v16", "v17")
A(f"{lw}:\ns_barrier")
stamp(9)

BF = 16
TL = [128, 144, 160, 176]
AF = 192
NSLOT = 6; PDC = 5
def dmaH(c, part=None):
    L = [[f"s_add_u32 m0, s78, {8192*(c % NSLOT)}", f"s_mov_b32 s76, {c << 17}", "buffer_load_dwordx4 v2, s[48:51], s76 offen sc1 lds"],
         ["buffer_load_dwordx4 v3, s[48:51], s76 offen offset:1024 sc1 lds"]]
    for p in ((0, 1) if part is None else (part,)):
        for x in L[p]: A(x)
for c in range(PDC): dmaH(c)
for t in range(4):
    A(f"ds_read_b128 a[{224+4*t}:{227+4*t}], v5 offset:{1024*t}")
def afrag_addr(ks, ft):
    return ("v6", 4096*ks + 1024*ft) if ks < 14 else ("v7", 4096*(ks-14) + 1024*ft)
def ldA(ks, ft):
    b, o = afrag_addr(ks, ft)
    r = AF + 16*(ks & 1) + 4*ft
    A(f"ds_read_b128 v[{r}:{r+3}], {b} offset:{o}")
def M(ks, t):
    b = BF + 4*ks
    r = AF + 16*(ks & 1) + 4*t
    cc = "0" if ks == 0 else f"v[{TL[t]}:{TL[t]+15}]"
    A(f"v_mfma_f32_32x32x16_bf16 v[{TL[t]}:{TL[t]+15}], v[{r}:{r+3}], v[{b}:{b+3}], {cc}")
def rdB(c, ksl):
    so = 32*(c % NSLOT)
    b = BF + 4*(2*c + ksl)
    A(f"ds_read2st64_b32 v[{b}:{b+1}], v4 offset0:{so+16*ksl} offset1:{so+16*ksl+2}")
    A(f"ds_read2st64_b32 v[{b+2}:{b+3}], v4 offset0:{so+16*ksl+4} offset1:{so+16*ksl+6}")
for t in range(4): ldA(0, t)
for c in range(15):
    if c < 14:
        A(f"s_waitcnt vmcnt({2*(min(c+PDC-1, 13) - c)}) lgkmcnt(0)")
        A("s_barrier")
    else:
        A("s_waitcnt lgkmcnt(0)")
    if c in (0, 4, 8, 12): stamp(20 + c//4)
    if c == 0:
        rdB(0, 0); rdB(0, 1); dmaH(PDC)
        continue
    k0, k1, k2 = 2*c-2, 2*c-1, 2*c
    M(k0, 0); ldA(k1, 0); ldA(k1, 1)
    M(k0, 1); ldA(k1, 2); ldA(k1, 3)
    M(k0, 2)
    if c < 14: rdB(c, 0)
    M(k0, 3)
    if c < 14: rdB(c, 1)
    A(f"s_waitcnt lgkmcnt({4 if c < 14 else 0})")
    M(k1, 0)
    if c < 14: ldA(k2, 0); ldA(k2, 1)
    M(k1, 1)
    if c < 14: ldA(k2, 2); ldA(k2, 3)
    M(k1, 2)
    if c + PDC <= 13: dmaH(c + PDC, 0)
    M(k1, 3)
    if c + PDC <= 13: dmaH(c + PDC, 1)
stamp(10)
ST0 = 232
for ks in range(28):
    b = BF + 4*ks
    for r in range(4):
        if E("NODOT", 0): continue
        if ks == 0 and r < 2:
            A(f"v_dot2_f32_bf16 v{ST0+(r&1)}, v{b+r}, s73, 0")
            A(f"v_dot2_f32_bf16 v{ST0+2+(r&1)}, v{b+r}, v{b+r}, 0")
        else:
            A(f"v_dot2_f32_bf16 v{ST0+(r&1)}, v{b+r}, s73, v{ST0+(r&1)}")
            A(f"v_dot2_f32_bf16 v{ST0+2+(r&1)}, v{b+r}, v{b+r}, v{ST0+2+(r&1)}")
A(f"""s_nop 1
v_add_f32 v232, v232, v233
v_add_f32 v234, v234, v235
v_mov_b32 v233, v232
v_mov_b32 v235, v234
v_lshlrev_b32 v9, 4, v1
s_nop 0
v_permlane32_swap_b32 v232, v233
v_permlane32_swap_b32 v234, v235
s_mov_b32 s66, 0x3b124925
s_nop 0
v_add_f32 v232, v232, v233
v_add_f32 v234, v234, v235
v_mul_f32 v232, s66, v232
v_mul_f32 v234, s66, v234
v_fma_f32 v234, -v232, v232, v234
v_add_f32 v234, 0x3727c5ac, v234
v_rsq_f32 v235, v234
v_sqrt_f32 v230, v234
s_mov_b32 s66, 0xc0135761
s_mov_b32 s67, 0xbdd2d3e8
v_mul_f32 v229, s66, v235
v_mul_f32 v228, v235, v235
v_mul_f32 v228, v228, v235
v_mul_f32 v228, s67, v228
v_cvt_pk_bf16_f32 v233, v232, v232
v_and_b32 v231, s72, v233
v_sub_f32 v231, v232, v231
v_cvt_pk_bf16_f32 v236, v230, v230
v_and_b32 v237, s72, v236
v_sub_f32 v237, v230, v237
v_and_b32 v225, s72, v236
v_cvt_pk_bf16_f32 v231, v231, v231
v_and_b32 v231, 0xffff, v231
v_or_b32 v225, v225, v231
v_cvt_pk_bf16_f32 v226, v237, 0
v_mov_b32 v224, v233
v_mov_b32 v227, 0
v_cmp_gt_u32 vcc, 32, v1
s_lshl_b32 s66, s38, 2
s_add_u32 s66, s66, s3
v_cndmask_b32 v224, 0, v224, vcc
v_cndmask_b32 v225, 0, v225, vcc
v_cndmask_b32 v226, 0, v226, vcc
s_mul_i32 s66, s66, 56
s_lshl_b32 s67, s39, 2""")
for t in range(4):
    A(f"v_mfma_f32_32x32x16_bf16 v[{TL[t]}:{TL[t]+15}], a[{224+4*t}:{227+4*t}], v[224:227], v[{TL[t]}:{TL[t]+15}]")
A(f"""s_add_u32 s66, s66, s67
s_lshl_b32 s66, s66, 11
v_lshl_add_u32 v8, v1, 4, s66
v_add_u32 v11, 4096, v8""")
GT = 236
def gelu_pk(tile, grp):
    L = []
    w = [TL[tile] + 8*grp + 2*e for e in range(4)]
    t = [GT + 2*e for e in range(4)]
    P = lambda r: f"v[{r}:{r+1}]"
    L += [f"v_pk_mul_f32 {P(t[e])}, {P(w[e])}, {P(w[e])}" for e in range(4)]
    L += [f"v_pk_fma_f32 {P(t[e])}, {P(t[e])}, v[228:229], v[228:229] op_sel:[0,0,1] op_sel_hi:[1,0,1]" for e in range(4)]
    L += [f"v_pk_mul_f32 {P(t[e])}, {P(t[e])}, {P(w[e])}" for e in range(4)]
    L += [f"v_exp_f32 v{t[e]+k}, v{t[e]+k}" for e in range(4) for k in range(2)]
    L += [f"v_pk_fma_f32 {P(t[e])}, {P(t[e])}, v[230:231], v[230:231] op_sel_hi:[1,0,0]" for e in range(4)]
    L += [f"v_rcp_f32 v{t[e]+k}, v{t[e]+k}" for e in range(4) for k in range(2)]
    L += [f"v_pk_mul_f32 {P(w[e])}, {P(w[e])}, {P(t[e])}" for e in range(4)]
    return L
def cvts(tile):
    o = AF + 8*(tile & 1)
    return [f"v_cvt_pk_bf16_f32 v{o+k}, v{TL[tile]+2*k}, v{TL[tile]+2*k+1}" for k in range(8)]
def h_store(tile):
    o = AF + 8*(tile & 1)
    base, off = ("v8", 2048*tile) if tile < 2 else ("v11", 2048*(tile-2))
    return [f"global_store_dwordx4 {base}, v[{o}:{o+3}], s[60:61] offset:{off} sc1", f"global_store_dwordx4 {base}, v[{o+4}:{o+7}], s[60:61] offset:{off+1024} sc1"]
def w2f_loadB(kk):
    return [l.replace("v211", "v9") for l in w2f_load(1, kk)]
stamp(11)
A(f"""s_lshr_b32 s66, s3, 1
s_and_b32 s67, s3, 1
s_lshl_b32 s68, s40, 1
s_add_u32 s68, s68, s66
s_lshl_b32 s68, s68, 7
s_lshl_b32 s69, s41, 1
s_add_u32 s69, s69, s67
s_lshl_b32 s76, s69, 17
s_add_u32 s68, s68, s76
v_lshrrev_b32 v12, 5, v1
v_lshlrev_b32 v13, 14, v12
v_and_b32 v14, 31, v1
v_lshl_add_u32 v13, v14, 2, v13
v_add_u32 v13, s68, v13""")
for j in range(4):
    A(f"buffer_load_dword v{16+2*j}, v13, s[48:51], 0 offen sc1")
    A(f"v_add_u32 v14, 8192, v13")
    A(f"buffer_load_dword v{17+2*j}, v14, s[48:51], 0 offen sc1")
    if j < 3: A("v_add_u32 v13, 32768, v13")
A(f"""s_lshl_b32 s69, s69, 6
v_lshl_add_u32 v12, v12, 3, s69""")
for j in range(4):
    A(f"global_load_dwordx2 v[{24+2*j}:{25+2*j}], v12, s[28:29] offset:{16*j}")
A("s_nop 3")
for t in range(4):
    for grp in range(2):
        for x in gelu_pk(t, grp): A(x)
    for x in cvts(t) + h_store(t): A(x)
stamp(12)
A("s_waitcnt vmcnt(0)\ns_barrier")
lw = A.label("s3w0")
wave0_only(lw)
A(f"s_add_u32 s66, s38, {CL_S3}")
emit_signal("s66")
A(f"{lw}:")
stamp(13)
rstamp(36)

ACC3 = 32; RING = 96; NS = 20
A(f"""s_lshl_b32 s66, s40, 1
s_mul_i32 s66, s66, {112*1024}
s_mul_i32 s67, s3, {28*1024}
s_add_u32 s81, s66, s67
v_lshlrev_b32 v2, 4, v1
v_add_u32 v3, {112*1024}, v2""")
srd(44, 60, S*F*2)
lw = A.label("s3p")
wave0_only(lw)
A(f"s_add_u32 s66, s38, {CL_S3}\ns_lshl_b32 s66, s66, 7\nv_mov_b32 v10, s66")
emit_poll("v10", "14")
A(f"{lw}:\ns_barrier")
stamp(14)
rstamp(37)
def ldH(kk):
    slot = kk % NS
    if kk % 4 == 0:
        A(f"s_add_u32 s82, {'s41' if E('ROT3',0) else '0'}, {kk>>2}\ns_cmp_ge_u32 s82, 7\ns_cselect_b32 s83, 7, 0\ns_sub_u32 s82, s82, s83\ns_lshl_b32 s82, s82, 12\ns_add_u32 s82, s82, s81")
    for tj in range(2):
        r = RING + 8*slot + 4*tj
        if E("NOLD3", 0): continue
        A(f"buffer_load_dwordx4 v[{r}:{r+3}], v{2+tj}, s[44:47], s82 offen offset:{1024*(kk&3)} {'' if E('NOSC3',0) else 'sc1'}")
for kk in range(PD3): ldH(kk)
for kk in range(28):
    A(f"s_waitcnt vmcnt({2*(min(kk+PD3-1, 27) - kk)})")
    slot = kk % NS
    for tj in range(2):
        for dd in range(2):
            T_ = ACC3 + 16*(2*tj + dd)
            a = 4*(dd*28 + kk)
            r = RING + 8*slot + 4*tj
            c = "0" if kk == 0 else f"v[{T_}:{T_+15}]"
            if E("NOMF3", 0): continue
            A(f"v_mfma_f32_32x32x16_bf16 v[{T_}:{T_+15}], a[{a}:{a+3}], v[{r}:{r+3}], {c}")
    if kk + PD3 < 28: ldH(kk + PD3)
stamp(15)
A(f"""v_lshlrev_b32 v4, 4, v1
s_lshl_b32 s66, s3, 14
v_add_u32 v5, s66, v4
s_lshl_b32 s66, s3, 12
v_add_u32 v4, s66, v4
s_lshr_b32 s66, s3, 1
s_and_b32 s67, s3, 1
s_lshl_b32 s68, s40, 1
s_add_u32 s68, s68, s66
s_lshl_b32 s68, s68, 5
v_and_b32 v6, 31, v1
v_add_u32 v6, s68, v6
v_mul_u32_u24 v6, 896, v6
s_lshl_b32 s69, s41, 1
s_add_u32 s69, s69, s67
s_lshl_b32 s69, s69, 6
v_lshrrev_b32 v7, 5, v1
v_lshl_add_u32 v6, v7, 4, v6
v_add_u32 v6, s69, v6""")
for T_ in range(4):
    for q in range(4):
        r = ACC3 + 16*T_ + 4*q
        A(f"ds_write_b128 v5, v[{r}:{r+3}] offset:{4096*T_ + 1024*q}")
for j in range(4):
    for c in range(2):
        k = 4*j + 2*c
        A(f"""v_lshlrev_b32 v{160+k}, 16, v{16+2*j+c}
        v_and_b32 v{161+k}, s72, v{16+2*j+c}
        v_lshlrev_b32 v{176+k}, 16, v{24+2*j+c}
        v_and_b32 v{177+k}, s72, v{24+2*j+c}""")
for k in range(0, 16, 2):
    A(f"v_pk_add_f32 {P2(160+k)}, {P2(160+k)}, {P2(176+k)}")
A("s_waitcnt lgkmcnt(0)\ns_barrier")
RB = 96
for w_ in range(4):
    for q in range(4):
        r = RB + 16*w_ + 4*q
        A(f"ds_read_b128 v[{r}:{r+3}], v4 offset:{16384*w_ + 1024*q}")
A("s_waitcnt lgkmcnt(8)")
for k in range(0, 16, 2): A(f"v_pk_add_f32 {P2(RB+k)}, {P2(RB+k)}, {P2(RB+16+k)}")
for k in range(0, 16, 2): A(f"v_pk_add_f32 {P2(RB+k)}, {P2(RB+k)}, {P2(160+k)}")
A("s_waitcnt lgkmcnt(0)")
for k in range(0, 16, 2): A(f"v_pk_add_f32 {P2(RB+32+k)}, {P2(RB+32+k)}, {P2(RB+48+k)}")
for k in range(0, 16, 2): A(f"v_pk_add_f32 {P2(RB+k)}, {P2(RB+k)}, {P2(RB+32+k)}")
for k in range(8): A(f"v_cvt_pk_bf16_f32 v{192+k}, v{RB+2*k}, v{RB+2*k+1}")
A("""s_nop 1
v_permlane32_swap_b32 v192, v194
v_permlane32_swap_b32 v193, v195
v_permlane32_swap_b32 v196, v198
v_permlane32_swap_b32 v197, v199
s_nop 1
global_store_dwordx4 v6, v[192:195], s[30:31]
global_store_dwordx4 v6, v[196:199], s[30:31] offset:32""")
stamp(16)
rstamp(38)
A("s_branch L_END")

A(f"""L_INIT:
s_waitcnt lgkmcnt(0)
v_mov_b32 v4, 0
v_mov_b32 v5, 0
v_mov_b32 v6, 0
v_mov_b32 v7, 0
v_lshlrev_b32 v2, 4, v0
global_store_dwordx4 v2, v[4:7], s[34:35] sc1
v_add_u32 v3, 4096, v2
global_store_dwordx4 v3, v[4:7], s[34:35] sc1
s_waitcnt vmcnt(0)
s_barrier
s_cmp_lg_u32 s3, 0
s_cbranch_scc1 L_END
v_mov_b32 v2, 0
v_mov_b32 v3, 1
s_mov_b64 exec, 1
global_store_dword v2, v3, s[32:33] sc1
L_END:
s_endpgm
L_CODE_END:""")

errs = check_hazards(A.lines)
for e in errs: print("HAZARD:", e, file=sys.stderr)
hdr = open(f"cdna_kernels/{NAME}.s.ref").read().split(".amdgcn_target")[0]
hdr = "\n".join(l for l in hdr.splitlines() if not l.startswith("; @launch"))
out = [hdr.rstrip(), f"; @launch grid=({NWG},1,1) block=(256,1,1) lds={LDS_BYTES}",
 '.amdgcn_target "amdgcn-amd-amdhsa--gfx950"', ".text", f".globl {KN}", ".p2align 8", f".type {KN},@function", f"{KN}:",
 A.text(), '.section .rodata,"a"', ".p2align 6", f".amdhsa_kernel {KN}",
 "  .amdhsa_next_free_vgpr 512", "  .amdhsa_next_free_sgpr 100", "  .amdhsa_accum_offset 256", "  .amdhsa_group_segment_fixed_size 0",
 "  .amdhsa_kernarg_size 112", "  .amdhsa_user_sgpr_count 2", "  .amdhsa_user_sgpr_kernarg_segment_ptr 1", "  .amdhsa_system_sgpr_workgroup_id_x 1",
 "  .amdhsa_float_denorm_mode_32 3", ".end_amdhsa_kernel", ""]
dst = os.environ.get("OUT", f"cdna_kernels/{NAME}.s")
open(dst, "w").write("\n".join(out))
print("wrote", dst, "instructions:", sum(1 for l in A.lines if not l.endswith(':')), "hazards:", len(errs))
```

```python
import sys, os
sys.path.insert(0, os.path.dirname(os.path.abspath(__file__)))
from asmlib import *

NAME = "sequential_preLN__ssm_conv_h3__dense_activation_gelu__prompt"
E = lambda k, d: int(os.environ.get(k, str(d)))
STAMPS = E("STAMPS", 0)
PD2 = E("PD2", 11)
PD3 = E("PD3", 6)
W1THR = E("W1THR", 0)
NMAIN = 224
NHELP = E("NHELP", 0)
NWG = NMAIN + 1 + NHELP
S, D, F = 2048, 448, 1792
WS_STAMP = 0x80000
WS_UR = 0x100000
WS_X2 = 0x300000
WS_H2 = 0x500000
WS_ST = 0x700000
WS_W2F = 0x800000
WS_HF = 0xA00000
CL_S1 = 0; CL_AUX = 8; CL_S2 = 16; CL_S3 = 32
L_W1 = 0
L_X = 0x1C000
L_UT = L_X + 0x0000
L_XT = L_X + 0x2000
L_KA = L_X + 0x4000 + 64
L_UR = L_X + 0x8100
L_AUG = L_X + 0xA500
L_CNT = L_X + 0xB600
LDS_BYTES = 163840
SPIN = 2000000
KN = NAME + "_kernel"

A = Asm()

def stamp(i, wave=0):
    if not STAMPS: return
    l = A.label("st")
    A(f"""s_cmp_lg_u32 s3, {wave}
    s_cbranch_scc1 {l}
    s_memtime s[92:93]
    s_waitcnt lgkmcnt(0)
    s_lshl_b32 s94, s2, 8
    s_add_u32 s94, s94, {WS_STAMP + 4*i}
    v_mov_b32 v250, s94
    v_mov_b32 v251, s92
    s_mov_b64 s[90:91], exec
    s_mov_b64 exec, 1
    global_store_dword v250, v251, s[34:35]
    s_mov_b64 exec, s[90:91]
    {l}:""")

def rstamp(i, xcc=False):
    if not STAMPS: return
    l = A.label("rt")
    A(f"""s_cmp_lg_u32 s3, 0
    s_cbranch_scc1 {l}
    {"s_getreg_b32 s92, hwreg(HW_REG_XCC_ID)" if xcc else "s_memrealtime s[92:93]"}
    s_waitcnt lgkmcnt(0)
    s_lshl_b32 s94, s2, 8
    s_add_u32 s94, s94, {WS_STAMP + 4*i}
    v_mov_b32 v250, s94
    v_mov_b32 v251, s92
    s_mov_b64 s[90:91], exec
    s_mov_b64 exec, 1
    global_store_dword v250, v251, s[34:35]
    s_mov_b64 exec, s[90:91]
    {l}:""")

def wave0_only(label):
    A(f"s_cmp_lg_u32 s3, 0\ns_cbranch_scc1 {label}")

def emit_signal(line_sreg):
    A(f"""s_lshl_b32 s67, {line_sreg}, 7
    v_mov_b32 v245, s67
    v_mov_b32 v246, 1
    s_mov_b64 s[64:65], exec
    s_mov_b64 exec, 1
    global_atomic_add v245, v246, s[34:35] sc1
    s_mov_b64 exec, s[64:65]""")

def emit_poll(addr_v, target, base="s[34:35]", tmp="v247"):
    lp = A.label("poll"); done = A.label("polld")
    A(f"""s_mov_b32 s68, {SPIN}
    {lp}:
    global_load_dword {tmp}, {addr_v}, {base} sc1
    s_waitcnt vmcnt(0)
    v_cmp_ne_u32 vcc, {target}, {tmp}
    s_cbranch_vccz {done}
    s_sub_u32 s68, s68, 1
    s_cmp_lg_u32 s68, 0
    s_cbranch_scc1 {lp}
    {done}:""")

def ws_base(sreg, off):
    A(f"s_add_u32 s{sreg}, s34, {off}\ns_addc_u32 s{sreg+1}, s35, 0")

def srd(base, ptr, size):
    A(f"s_mov_b32 s{base}, s{ptr}\ns_mov_b32 s{base+1}, s{ptr+1}\ns_mov_b32 s{base+2}, {size}\ns_mov_b32 s{base+3}, 0x20000")

if STAMPS: A("s_memrealtime s[78:79]")
A(f"""s_load_dwordx16 s[8:23], s[0:1], 0""")
A("s_getpc_b64 s[88:89]\nL_PC:")
if E("PF0", 1):
    A(f"""v_lshlrev_b32 v6, 4, v0
    global_load_dwordx4 v[116:119], v6, s[88:89] offset:{E("PFOFF", 128)}""")
A(f"""s_load_dwordx8 s[24:31], s[0:1], 64
s_load_dwordx4 s[32:35], s[0:1], 96
s_cmp_ge_u32 s2, {NMAIN}
s_cbranch_scc1 L_OTHER
s_lshr_b32 s42, s2, 5
s_and_b32 s43, s2, 31
v_lshrrev_b32 v2, 3, v0
v_and_b32 v3, 7, v0
s_mul_i32 s66, s43, {64*896}
s_lshl_b32 s67, s42, 7
s_add_u32 s66, s66, s67
v_mul_u32_u24 v4, 1792, v2
v_lshl_add_u32 v4, v3, 4, v4
v_add_u32 v7, s66, v4
v_subrev_u32 v92, 2688, v7
v_subrev_u32 v93, 1792, v7
v_subrev_u32 v94, 896, v7
s_lshl_b32 s67, s42, 9
v_lshl_add_u32 v8, v3, 6, s67
s_mov_b32 s46, {S*D*2}
s_mov_b32 s47, 0x20000
s_waitcnt lgkmcnt(0)""")
if STAMPS: A("s_memrealtime s[96:97]")
A(f"""s_mov_b32 s44, s10
s_mov_b32 s45, s11
buffer_load_dwordx4 v[10:13], v92, s[44:47], 0 offen
buffer_load_dwordx4 v[14:17], v93, s[44:47], 0 offen
buffer_load_dwordx4 v[18:21], v94, s[44:47], 0 offen
buffer_load_dwordx4 v[22:25], v7, s[44:47], 0 offen
buffer_load_dwordx4 v[26:29], v7, s[44:47], 0 offen offset:896
global_load_dwordx4 v[30:33], v7, s[12:13]
global_load_dwordx4 v[34:37], v7, s[12:13] offset:896
global_load_dwordx4 v[46:49], v8, s[14:15]
global_load_dwordx4 v[50:53], v8, s[14:15] offset:16
global_load_dwordx4 v[54:57], v8, s[14:15] offset:32
global_load_dwordx4 v[58:61], v8, s[14:15] offset:48
global_load_dwordx4 v[38:41], v7, s[8:9]
global_load_dwordx4 v[42:45], v7, s[8:9] offset:896
v_and_b32 v1, 63, v0
v_lshrrev_b32 v5, 6, v0
s_mov_b32 s70, 0x05040100
s_mov_b32 s71, 0x07060302
v_readfirstlane_b32 s3, v5
s_mov_b32 s72, 0xffff0000
s_mov_b32 s73, 0x3f803f80
s_lshr_b32 s37, s2, 3""")
A(f"""s_lshr_b32 s66, s2, 1
s_mul_i32 s66, s66, {16*896}
s_and_b32 s67, s2, 1
s_mul_i32 s67, s67, 448
s_add_u32 s66, s66, s67
s_mov_b32 s67, 2341
v_mul_lo_u32 v110, v0, s67
v_lshrrev_b32 v110, 16, v110
v_mul_u32_u24 v111, 28, v110
v_sub_u32 v111, v0, v111
v_mul_u32_u24 v110, 896, v110
v_lshl_add_u32 v110, v111, 4, v110
v_add_u32 v110, s66, v110
v_add_u32 v112, 256, v0
v_mul_lo_u32 v113, v112, s67
v_lshrrev_b32 v113, 16, v113
v_mul_u32_u24 v111, 28, v113
v_sub_u32 v111, v112, v111
v_mul_u32_u24 v113, 896, v113
v_lshl_add_u32 v113, v111, 4, v113
v_add_u32 v113, s66, v113
s_lshl_b32 s66, s37, 10
s_min_u32 s66, s66, L_CODE_END-{KN}-1024
v_lshl_add_u32 v114, v1, 4, s66
s_lshl_b32 s69, s3, 10
s_add_u32 m0, s69, {L_W1}
s_nop 0
global_load_lds_dwordx4 v110, s[26:27]""")
l3 = A.label("x3"); lx = A.label("xd")
A(f"""s_cmp_eq_u32 s3, 3
s_cbranch_scc1 {l3}
s_add_u32 m0, m0, 4096
s_nop 0
global_load_lds_dwordx4 v113, s[26:27]
s_branch {lx}
{l3}:
s_sub_u32 s88, s88, L_PC-{KN}
s_subb_u32 s89, s89, 0
global_load_dwordx4 v[116:119], v114, s[88:89]
{lx}:""")
lns = A.label("nost")
A(f"""s_mov_b32 s76, 0
s_cmp_lt_u32 s3, 2
s_cbranch_scc1 {lns}""")
srd(48, 16, D*S*2)
A(f"""v_lshlrev_b32 v115, 4, v1
s_sub_u32 s66, s3, 2
s_lshl_b32 s67, s2, 1
s_add_u32 s67, s67, s66
s_lshl_b32 s67, s67, 12
s_load_dword s77, s[16:17], s67
s_mul_i32 s66, s66, 8320
s_add_u32 m0, s66, {L_KA}
s_add_u32 s79, s66, {L_KA + 4160 - 4}""")
for j in range(4):
    A(f"s_nop 0\nbuffer_load_dwordx4 v115, s[48:51], s67 offen lds\ns_add_u32 m0, m0, 1024\ns_add_u32 s67, s67, 1024")
A(f"s_add_u32 m0, m0, {4160-4096}\ns_sub_u32 s67, s67, {4096-2}")
for j in range(4):
    A(f"s_nop 0\nbuffer_load_dwordx4 v115, s[48:51], s67 offen lds\ns_add_u32 m0, m0, 1024\ns_add_u32 s67, s67, 1024")
A(f"""s_cmp_lt_u32 s42, 4
s_cbranch_scc0 {lns}
s_mov_b32 s76, 1
s_lshl_b32 s66, s43, 6
s_lshl_b32 s67, s42, 4
s_add_u32 s66, s66, s67
s_sub_u32 s67, s3, 2
s_lshl_b32 s67, s67, 3
s_add_u32 s66, s66, s67
v_lshrrev_b32 v120, 3, v1
v_add_u32 v120, s66, v120
v_mul_u32_u24 v121, 896, v120
v_and_b32 v122, 7, v1
v_lshl_add_u32 v121, v122, 4, v121""")
for i in range(7):
    A(f"global_load_dwordx4 v[{64+4*i}:{67+4*i}], v121, s[8:9] offset:{128*i}")
A(f"{lns}:")
ws_base(52, WS_UR); ws_base(54, WS_X2); ws_base(56, WS_H2); ws_base(58, WS_ST); ws_base(60, WS_HF); ws_base(62, WS_W2F)
stamp(0)
rstamp(30)
rstamp(31, True)
if STAMPS:
    for (i, r) in ((28, 78), (29, 96)):
        l = A.label("rt0")
        A(f"""s_cmp_lg_u32 s3, 0
        s_cbranch_scc1 {l}
        s_lshl_b32 s94, s2, 8
        s_add_u32 s94, s94, {WS_STAMP + 4*i}
        v_mov_b32 v250, s94
        v_mov_b32 v251, s{r}
        s_mov_b64 s[90:91], exec
        s_mov_b64 exec, 1
        global_store_dword v250, v251, s[34:35]
        s_mov_b64 exec, s[90:91]
        {l}:""")
A(f"""v_sub_u32 v96, 31, v2
v_lshrrev_b32 v97, 2, v96
v_xor_b32 v97, v97, v3
v_lshlrev_b32 v97, 4, v97
v_and_b32 v96, 3, v96
v_lshl_add_u32 v97, v96, 2, v97
v_lshl_add_u32 v95, v3, 10, v97
v_add_u32 v95, {L_UT}, v95
v_lshrrev_b32 v96, 1, v2
v_xor_b32 v96, v96, v3
v_lshlrev_b32 v96, 4, v96
v_and_b32 v97, 1, v2
v_lshl_add_u32 v96, v97, 3, v96
v_lshl_add_u32 v96, v3, 10, v96
v_add_u32 v96, {L_XT}, v96
v_lshrrev_b32 v98, 6, v0
v_xor_b32 v99, v3, v98
v_lshlrev_b32 v99, 4, v99
v_lshl_add_u32 v100, v2, 7, v99
v_add_u32 v100, {L_UT}, v100
s_lshl_b32 s66, s42, 18
s_sub_u32 s67, 31, s43
s_lshl_b32 s67, s67, 7
s_add_u32 s66, s66, s67
v_lshlrev_b32 v102, 12, v2
v_lshl_add_u32 v102, v3, 4, v102
v_add_u32 v102, s66, v102
v_and_b32 v104, 15, v0
v_lshrrev_b32 v105, 4, v0
v_xor_b32 v106, v104, v98
v_lshlrev_b32 v106, 4, v106
v_lshl_add_u32 v106, v105, 8, v106
v_add_u32 v106, {L_XT}, v106
s_lshl_b32 s66, s42, 18
s_lshl_b32 s67, s43, 8
s_add_u32 s66, s66, s67
v_lshlrev_b32 v108, 13, v105
v_lshl_add_u32 v108, v104, 4, v108
v_add_u32 v108, s66, v108
v_mov_b32 v101, {L_CNT}
v_mov_b32 v103, 0
ds_write2_b32 v101, v103, v103 offset1:1""")
A(f"""v_lshrrev_b32 v123, 5, v1
v_bfe_u32 v124, v1, 2, 2
v_lshl_add_u32 v123, v123, 2, v124
v_mul_u32_u24 v123, 448, v123
v_bfe_u32 v124, v1, 4, 1
v_lshl_add_u32 v123, v124, 5, v123
v_and_b32 v124, 3, v1
v_lshl_add_u32 v123, v124, 3, v123
s_lshl_b32 s66, s3, 6
s_add_u32 s66, s66, {L_W1}
v_add_u32 v123, s66, v123
s_and_b32 s66, s2, 1
s_mul_i32 s66, s66, 7
s_add_u32 s66, s66, s3
s_mul_i32 s66, s66, 112
s_lshr_b32 s67, s2, 1
s_add_u32 s66, s66, s67
s_lshl_b32 s66, s66, 10
v_lshl_add_u32 v124, v1, 4, s66""")
def p0wait(base):
    l1 = A.label("wa"); l2 = A.label("wb"); l3_ = A.label("wc")
    A(f"""s_cmp_ge_u32 s3, 2
    s_cbranch_scc1 {l3_}
    s_waitcnt vmcnt({base})
    s_branch {l2}
    {l3_}:
    s_cmp_eq_u32 s76, 0
    s_cbranch_scc1 {l1}
    s_waitcnt vmcnt({base+15})
    s_branch {l2}
    {l1}:
    s_waitcnt vmcnt({base+8})
    {l2}:""")
p0wait(4)
K = lambda j, p: f"v{10 + 4*j + p}"
T = 126
for p in range(4):
    seq = []
    for half in range(2):
        i = 2*p + half
        sel = "s70" if half == 0 else "s71"
        t = T + 8*half
        seq.append([
            f"v_perm_b32 v{t}, {K(2,p)}, {K(3,p)}, {sel}",
            f"v_perm_b32 v{t+1}, {K(0,p)}, {K(1,p)}, {sel}",
            f"v_perm_b32 v{t+2}, {K(3,p)}, {K(4,p)}, {sel}",
            f"v_perm_b32 v{t+3}, {K(1,p)}, {K(2,p)}, {sel}",
            f"v_dot2_f32_bf16 v{t+4}, v{t}, v{46+2*i}, 0",
            f"v_dot2_f32_bf16 v{t+5}, v{t+2}, v{46+2*i}, 0",
            f"v_dot2_f32_bf16 v{t+4}, v{t+1}, v{47+2*i}, v{t+4}",
            f"v_dot2_f32_bf16 v{t+5}, v{t+3}, v{47+2*i}, v{t+5}",
            (f"v_lshlrev_b32 v{t+6}, 16, v{30+p}" if half == 0 else f"v_and_b32 v{t+6}, s72, v{30+p}"),
            (f"v_lshlrev_b32 v{t+7}, 16, v{34+p}" if half == 0 else f"v_and_b32 v{t+7}, s72, v{34+p}"),
            f"v_mul_f32 v{t+4}, v{t+4}, v{t+6}",
            f"v_mul_f32 v{t+5}, v{t+5}, v{t+7}",
            f"v_cvt_pk_bf16_f32 v{t+4}, v{t+5}, v{t+4}",
            f"ds_write_b32 v95, v{t+4} offset:{128*i}",
        ])
    for k in range(len(seq[0])):
        A(seq[0][k]); A(seq[1][k])
p0wait(0)
for p in range(4):
    A(f"ds_write2_b32 v96, v{38+p}, v{42+p} offset0:{64*p} offset1:{64*p+1}")
A("""s_waitcnt lgkmcnt(0)
s_barrier""")
A(f"""s_and_b32 s36, s2, 7
s_mul_i32 s66, s37, 37
s_lshr_b32 s66, s66, 8
s_mul_i32 s67, s66, 7
s_sub_u32 s41, s37, s67
s_lshl_b32 s40, s36, 2
s_add_u32 s40, s40, s66
s_lshr_b32 s80, s40, 1
s_lshr_b32 s38, s36, 1
s_lshl_b32 s38, s38, 2
s_add_u32 s38, s38, s66
s_and_b32 s39, s36, 1
s_mul_i32 s39, s39, 7
s_add_u32 s39, s39, s41""")
ldmaw = A.label("dmaw"); laddr = A.label("w1addr"); ljoin = A.label("w1join")
A(f"s_cmp_ge_u32 s3, 2\ns_cbranch_scc1 {ldmaw}")
for q in range(4):
    if q == 0:
        A("ds_read_b128 v[10:13], v100\nds_read_b128 v[26:29], v106")
    else:
        A(f"v_xor_b32 v110, {32*q}, v100\nv_xor_b32 v111, {32*q}, v106\nds_read_b128 v[{10+4*q}:{13+4*q}], v110 offset:{2048*q}\nds_read_b128 v[{26+4*q}:{29+4*q}], v111 offset:{2048*q}")
for j in range(4):
    A(f"ds_read_b64_tr_b16 v[{42+4*j}:{43+4*j}], v123 offset:{128*j}\nds_read_b64_tr_b16 v[{44+4*j}:{45+4*j}], v123 offset:{128*j+3584}")
A("v_mov_b32 v248, 0\nglobal_load_dword v249, v248, s[32:33] sc1\ns_waitcnt lgkmcnt(0)")
for q in range(4):
    A(f"global_store_dwordx4 v102, v[{10+4*q}:{13+4*q}], s[52:53] sc1\nglobal_store_dwordx4 v108, v[{26+4*q}:{29+4*q}], s[54:55] sc1")
    if q < 3: A("v_add_u32 v102, 65536, v102\nv_add_u32 v108, 65536, v108")
for j in range(4):
    if j == 3:
        lsk = A.label("w2s")
        A(f"s_cmp_eq_u32 s3, 1\ns_cbranch_scc1 {lsk}")
    A(f"global_store_dwordx4 v124, v[{42+4*j}:{45+4*j}], s[62:63] sc1")
    if j < 3: A(f"v_add_u32 v124, {2*112*1024}, v124")
A(f"{lsk}:\ns_barrier")
stamp(1)
def lds_count_signal(off, last, build_addr):
    ln = A.label("nl")
    A(f"""v_mov_b32 v110, 1
    s_mov_b64 s[64:65], exec
    s_mov_b64 exec, 1
    ds_add_rtn_u32 v111, v101, v110 offset:{off}
    s_waitcnt lgkmcnt(0)
    v_readfirstlane_b32 s66, v111
    s_mov_b64 exec, s[64:65]
    s_cmp_eq_u32 s66, {last}
    s_cbranch_scc0 {ln}""")
    lio = A.label("initok")
    A(f"v_cmp_ne_u32 vcc, 1, v249\ns_cbranch_vccz {lio}")
    emit_poll("v248", 1, base="s[32:33]")
    A(f"v_mov_b32 v249, 1\n{lio}:")
    A(build_addr)
    emit_signal("s66")
    A(f"{ln}:")
A("s_waitcnt vmcnt(0)")
lds_count_signal(0, 1, "s_mov_b32 s66, s42")
lds_count_signal(4, 3, f"s_add_u32 s66, s36, {CL_AUX}")
stamp(2)
rstamp(32)
A(f"""v_lshrrev_b32 v10, 5, v1
v_mul_u32_u24 v10, 4608, v10
v_and_b32 v11, 31, v1
v_lshl_add_u32 v10, v11, 4, v10
v_add_u32 v10, {L_UR + 4096}, v10
v_mov_b32 v12, 0
v_mov_b32 v13, 0
v_mov_b32 v14, 0
v_mov_b32 v15, 0
ds_write_b128 v10, v[12:15]
s_branch {laddr}""")
A(f"{ldmaw}:")
srd(44, 22, D*F*2)
A(f"""v_lshrrev_b32 v11, 4, v1
v_lshlrev_b32 v12, 2, v11
v_and_b32 v13, 15, v1
v_xor_b32 v12, v12, v13
v_lshlrev_b32 v12, 4, v12
v_mul_u32_u24 v11, 3584, v11
v_add_u32 v11, v11, v12
s_lshl_b32 s66, s39, 8
v_add_u32 v11, s66, v11
v_mov_b32 v13, s79
s_lshl_b32 s77, s77, 16
v_mov_b32 v12, s77
ds_write_b32 v13, v12
v_mov_b32 v248, 0
global_load_dword v249, v248, s[32:33] sc1
s_barrier""")
lns = A.label("nost2")
A(f"s_cmp_eq_u32 s76, 0\ns_cbranch_scc1 {lns}")
b = 64
A("s_waitcnt vmcnt(1)")
A(f"v_dot2_f32_bf16 v16, v{b}, s73, 0\nv_dot2_f32_bf16 v17, v{b}, v{b}, 0\nv_dot2_f32_bf16 v18, v{b+1}, s73, 0\nv_dot2_f32_bf16 v19, v{b+1}, v{b+1}, 0")
for i in range(2, 28, 2):
    A(f"v_dot2_f32_bf16 v16, v{b+i}, s73, v16\nv_dot2_f32_bf16 v17, v{b+i}, v{b+i}, v17\nv_dot2_f32_bf16 v18, v{b+i+1}, s73, v18\nv_dot2_f32_bf16 v19, v{b+i+1}, v{b+i+1}, v19")
A("""s_nop 2
v_add_f32 v16, v16, v18
v_add_f32 v17, v17, v19
s_nop 1
v_add_f32_dpp v16, v16, v16 quad_perm:[1,0,3,2] row_mask:0xf bank_mask:0xf
v_add_f32_dpp v17, v17, v17 quad_perm:[1,0,3,2] row_mask:0xf bank_mask:0xf
s_nop 1
v_add_f32_dpp v16, v16, v16 quad_perm:[2,3,0,1] row_mask:0xf bank_mask:0xf
v_add_f32_dpp v17, v17, v17 quad_perm:[2,3,0,1] row_mask:0xf bank_mask:0xf
s_nop 1
v_add_f32_dpp v16, v16, v16 row_half_mirror row_mask:0xf bank_mask:0xf
v_add_f32_dpp v17, v17, v17 row_half_mirror row_mask:0xf bank_mask:0xf
s_mov_b32 s66, 0x3b124925
v_mul_f32 v16, s66, v16
v_mul_f32 v17, s66, v17
v_fma_f32 v17, -v16, v16, v17
v_add_f32 v17, 0x3727c5ac, v17
v_rsq_f32 v17, v17
v_lshlrev_b32 v120, 2, v120
v_cmp_eq_u32 vcc, 0, v122
v_mul_f32 v18, -v16, v17
v_add_u32 v121, 8192, v120
s_and_saveexec_b64 s[64:65], vcc
global_store_dword v120, v17, s[58:59] sc1
global_store_dword v121, v18, s[58:59] sc1
s_mov_b64 exec, s[64:65]""")
A(f"{lns}:\ns_waitcnt vmcnt(0)")
lds_count_signal(4, 3, f"s_add_u32 s66, s36, {CL_AUX}")
lg = A.label("gate")
A(f"""{lg}:
ds_read_b64 v[12:13], v101
s_waitcnt lgkmcnt(0)
v_add_u32 v12, v12, v13
s_nop 0
v_readfirstlane_b32 s66, v12
s_nop 0
s_cmp_lt_u32 s66, 6
s_cbranch_scc1 {lg}
s_sub_u32 s66, s3, 2
s_mul_i32 s66, s66, 56
s_mul_i32 s67, s66, 14336
s_lshl_b32 s66, s66, 10
s_add_u32 m0, s66, {L_W1}
s_mov_b32 s69, 14""")
lp = A.label("w1l")
A(f"{lp}:")
for j in range(4):
    if E("NOW1", 0): continue
    A(f"s_nop 0\nbuffer_load_dwordx4 v11, s[44:47], s67 offen lds\ns_add_u32 m0, m0, 1024\ns_add_u32 s67, s67, 14336")
A(f"""s_sub_u32 s69, s69, 1
s_cmp_lg_u32 s69, 0
s_cbranch_scc1 {lp}""")
stamp(24, 3)
if E("FLOODWAIT", 0):
    A("s_waitcnt vmcnt(0)")
    stamp(25, 3)
A(f"{laddr}:")
XV, STV = 170, 178
A(f"""s_lshl_b32 s66, s2, 2
s_load_dword s74, s[18:19], s66
v_and_b32 v194, 15, v1
v_lshrrev_b32 v195, 4, v1
v_lshlrev_b32 v196, 4, v194
v_lshl_add_u32 v196, v195, 2, v196
s_lshl_b32 s66, s3, 9
v_add_u32 v196, s66, v196
v_lshlrev_b32 v197, 2, v196
v_mov_b32 v198, v197
s_lshl_b32 s66, s2, 13
v_add_u32 v197, s66, v197
s_lshr_b32 s66, s3, 1
s_and_b32 s67, s3, 1
s_mul_i32 s68, s66, 8320
s_lshl_b32 s69, s67, 8
s_sub_u32 s68, s68, s69
s_add_u32 s68, s68, {L_KA - 32}
v_add_u32 v199, 1, v194
v_lshrrev_b32 v199, 1, v199
v_lshl_add_u32 v199, v195, 2, v199
v_lshlrev_b32 v199, 2, v199
v_and_b32 v200, 1, v194
v_cmp_eq_u32 vcc, 0, v200
v_mov_b32 v201, 4160
v_add_u32 v199, s68, v199
v_cndmask_b32 v201, 0, v201, vcc
v_add_u32 v199, v199, v201
v_add_u32 v200, 1024, v199
v_add_u32 v201, 2048, v199
v_add_u32 v202, 3072, v199
s_mul_i32 s68, s66, 4608
s_sub_u32 s68, s68, s69
s_add_u32 s68, s68, {L_UR + 736}
v_lshlrev_b32 v203, 5, v194
v_sub_u32 v203, s68, v203
v_lshl_add_u32 v203, v195, 4, v203
s_cmp_eq_u32 s67, 0
s_cselect_b32 s68, 64, 0
v_lshl_add_u32 v204, v195, 3, v194
v_add_u32 v204, s68, v204
s_mov_b32 s75, 0xffff""")
for k in range(4):
    A(f"""v_cmp_le_u32 vcc, {15-2*k}, v204
    v_mov_b32 v205, s75
    s_nop 0
    v_cndmask_b32 v{206+k}, 0, v205, vcc
    v_cmp_le_u32 vcc, {14-2*k}, v204
    v_mov_b32 v205, s72
    s_nop 0
    v_cndmask_b32 v205, 0, v205, vcc
    v_or_b32 v{206+k}, v{206+k}, v205""")
A(f"""v_lshlrev_b32 v211, 4, v1
s_lshl_b32 s66, s3, 13
v_add_u32 v212, s66, v211
v_add_u32 v212, {L_X}, v212
s_lshl_b32 s66, s3, 11
v_add_u32 v213, s66, v211
v_add_u32 v213, {L_X}, v213
s_lshl_b32 s66, s3, 10
s_sub_u32 s66, {L_UR + 4088 - 512}, s66
v_lshlrev_b32 v210, 5, v194
v_lshl_add_u32 v210, v195, 3, v210
v_sub_u32 v210, s66, v210
v_and_b32 v214, 7, v1
v_add_u32 v214, {CL_AUX}, v214
v_lshlrev_b32 v214, 7, v214
s_mul_i32 s66, s41, {2*112*1024}
s_mul_i32 s67, s3, {28*1024}
s_add_u32 s81, s66, s67""")
srd(84, 62, F*D*2)
ACC = 138
for j in range(32): A(f"v_mov_b32 v{ACC+j}, 0")
lnw0 = A.label("w1n0")
A(f"s_cmp_lg_u32 s3, 0\ns_cbranch_scc1 {lnw0}")
A(f"s_lshl_b32 s66, s42, 7\nv_mov_b32 v16, s66")
emit_poll("v16", "32")
stamp(3)
A(f"""v_lshlrev_b32 v10, 4, v1
s_lshl_b32 s66, s2, 13
v_add_u32 v10, s66, v10
s_mov_b32 m0, {L_UR}""")
for c in range(2):
    for j in range(4):
        A(f"s_nop 0\nglobal_load_lds_dwordx4 v10, s[52:53] sc1\nv_add_u32 v10, 1024, v10\ns_add_u32 m0, m0, {1024 if j < 3 else 4608-3072}")
A(f"""s_waitcnt vmcnt(0) lgkmcnt(0)
s_branch {ljoin}
{lnw0}:
s_cmp_eq_u32 s3, 1
s_cbranch_scc1 {ljoin}
s_waitcnt vmcnt({0 if E("NOW1", 0) else 56}) lgkmcnt(0)
{ljoin}:
s_barrier""")
stamp(4)
rstamp(33)

AB = [10, 42]; UB = [74, 106]
def conv_loads(s, buf):
    L = []
    for m in range(8):
        L.append(f"ds_read_b128 v[{UB[buf]+4*m}:{UB[buf]+4*m+3}], v203 offset:{64*(59-8*m-s)}")
    for n in range(8):
        base = 199 + (n >> 1)
        o = (n & 1)*128 + 16*(7-s)
        L.append(f"ds_read2_b32 v[{AB[buf]+4*n}:{AB[buf]+4*n+1}], v{base} offset0:{o} offset1:{o+1}")
        L.append(f"ds_read2_b32 v[{AB[buf]+4*n+2}:{AB[buf]+4*n+3}], v{base} offset0:{o+2} offset1:{o+3}")
    return L
def w2f_load(dd, kk):
    L = []
    if kk % 4 == 0:
        L += [f"s_add_u32 s82, {'s41' if E('ROT3',0) else '0'}, {kk>>2}", "s_cmp_ge_u32 s82, 7", "s_cselect_b32 s83, 7, 0", "s_sub_u32 s82, s82, s83", "s_lshl_b32 s82, s82, 12",
              f"s_add_u32 s82, s82, s81"]
        if dd: L += [f"s_add_u32 s82, s82, {112*1024}"]
    a = 4*(dd*28 + kk)
    L += [f"buffer_load_dwordx4 a[{a}:{a+3}], v211, s[84:87], s82 offen offset:{1024*(kk&3)} sc1"]
    return L
for l in conv_loads(0, 0): A(l)
A(f"""global_load_dwordx4 v[{XV}:{XV+3}], v197, s[54:55] sc1
global_load_dwordx4 v[{XV+4}:{XV+7}], v197, s[54:55] offset:1024 sc1
global_load_dword v215, v214, s[34:35] sc1
s_waitcnt lgkmcnt(0)""")
stamp(19)
nw = 0
for s in range(4):
    buf = s & 1
    nxt = conv_loads(s+1, buf ^ 1) if s < 3 else []
    if s == 3:
        for k in range(4): A(f"v_and_b32 v{AB[buf]+k}, v{206+k}, v{AB[buf]+k}")
        A("s_nop 1")
    if s == E('AUXS', 1):
        lok = A.label("auxok"); lp = A.label("auxp")
        A(f"""s_cmp_lg_u32 s3, 0
        s_cbranch_scc1 {lok}
        s_waitcnt vmcnt(0)
        v_cmp_ne_u32 vcc, 28, v215
        s_cbranch_vccz {lok}""")
        emit_poll("v214", "28")
        A(f"""{lok}:
        s_barrier
        v_add_u32 v216, 8192, v198
        global_load_dwordx4 v[{STV}:{STV+3}], v198, s[58:59] sc1
        global_load_dwordx4 v[{STV+4}:{STV+7}], v216, s[58:59] sc1
        global_load_dwordx4 v[{STV+8}:{STV+11}], v198, s[58:59] offset:1024 sc1
        global_load_dwordx4 v[{STV+12}:{STV+15}], v216, s[58:59] offset:1024 sc1""")
    pairs = [(m, n) for m in range(8) for n in range(8 - m)]
    for idx, (m, n) in enumerate(pairs):
        j = m + n
        A(f"v_mfma_f32_16x16x32_bf16 v[{ACC+4*j}:{ACC+4*j+3}], v[{AB[buf]+4*n}:{AB[buf]+4*n+3}], v[{UB[buf]+4*m}:{UB[buf]+4*m+3}], v[{ACC+4*j}:{ACC+4*j+3}]")
        if idx < len(nxt): A(nxt[idx])
        if s >= E('AUXS', 1) and idx % (4 if E('AUXS', 1) == 1 else 2) == 1 and nw < 28 and not E("NOW2A", 0):
            for l in w2f_load(0, nw): A(l)
            nw += 1
    if s < 3: A("s_waitcnt lgkmcnt(0)")
while nw < 28 and not E("NOW2A", 0):
    for l in w2f_load(0, nw): A(l)
    nw += 1
stamp(5)
A("s_barrier")
for j in range(8):
    A(f"ds_write_b128 v212, v[{ACC+4*j}:{ACC+4*j+3}] offset:{1024*j}")
A("s_waitcnt lgkmcnt(0)\ns_barrier")
PB = 10
for jj in range(2):
    for w_ in range(4):
        A(f"ds_read_b128 v[{PB+16*jj+4*w_}:{PB+16*jj+4*w_+3}], v213 offset:{8192*w_+1024*jj}")
for jj in range(2):
    for c in range(2):
        A(f"ds_read_b64 v[{42+4*jj+2*c}:{43+4*jj+2*c}], v210 offset:{(512 if jj == 0 else 0) + 4608*c}")
A(f"""s_and_b32 s75, s74, s72
s_lshl_b32 s74, s74, 16
s_waitcnt vmcnt({0 if E("NOW2A", 0) else 28})""")
P2 = lambda r: f"v[{r}:{r+1}]"
for jj in range(2):
    P = PB + 16*jj
    X = XV + 4*jj; SA = STV + 8*jj; SB = SA + 4
    t = 50
    for c in range(2):
        q = t + 8*c
        for i in range(4):
            A(f"v_lshlrev_b32 v{q+i}, 16, v{X+i}" if c == 0 else f"v_and_b32 v{q+i}, s72, v{X+i}")
        for i in (0, 2):
            A(f"v_pk_fma_f32 {P2(q+4+i)}, {P2(q+i)}, {P2(SA+i)}, {P2(SB+i)}")
    A(f"s_waitcnt lgkmcnt({8 if jj == 0 else 0})")
    if jj == 0: A("s_waitcnt lgkmcnt(2)")
    for i in (0, 2):
        A(f"v_pk_add_f32 {P2(P+i)}, {P2(P+i)}, {P2(P+4+i)}\nv_pk_add_f32 {P2(P+8+i)}, {P2(P+8+i)}, {P2(P+12+i)}")
    for c in range(2):
        U = 42 + 4*jj + 2*c
        Y = P + 8*c
        u = 66 + 4*c
        A(f"v_and_b32 v{u}, s72, v{U+1}\nv_lshlrev_b32 v{u+1}, 16, v{U+1}\nv_and_b32 v{u+2}, s72, v{U}\nv_lshlrev_b32 v{u+3}, 16, v{U}")
        sel = "op_sel:[0,0,0] op_sel_hi:[1,0,1]" if c == 0 else "op_sel:[0,1,0] op_sel_hi:[1,1,1]"
        for i in (0, 2):
            A(f"v_pk_fma_f32 {P2(Y+i)}, {P2(u+i)}, s[74:75], {P2(Y+i)} {sel}")
        q = t + 8*c
        for i in (0, 2):
            A(f"v_pk_fma_f32 {P2(Y+i)}, {P2(q+4+i)}, {P2(Y+i)}, {P2(q+i)}")
    for i in range(4):
        A(f"v_cvt_pk_bf16_f32 v{74+4*jj+i}, v{P+i}, v{P+8+i}")
    A(f"global_store_dwordx4 v197, v[{74+4*jj}:{77+4*jj}], s[56:57] offset:{1024*jj} sc1")
stamp(6)
A("s_waitcnt vmcnt(0)\ns_barrier")
lw = A.label("s2w0")
wave0_only(lw)
A(f"s_add_u32 s66, s36, {CL_S2}")
emit_signal("s66")
A(f"{lw}:")
stamp(7)
rstamp(34)

A(f"""v_lshrrev_b32 v10, 5, v1
v_bfe_u32 v11, v1, 2, 2
v_lshl_add_u32 v10, v10, 3, v11
v_lshlrev_b32 v10, 8, v10
v_bfe_u32 v12, v1, 4, 1
v_bfe_u32 v13, v1, 1, 1
v_lshl_add_u32 v12, v12, 1, v13
v_lshlrev_b32 v12, 4, v12
v_add_u32 v10, v10, v12
v_and_b32 v12, 1, v1
v_lshl_add_u32 v10, v12, 3, v10
s_lshl_b32 s66, s3, 12
v_add_u32 v10, s66, v10
v_lshlrev_b32 v11, 6, v11""")
for ft in range(4):
    A(f"v_xor_b32 v{2+ft}, {64*ft}, v11\nv_add_u32 v{2+ft}, v{2+ft}, v10\nv_add_u32 v{6+ft}, 65536, v{2+ft}")
A(f"""v_lshlrev_b32 v12, 4, v1
v_add_u32 v12, s66, v12
v_add_u32 v13, 65536, v12
s_lshl_b32 s66, s39, 7
s_lshl_b32 s67, s3, 5
s_add_u32 s66, s66, s67
v_and_b32 v14, 31, v1
v_add_u32 v14, s66, v14
v_lshlrev_b32 v14, 1, v14
global_load_ushort v15, v14, s[24:25]""")
CB = 16
def cv_reads(i):
    L = []
    for ft in range(4):
        base, off = (2+ft, 16384*i) if i < 4 else (6+ft, 16384*(i-4))
        r = CB + 16*i + 4*ft
        L += [f"ds_read_b64_tr_b16 v[{r}:{r+1}], v{base} offset:{off}", f"ds_read_b64_tr_b16 v[{r+2}:{r+3}], v{base} offset:{off+1024}"]
    return L
def cv_writes(i):
    base, off = (12, 16384*i) if i < 4 else (13, 16384*(i-4))
    return [f"ds_write_b128 v{base}, v[{CB+16*i+4*ft}:{CB+16*i+4*ft+3}] offset:{off+1024*ft}" for ft in range(4)]
for l in cv_reads(0): A(l)
for i in range(7):
    if i < 6:
        for l in cv_reads(i+1): A(l)
        A("s_waitcnt lgkmcnt(8)")
    else:
        A("s_waitcnt lgkmcnt(0)")
    for l in cv_writes(i): A(l)
    for kk in range(4*i, 4*i+4):
        for l in w2f_load(1, kk): A(l)
A("s_waitcnt lgkmcnt(0)\ns_barrier")
A(f"""s_lshl_b32 s66, s3, 10
v_lshl_add_u32 v6, v1, 4, s66
v_add_u32 v7, 57344, v6""")
for half in range(2):
    base = "v6" if half == 0 else "v7"
    for k in range(14):
        A(f"ds_read_b128 v[{64+56*half+4*k}:{67+56*half+4*k}], {base} offset:{4096*k}")
    if half == 1: pass
for half in range(2):
    for k in range(14):
        idx = 14*half + k
        A(f"s_waitcnt lgkmcnt({min(15, 27-idx)})")
        for r in range(4):
            reg = 64+56*half+4*k+r
            if idx == 0:
                A(f"v_dot2_f32_bf16 v{42+r}, v{reg}, s73, 0")
            else:
                A(f"v_dot2_f32_bf16 v{42+r}, v{reg}, s73, v{42+r}")
A(f"""s_nop 2
v_add_f32 v42, v42, v43
v_add_f32 v44, v44, v45
s_nop 0
v_add_f32 v42, v42, v44
v_mov_b32 v43, v42
s_nop 1
v_permlane32_swap_b32 v42, v43
s_nop 1
v_add_f32 v42, v42, v43
v_cvt_pk_bf16_f32 v43, -v42, -v42
v_and_b32 v44, s72, v43
v_add_f32 v44, v42, v44
v_cvt_pk_bf16_f32 v44, -v44, -v44
s_waitcnt vmcnt(28)
v_perm_b32 v46, v44, v43, s70
v_perm_b32 v47, v15, v43, s70
v_mov_b32 v48, v15
v_mov_b32 v49, 0
v_cmp_gt_u32 vcc, 32, v1
v_lshlrev_b32 v50, 4, v1
s_lshl_b32 s66, s3, 10
s_add_u32 s66, s66, {L_AUG}
v_cndmask_b32 v46, 0, v46, vcc
v_cndmask_b32 v47, 0, v47, vcc
v_cndmask_b32 v48, 0, v48, vcc
v_add_u32 v50, s66, v50
ds_write_b128 v50, v[46:49]
v_lshrrev_b32 v10, 5, v1
v_lshlrev_b32 v2, 13, v10
v_and_b32 v11, 31, v1
v_lshl_add_u32 v2, v11, 4, v2
s_lshl_b32 s66, s38, 9
s_lshl_b32 s67, s3, 15
s_add_u32 s66, s66, s67
v_add_u32 v2, s66, v2
v_add_u32 v3, 15360, v2
v_lshlrev_b32 v4, 11, v10
v_lshl_add_u32 v4, v11, 2, v4
s_lshl_b32 s66, s3, 7
s_add_u32 s66, s66, {L_X}
v_add_u32 v4, s66, v4""")
srd(48, 56, S*D*2)
A(f"""v_lshlrev_b32 v6, 4, v1
v_add_u32 v7, 57344, v6
v_add_u32 v5, {L_AUG}, v6
s_mov_b32 s77, {'s39' if not E('NOROT2',0) else '0'}
s_lshl_b32 s78, s3, 11
s_add_u32 s78, s78, {L_X}
s_waitcnt lgkmcnt(0)""")
stamp(8)
lw = A.label("s2p")
wave0_only(lw)
A(f"v_and_b32 v16, 7, v1\nv_add_u32 v16, {CL_S2}, v16\nv_lshlrev_b32 v16, 7, v16\nv_mov_b32 v17, 28")
emit_poll("v16", "v17")
A(f"{lw}:\ns_barrier")
stamp(9)
rstamp(35)

BF = 16
TL = [128, 144, 160, 176]
AF = 192
NSLOT = 6; PDC = 5
def dmaH(c, part=None):
    L = [[f"s_add_u32 m0, s78, {8192*(c % NSLOT)}", f"s_mov_b32 s76, {c << 17}", "buffer_load_dwordx4 v2, s[48:51], s76 offen sc1 lds"],
         ["buffer_load_dwordx4 v3, s[48:51], s76 offen offset:1024 sc1 lds"]]
    for p in ((0, 1) if part is None else (part,)):
        for x in L[p]: A(x)
for c in range(PDC): dmaH(c)
for t in range(4):
    A(f"ds_read_b128 a[{224+4*t}:{227+4*t}], v5 offset:{1024*t}")
def afrag_addr(ks, ft):
    return ("v6", 4096*ks + 1024*ft) if ks < 14 else ("v7", 4096*(ks-14) + 1024*ft)
def ldA(ks, ft):
    b, o = afrag_addr(ks, ft)
    r = AF + 16*(ks & 1) + 4*ft
    A(f"ds_read_b128 v[{r}:{r+3}], {b} offset:{o}")
def M(ks, t):
    b = BF + 4*ks
    r = AF + 16*(ks & 1) + 4*t
    cc = "0" if ks == 0 else f"v[{TL[t]}:{TL[t]+15}]"
    A(f"v_mfma_f32_32x32x16_bf16 v[{TL[t]}:{TL[t]+15}], v[{r}:{r+3}], v[{b}:{b+3}], {cc}")
def rdB(c, ksl):
    so = 32*(c % NSLOT)
    b = BF + 4*(2*c + ksl)
    A(f"ds_read2st64_b32 v[{b}:{b+1}], v4 offset0:{so+16*ksl} offset1:{so+16*ksl+2}")
    A(f"ds_read2st64_b32 v[{b+2}:{b+3}], v4 offset0:{so+16*ksl+4} offset1:{so+16*ksl+6}")
for t in range(4): ldA(0, t)
for c in range(15):
    if c < 14:
        A(f"s_waitcnt vmcnt({2*(min(c+PDC-1, 13) - c)}) lgkmcnt(0)")
        A("s_barrier")
    else:
        A("s_waitcnt lgkmcnt(0)")
    if c in (0, 4, 8, 12): stamp(20 + c//4)
    if c == 0:
        rdB(0, 0); rdB(0, 1); dmaH(PDC)
        continue
    k0, k1, k2 = 2*c-2, 2*c-1, 2*c
    M(k0, 0); ldA(k1, 0); ldA(k1, 1)
    M(k0, 1); ldA(k1, 2); ldA(k1, 3)
    M(k0, 2)
    if c < 14: rdB(c, 0)
    M(k0, 3)
    if c < 14: rdB(c, 1)
    A(f"s_waitcnt lgkmcnt({4 if c < 14 else 0})")
    M(k1, 0)
    if c < 14: ldA(k2, 0); ldA(k2, 1)
    M(k1, 1)
    if c < 14: ldA(k2, 2); ldA(k2, 3)
    M(k1, 2)
    if c + PDC <= 13: dmaH(c + PDC, 0)
    M(k1, 3)
    if c + PDC <= 13: dmaH(c + PDC, 1)
stamp(10)
ST0 = 232
for ks in range(28):
    b = BF + 4*ks
    for r in range(4):
        if E("NODOT", 0): continue
        if ks == 0 and r < 2:
            A(f"v_dot2_f32_bf16 v{ST0+(r&1)}, v{b+r}, s73, 0")
            A(f"v_dot2_f32_bf16 v{ST0+2+(r&1)}, v{b+r}, v{b+r}, 0")
        else:
            A(f"v_dot2_f32_bf16 v{ST0+(r&1)}, v{b+r}, s73, v{ST0+(r&1)}")
            A(f"v_dot2_f32_bf16 v{ST0+2+(r&1)}, v{b+r}, v{b+r}, v{ST0+2+(r&1)}")
A(f"""s_nop 1
v_add_f32 v232, v232, v233
v_add_f32 v234, v234, v235
v_mov_b32 v233, v232
v_mov_b32 v235, v234
v_lshlrev_b32 v9, 4, v1
s_nop 0
v_permlane32_swap_b32 v232, v233
v_permlane32_swap_b32 v234, v235
s_mov_b32 s66, 0x3b124925
s_nop 0
v_add_f32 v232, v232, v233
v_add_f32 v234, v234, v235
v_mul_f32 v232, s66, v232
v_mul_f32 v234, s66, v234
v_fma_f32 v234, -v232, v232, v234
v_add_f32 v234, 0x3727c5ac, v234
v_rsq_f32 v235, v234
v_sqrt_f32 v230, v234
s_mov_b32 s66, 0xc0135761
s_mov_b32 s67, 0xbdd2d3e8
v_mul_f32 v229, s66, v235
v_mul_f32 v228, v235, v235
v_mul_f32 v228, v228, v235
v_mul_f32 v228, s67, v228
v_cvt_pk_bf16_f32 v233, v232, v232
v_and_b32 v231, s72, v233
v_sub_f32 v231, v232, v231
v_cvt_pk_bf16_f32 v236, v230, v230
v_and_b32 v237, s72, v236
v_sub_f32 v237, v230, v237
v_and_b32 v225, s72, v236
v_cvt_pk_bf16_f32 v231, v231, v231
v_and_b32 v231, 0xffff, v231
v_or_b32 v225, v225, v231
v_cvt_pk_bf16_f32 v226, v237, 0
v_mov_b32 v224, v233
v_mov_b32 v227, 0
v_cmp_gt_u32 vcc, 32, v1
s_lshl_b32 s66, s38, 2
s_add_u32 s66, s66, s3
v_cndmask_b32 v224, 0, v224, vcc
v_cndmask_b32 v225, 0, v225, vcc
v_cndmask_b32 v226, 0, v226, vcc
s_mul_i32 s66, s66, 56
s_lshl_b32 s67, s39, 2""")
for t in range(4):
    A(f"v_mfma_f32_32x32x16_bf16 v[{TL[t]}:{TL[t]+15}], a[{224+4*t}:{227+4*t}], v[224:227], v[{TL[t]}:{TL[t]+15}]")
A(f"""s_add_u32 s66, s66, s67
s_lshl_b32 s66, s66, 11
v_lshl_add_u32 v8, v1, 4, s66
v_add_u32 v11, 4096, v8""")
GT = 236
def gelu_pk(tile, grp):
    L = []
    w = [TL[tile] + 8*grp + 2*e for e in range(4)]
    t = [GT + 2*e for e in range(4)]
    P = lambda r: f"v[{r}:{r+1}]"
    L += [f"v_pk_mul_f32 {P(t[e])}, {P(w[e])}, {P(w[e])}" for e in range(4)]
    L += [f"v_pk_fma_f32 {P(t[e])}, {P(t[e])}, v[228:229], v[228:229] op_sel:[0,0,1] op_sel_hi:[1,0,1]" for e in range(4)]
    L += [f"v_pk_mul_f32 {P(t[e])}, {P(t[e])}, {P(w[e])}" for e in range(4)]
    L += [f"v_exp_f32 v{t[e]+k}, v{t[e]+k}" for e in range(4) for k in range(2)]
    L += [f"v_pk_fma_f32 {P(t[e])}, {P(t[e])}, v[230:231], v[230:231] op_sel_hi:[1,0,0]" for e in range(4)]
    L += [f"v_rcp_f32 v{t[e]+k}, v{t[e]+k}" for e in range(4) for k in range(2)]
    L += [f"v_pk_mul_f32 {P(w[e])}, {P(w[e])}, {P(t[e])}" for e in range(4)]
    return L
def cvts(tile):
    o = AF + 8*(tile & 1)
    return [f"v_cvt_pk_bf16_f32 v{o+k}, v{TL[tile]+2*k}, v{TL[tile]+2*k+1}" for k in range(8)]
def h_store(tile):
    o = AF + 8*(tile & 1)
    base, off = ("v8", 2048*tile) if tile < 2 else ("v11", 2048*(tile-2))
    return [f"global_store_dwordx4 {base}, v[{o}:{o+3}], s[60:61] offset:{off} sc1", f"global_store_dwordx4 {base}, v[{o+4}:{o+7}], s[60:61] offset:{off+1024} sc1"]
def w2f_loadB(kk):
    return [l.replace("v211", "v9") for l in w2f_load(1, kk)]
stamp(11)
A(f"""s_lshr_b32 s66, s3, 1
s_and_b32 s67, s3, 1
s_lshl_b32 s68, s40, 1
s_add_u32 s68, s68, s66
s_lshl_b32 s68, s68, 7
s_lshl_b32 s69, s41, 1
s_add_u32 s69, s69, s67
s_lshl_b32 s76, s69, 17
s_add_u32 s68, s68, s76
v_lshrrev_b32 v12, 5, v1
v_lshlrev_b32 v13, 14, v12
v_and_b32 v14, 31, v1
v_lshl_add_u32 v13, v14, 2, v13
v_add_u32 v13, s68, v13""")
for j in range(4):
    A(f"buffer_load_dword v{16+2*j}, v13, s[48:51], 0 offen sc1")
    A(f"v_add_u32 v14, 8192, v13")
    A(f"buffer_load_dword v{17+2*j}, v14, s[48:51], 0 offen sc1")
    if j < 3: A("v_add_u32 v13, 32768, v13")
A(f"""s_lshl_b32 s69, s69, 6
v_lshl_add_u32 v12, v12, 3, s69""")
for j in range(4):
    A(f"global_load_dwordx2 v[{24+2*j}:{25+2*j}], v12, s[28:29] offset:{16*j}")
A("s_nop 3")
for t in range(4):
    for grp in range(2):
        for x in gelu_pk(t, grp): A(x)
    for x in cvts(t) + h_store(t): A(x)
stamp(12)
A("s_waitcnt vmcnt(0)\ns_barrier")
lw = A.label("s3w0")
wave0_only(lw)
A(f"s_add_u32 s66, s38, {CL_S3}")
emit_signal("s66")
A(f"{lw}:")
stamp(13)
rstamp(36)

ACC3 = 32; RING = 96; NS = 20
A(f"""s_lshl_b32 s66, s40, 1
s_mul_i32 s66, s66, {112*1024}
s_mul_i32 s67, s3, {28*1024}
s_add_u32 s81, s66, s67
v_lshlrev_b32 v2, 4, v1
v_add_u32 v3, {112*1024}, v2""")
srd(44, 60, S*F*2)
lw = A.label("s3p")
wave0_only(lw)
A(f"s_add_u32 s66, s80, {CL_S3}\ns_lshl_b32 s66, s66, 7\nv_mov_b32 v10, s66")
emit_poll("v10", "14")
A(f"{lw}:\ns_barrier")
stamp(14)
rstamp(37)
def ldH(kk):
    slot = kk % NS
    if kk % 4 == 0:
        A(f"s_add_u32 s82, {'s41' if E('ROT3',0) else '0'}, {kk>>2}\ns_cmp_ge_u32 s82, 7\ns_cselect_b32 s83, 7, 0\ns_sub_u32 s82, s82, s83\ns_lshl_b32 s82, s82, 12\ns_add_u32 s82, s82, s81")
    for tj in range(2):
        r = RING + 8*slot + 4*tj
        if E("NOLD3", 0): continue
        A(f"buffer_load_dwordx4 v[{r}:{r+3}], v{2+tj}, s[44:47], s82 offen offset:{1024*(kk&3)} {'' if E('NOSC3',0) else 'sc1'}")
for kk in range(PD3): ldH(kk)
for kk in range(28):
    A(f"s_waitcnt vmcnt({2*(min(kk+PD3-1, 27) - kk)})")
    slot = kk % NS
    for tj in range(2):
        for dd in range(2):
            T_ = ACC3 + 16*(2*tj + dd)
            a = 4*(dd*28 + kk)
            r = RING + 8*slot + 4*tj
            c = "0" if kk == 0 else f"v[{T_}:{T_+15}]"
            if E("NOMF3", 0): continue
            A(f"v_mfma_f32_32x32x16_bf16 v[{T_}:{T_+15}], a[{a}:{a+3}], v[{r}:{r+3}], {c}")
    if kk + PD3 < 28: ldH(kk + PD3)
stamp(15)
A(f"""v_lshlrev_b32 v4, 4, v1
s_lshl_b32 s66, s3, 14
v_add_u32 v5, s66, v4
s_lshl_b32 s66, s3, 12
v_add_u32 v4, s66, v4
s_lshr_b32 s66, s3, 1
s_and_b32 s67, s3, 1
s_lshl_b32 s68, s40, 1
s_add_u32 s68, s68, s66
s_lshl_b32 s68, s68, 5
v_and_b32 v6, 31, v1
v_add_u32 v6, s68, v6
v_mul_u32_u24 v6, 896, v6
s_lshl_b32 s69, s41, 1
s_add_u32 s69, s69, s67
s_lshl_b32 s69, s69, 6
v_lshrrev_b32 v7, 5, v1
v_lshl_add_u32 v6, v7, 4, v6
v_add_u32 v6, s69, v6""")
for T_ in range(4):
    for q in range(4):
        r = ACC3 + 16*T_ + 4*q
        A(f"ds_write_b128 v5, v[{r}:{r+3}] offset:{4096*T_ + 1024*q}")
for j in range(4):
    for c in range(2):
        k = 4*j + 2*c
        A(f"""v_lshlrev_b32 v{160+k}, 16, v{16+2*j+c}
        v_and_b32 v{161+k}, s72, v{16+2*j+c}
        v_lshlrev_b32 v{176+k}, 16, v{24+2*j+c}
        v_and_b32 v{177+k}, s72, v{24+2*j+c}""")
for k in range(0, 16, 2):
    A(f"v_pk_add_f32 {P2(160+k)}, {P2(160+k)}, {P2(176+k)}")
A("s_waitcnt lgkmcnt(0)\ns_barrier")
RB = 96
for w_ in range(4):
    for q in range(4):
        r = RB + 16*w_ + 4*q
        A(f"ds_read_b128 v[{r}:{r+3}], v4 offset:{16384*w_ + 1024*q}")
A("s_waitcnt lgkmcnt(8)")
for k in range(0, 16, 2): A(f"v_pk_add_f32 {P2(RB+k)}, {P2(RB+k)}, {P2(RB+16+k)}")
for k in range(0, 16, 2): A(f"v_pk_add_f32 {P2(RB+k)}, {P2(RB+k)}, {P2(160+k)}")
A("s_waitcnt lgkmcnt(0)")
for k in range(0, 16, 2): A(f"v_pk_add_f32 {P2(RB+32+k)}, {P2(RB+32+k)}, {P2(RB+48+k)}")
for k in range(0, 16, 2): A(f"v_pk_add_f32 {P2(RB+k)}, {P2(RB+k)}, {P2(RB+32+k)}")
for k in range(8): A(f"v_cvt_pk_bf16_f32 v{192+k}, v{RB+2*k}, v{RB+2*k+1}")
A("""s_nop 1
v_permlane32_swap_b32 v192, v194
v_permlane32_swap_b32 v193, v195
v_permlane32_swap_b32 v196, v198
v_permlane32_swap_b32 v197, v199
s_nop 1
global_store_dwordx4 v6, v[192:195], s[30:31]
global_store_dwordx4 v6, v[196:199], s[30:31] offset:32""")
stamp(16)
rstamp(38)
A("s_branch L_END")

A(f"""L_OTHER:
s_cmp_ge_u32 s2, {NWG}
s_cbranch_scc1 L_END
v_and_b32 v1, 63, v0
v_lshrrev_b32 v2, 6, v0
s_nop 0
v_readfirstlane_b32 s3, v2
s_waitcnt lgkmcnt(0)
s_cmp_lg_u32 s2, {NMAIN}
s_cbranch_scc1 L_PREF
v_mov_b32 v4, 0
v_mov_b32 v5, 0
v_mov_b32 v6, 0
v_mov_b32 v7, 0
v_lshlrev_b32 v2, 4, v0
global_store_dwordx4 v2, v[4:7], s[34:35] sc1
v_add_u32 v3, 4096, v2
global_store_dwordx4 v3, v[4:7], s[34:35] sc1
s_waitcnt vmcnt(0)
s_barrier
s_cmp_lg_u32 s3, 0
s_cbranch_scc1 L_END
v_mov_b32 v2, 0
v_mov_b32 v3, 1
s_mov_b64 exec, 1
global_store_dword v2, v3, s[32:33] sc1""")
A(f"""s_branch L_END
L_PREF:""")
A(f"""v_min_u32 v2, 8, v1
v_lshlrev_b32 v2, 21, v2
v_add_u32 v2, {0x100000}, v2
global_load_dword v8, v2, s[34:35]
v_mov_b32 v3, 0
global_load_dword v9, v3, s[30:31]
global_load_dword v10, v3, s[22:23]
global_load_dword v11, v3, s[26:27]
global_load_dword v12, v3, s[16:17]
global_load_dword v13, v3, s[24:25]
global_load_dword v14, v3, s[28:29]
global_load_dword v15, v3, s[18:19]
global_load_dword v16, v3, s[34:35]""")
if E("HW1", 0):
    A(f"""s_sub_u32 s66, s2, {NMAIN+1}
    s_mul_i32 s66, s66, {52*1024}
    s_lshl_b32 s67, s3, 10
    s_add_u32 s66, s66, s67
    v_lshl_add_u32 v2, v1, 4, s66""")
    srd(44, 22, D*F*2)
    A("s_mov_b32 s69, 0")
    for j in range(13):
        A(f"buffer_load_dwordx4 v[{20+4*j}:{23+4*j}], v2, s[44:47], s69 offen\ns_add_u32 s69, s69, 4096")
A("s_waitcnt vmcnt(0)")
A("""L_END:
s_endpgm
L_CODE_END:""")

errs = check_hazards(A.lines)
for e in errs: print("HAZARD:", e, file=sys.stderr)
hdr = open(f"cdna_kernels/{NAME}.s.ref").read().split(".amdgcn_target")[0]
hdr = "\n".join(l for l in hdr.splitlines() if not l.startswith("; @launch"))
out = [hdr.rstrip(), f"; @launch grid=({NWG},1,1) block=(256,1,1) lds={LDS_BYTES}",
 '.amdgcn_target "amdgcn-amd-amdhsa--gfx950"', ".text", f".globl {KN}", ".p2align 8", f".type {KN},@function", f"{KN}:",
 A.text(), '.section .rodata,"a"', ".p2align 6", f".amdhsa_kernel {KN}",
 "  .amdhsa_next_free_vgpr 512", "  .amdhsa_next_free_sgpr 100", "  .amdhsa_accum_offset 256", "  .amdhsa_group_segment_fixed_size 0",
 "  .amdhsa_kernarg_size 112", "  .amdhsa_user_sgpr_count 2", "  .amdhsa_user_sgpr_kernarg_segment_ptr 1", "  .amdhsa_system_sgpr_workgroup_id_x 1",
 "  .amdhsa_float_denorm_mode_32 3", ".end_amdhsa_kernel", ""]
dst = os.environ.get("OUT", f"cdna_kernels/{NAME}.s")
open(dst, "w").write("\n".join(out))
print("wrote", dst, "instructions:", sum(1 for l in A.lines if not l.endswith(':')), "hazards:", len(errs))
```

```python
import sys, os
sys.path.insert(0, os.path.dirname(os.path.abspath(__file__)))
from asmlib import *

NAME = "sequential_preLN__ssm_conv_h3__dense_activation_gelu__prompt"
E = lambda k, d: int(os.environ.get(k, str(d)))
STAMPS = E("STAMPS", 0)
PD2 = E("PD2", 11)
PD3 = E("PD3", 6)
W1THR = E("W1THR", 0)
NMAIN = 224
NHELP = E("NHELP", 8)
NWG = NMAIN + 1 + NHELP
S, D, F = 2048, 448, 1792
WS_STAMP = 0x80000
WS_UR = 0x100000
WS_X2 = 0x300000
WS_H2 = 0x500000
WS_ST = 0x700000
WS_W2F = 0x800000
WS_HF = 0xA00000
CL_S1 = 0; CL_AUX = 8; CL_S2 = 16; CL_S3 = 32
L_W1 = 0
L_X = 0x1C000
L_UT = L_X + 0x0000
L_XT = L_X + 0x2000
L_KA = L_X + 0x4000 + 64
L_UR = L_X + 0x8100
L_AUG = L_X + 0xA500
L_CNT = L_X + 0xB600
LDS_BYTES = 163840
SPIN = 2000000
KN = NAME + "_kernel"

A = Asm()

def stamp(i, wave=0):
    if not STAMPS: return
    l = A.label("st")
    A(f"""s_cmp_lg_u32 s3, {wave}
    s_cbranch_scc1 {l}
    s_memtime s[92:93]
    s_waitcnt lgkmcnt(0)
    s_lshl_b32 s94, s2, 8
    s_add_u32 s94, s94, {WS_STAMP + 4*i}
    v_mov_b32 v250, s94
    v_mov_b32 v251, s92
    s_mov_b64 s[90:91], exec
    s_mov_b64 exec, 1
    global_store_dword v250, v251, s[34:35]
    s_mov_b64 exec, s[90:91]
    {l}:""")

def rstamp(i, xcc=False):
    if not STAMPS: return
    l = A.label("rt")
    A(f"""s_cmp_lg_u32 s3, 0
    s_cbranch_scc1 {l}
    {"s_getreg_b32 s92, hwreg(HW_REG_XCC_ID)" if xcc else "s_memrealtime s[92:93]"}
    s_waitcnt lgkmcnt(0)
    s_lshl_b32 s94, s2, 8
    s_add_u32 s94, s94, {WS_STAMP + 4*i}
    v_mov_b32 v250, s94
    v_mov_b32 v251, s92
    s_mov_b64 s[90:91], exec
    s_mov_b64 exec, 1
    global_store_dword v250, v251, s[34:35]
    s_mov_b64 exec, s[90:91]
    {l}:""")

def wave0_only(label):
    A(f"s_cmp_lg_u32 s3, 0\ns_cbranch_scc1 {label}")

def emit_signal(line_sreg):
    A(f"""s_lshl_b32 s67, {line_sreg}, 7
    v_mov_b32 v245, s67
    v_mov_b32 v246, 1
    s_mov_b64 s[64:65], exec
    s_mov_b64 exec, 1
    global_atomic_add v245, v246, s[34:35] sc1
    s_mov_b64 exec, s[64:65]""")

def emit_poll(addr_v, target, base="s[34:35]", tmp="v247"):
    lp = A.label("poll"); done = A.label("polld")
    A(f"""s_mov_b32 s68, {SPIN}
    {lp}:
    global_load_dword {tmp}, {addr_v}, {base} sc1
    s_waitcnt vmcnt(0)
    v_cmp_ne_u32 vcc, {target}, {tmp}
    s_cbranch_vccz {done}
    s_sub_u32 s68, s68, 1
    s_cmp_lg_u32 s68, 0
    s_cbranch_scc1 {lp}
    {done}:""")

def ws_base(sreg, off):
    A(f"s_add_u32 s{sreg}, s34, {off}\ns_addc_u32 s{sreg+1}, s35, 0")

def srd(base, ptr, size):
    A(f"s_mov_b32 s{base}, s{ptr}\ns_mov_b32 s{base+1}, s{ptr+1}\ns_mov_b32 s{base+2}, {size}\ns_mov_b32 s{base+3}, 0x20000")

if STAMPS: A("s_memrealtime s[78:79]")
A(f"""s_load_dwordx16 s[8:23], s[0:1], 0""")
A("s_getpc_b64 s[88:89]\nL_PC:")
if E("PF0", 0):
    A(f"""v_lshlrev_b32 v6, 4, v0
    global_load_dwordx4 v[116:119], v6, s[88:89] offset:{E("PFOFF", 128)}""")
A(f"""s_load_dwordx8 s[24:31], s[0:1], 64
s_load_dwordx4 s[32:35], s[0:1], 96
s_cmp_ge_u32 s2, {NMAIN}
s_cbranch_scc1 L_OTHER
s_lshr_b32 s42, s2, 5
s_and_b32 s43, s2, 31
v_lshrrev_b32 v2, 3, v0
v_and_b32 v3, 7, v0
s_mul_i32 s66, s43, {64*896}
s_lshl_b32 s67, s42, 7
s_add_u32 s66, s66, s67
v_mul_u32_u24 v4, 1792, v2
v_lshl_add_u32 v4, v3, 4, v4
v_add_u32 v7, s66, v4
v_subrev_u32 v92, 2688, v7
v_subrev_u32 v93, 1792, v7
v_subrev_u32 v94, 896, v7
s_lshl_b32 s67, s42, 9
v_lshl_add_u32 v8, v3, 6, s67
s_mov_b32 s46, {S*D*2}
s_mov_b32 s47, 0x20000
s_waitcnt lgkmcnt(0)""")
if STAMPS: A("s_memrealtime s[96:97]")
A(f"""s_mov_b32 s44, s10
s_mov_b32 s45, s11
buffer_load_dwordx4 v[10:13], v92, s[44:47], 0 offen
buffer_load_dwordx4 v[14:17], v93, s[44:47], 0 offen
buffer_load_dwordx4 v[18:21], v94, s[44:47], 0 offen
buffer_load_dwordx4 v[22:25], v7, s[44:47], 0 offen
buffer_load_dwordx4 v[26:29], v7, s[44:47], 0 offen offset:896
global_load_dwordx4 v[30:33], v7, s[12:13]
global_load_dwordx4 v[34:37], v7, s[12:13] offset:896
global_load_dwordx4 v[46:49], v8, s[14:15]
global_load_dwordx4 v[50:53], v8, s[14:15] offset:16
global_load_dwordx4 v[54:57], v8, s[14:15] offset:32
global_load_dwordx4 v[58:61], v8, s[14:15] offset:48
global_load_dwordx4 v[38:41], v7, s[8:9]
global_load_dwordx4 v[42:45], v7, s[8:9] offset:896
v_and_b32 v1, 63, v0
v_lshrrev_b32 v5, 6, v0
s_mov_b32 s70, 0x05040100
s_mov_b32 s71, 0x07060302
v_readfirstlane_b32 s3, v5
s_mov_b32 s72, 0xffff0000
s_mov_b32 s73, 0x3f803f80
s_lshr_b32 s37, s2, 3""")
A(f"""s_lshr_b32 s66, s2, 1
s_mul_i32 s66, s66, {16*896}
s_and_b32 s67, s2, 1
s_mul_i32 s67, s67, 448
s_add_u32 s66, s66, s67
s_mov_b32 s67, 2341
v_mul_lo_u32 v110, v0, s67
v_lshrrev_b32 v110, 16, v110
v_mul_u32_u24 v111, 28, v110
v_sub_u32 v111, v0, v111
v_mul_u32_u24 v110, 896, v110
v_lshl_add_u32 v110, v111, 4, v110
v_add_u32 v110, s66, v110
v_add_u32 v112, 256, v0
v_mul_lo_u32 v113, v112, s67
v_lshrrev_b32 v113, 16, v113
v_mul_u32_u24 v111, 28, v113
v_sub_u32 v111, v112, v111
v_mul_u32_u24 v113, 896, v113
v_lshl_add_u32 v113, v111, 4, v113
v_add_u32 v113, s66, v113
s_lshl_b32 s66, s37, 10
s_min_u32 s66, s66, L_CODE_END-{KN}-1024
v_lshl_add_u32 v114, v1, 4, s66
s_lshl_b32 s69, s3, 10
s_add_u32 m0, s69, {L_W1}
s_nop 0
global_load_lds_dwordx4 v110, s[26:27]""")
l3 = A.label("x3"); lx = A.label("xd")
A(f"""s_cmp_eq_u32 s3, 3
s_cbranch_scc1 {l3}
s_add_u32 m0, m0, 4096
s_nop 0
global_load_lds_dwordx4 v113, s[26:27]
s_branch {lx}
{l3}:
s_sub_u32 s88, s88, L_PC-{KN}
s_subb_u32 s89, s89, 0
global_load_dwordx4 v[116:119], v114, s[88:89]
{lx}:""")
lns = A.label("nost")
A(f"""s_mov_b32 s76, 0
s_cmp_lt_u32 s3, 2
s_cbranch_scc1 {lns}""")
srd(48, 16, D*S*2)
A(f"""v_lshlrev_b32 v115, 4, v1
s_sub_u32 s66, s3, 2
s_lshl_b32 s67, s2, 1
s_add_u32 s67, s67, s66
s_lshl_b32 s67, s67, 12
s_load_dword s77, s[16:17], s67
s_mul_i32 s66, s66, 8320
s_add_u32 m0, s66, {L_KA}
s_add_u32 s79, s66, {L_KA + 4160 - 4}""")
for j in range(4):
    A(f"s_nop 0\nbuffer_load_dwordx4 v115, s[48:51], s67 offen lds\ns_add_u32 m0, m0, 1024\ns_add_u32 s67, s67, 1024")
A(f"s_add_u32 m0, m0, {4160-4096}\ns_sub_u32 s67, s67, {4096-2}")
for j in range(4):
    A(f"s_nop 0\nbuffer_load_dwordx4 v115, s[48:51], s67 offen lds\ns_add_u32 m0, m0, 1024\ns_add_u32 s67, s67, 1024")
A(f"""s_cmp_lt_u32 s42, 4
s_cbranch_scc0 {lns}
s_mov_b32 s76, 1
s_lshl_b32 s66, s43, 6
s_lshl_b32 s67, s42, 4
s_add_u32 s66, s66, s67
s_sub_u32 s67, s3, 2
s_lshl_b32 s67, s67, 3
s_add_u32 s66, s66, s67
v_lshrrev_b32 v120, 3, v1
v_add_u32 v120, s66, v120
v_mul_u32_u24 v121, 896, v120
v_and_b32 v122, 7, v1
v_lshl_add_u32 v121, v122, 4, v121""")
for i in range(7):
    A(f"global_load_dwordx4 v[{64+4*i}:{67+4*i}], v121, s[8:9] offset:{128*i}")
A(f"{lns}:")
ws_base(52, WS_UR); ws_base(54, WS_X2); ws_base(56, WS_H2); ws_base(58, WS_ST); ws_base(60, WS_HF); ws_base(62, WS_W2F)
stamp(0)
rstamp(30)
rstamp(31, True)
if STAMPS:
    for (i, r) in ((28, 78), (29, 96)):
        l = A.label("rt0")
        A(f"""s_cmp_lg_u32 s3, 0
        s_cbranch_scc1 {l}
        s_lshl_b32 s94, s2, 8
        s_add_u32 s94, s94, {WS_STAMP + 4*i}
        v_mov_b32 v250, s94
        v_mov_b32 v251, s{r}
        s_mov_b64 s[90:91], exec
        s_mov_b64 exec, 1
        global_store_dword v250, v251, s[34:35]
        s_mov_b64 exec, s[90:91]
        {l}:""")
A(f"""v_sub_u32 v96, 31, v2
v_lshrrev_b32 v97, 2, v96
v_xor_b32 v97, v97, v3
v_lshlrev_b32 v97, 4, v97
v_and_b32 v96, 3, v96
v_lshl_add_u32 v97, v96, 2, v97
v_lshl_add_u32 v95, v3, 10, v97
v_add_u32 v95, {L_UT}, v95
v_lshrrev_b32 v96, 1, v2
v_xor_b32 v96, v96, v3
v_lshlrev_b32 v96, 4, v96
v_and_b32 v97, 1, v2
v_lshl_add_u32 v96, v97, 3, v96
v_lshl_add_u32 v96, v3, 10, v96
v_add_u32 v96, {L_XT}, v96
v_lshrrev_b32 v98, 6, v0
v_xor_b32 v99, v3, v98
v_lshlrev_b32 v99, 4, v99
v_lshl_add_u32 v100, v2, 7, v99
v_add_u32 v100, {L_UT}, v100
s_lshl_b32 s66, s42, 18
s_sub_u32 s67, 31, s43
s_lshl_b32 s67, s67, 7
s_add_u32 s66, s66, s67
v_lshlrev_b32 v102, 12, v2
v_lshl_add_u32 v102, v3, 4, v102
v_add_u32 v102, s66, v102
v_and_b32 v104, 15, v0
v_lshrrev_b32 v105, 4, v0
v_xor_b32 v106, v104, v98
v_lshlrev_b32 v106, 4, v106
v_lshl_add_u32 v106, v105, 8, v106
v_add_u32 v106, {L_XT}, v106
s_lshl_b32 s66, s42, 18
s_lshl_b32 s67, s43, 8
s_add_u32 s66, s66, s67
v_lshlrev_b32 v108, 13, v105
v_lshl_add_u32 v108, v104, 4, v108
v_add_u32 v108, s66, v108
v_mov_b32 v101, {L_CNT}
v_mov_b32 v103, 0
ds_write2_b32 v101, v103, v103 offset1:1""")
A(f"""v_lshrrev_b32 v123, 5, v1
v_bfe_u32 v124, v1, 2, 2
v_lshl_add_u32 v123, v123, 2, v124
v_mul_u32_u24 v123, 448, v123
v_bfe_u32 v124, v1, 4, 1
v_lshl_add_u32 v123, v124, 5, v123
v_and_b32 v124, 3, v1
v_lshl_add_u32 v123, v124, 3, v123
s_lshl_b32 s66, s3, 6
s_add_u32 s66, s66, {L_W1}
v_add_u32 v123, s66, v123
s_and_b32 s66, s2, 1
s_mul_i32 s66, s66, 7
s_add_u32 s66, s66, s3
s_mul_i32 s66, s66, 112
s_lshr_b32 s67, s2, 1
s_add_u32 s66, s66, s67
s_lshl_b32 s66, s66, 10
v_lshl_add_u32 v124, v1, 4, s66""")
def p0wait(base):
    l1 = A.label("wa"); l2 = A.label("wb"); l3_ = A.label("wc")
    A(f"""s_cmp_ge_u32 s3, 2
    s_cbranch_scc1 {l3_}
    s_waitcnt vmcnt({base})
    s_branch {l2}
    {l3_}:
    s_cmp_eq_u32 s76, 0
    s_cbranch_scc1 {l1}
    s_waitcnt vmcnt({base+15})
    s_branch {l2}
    {l1}:
    s_waitcnt vmcnt({base+8})
    {l2}:""")
p0wait(4)
K = lambda j, p: f"v{10 + 4*j + p}"
T = 126
for p in range(4):
    seq = []
    for half in range(2):
        i = 2*p + half
        sel = "s70" if half == 0 else "s71"
        t = T + 8*half
        seq.append([
            f"v_perm_b32 v{t}, {K(2,p)}, {K(3,p)}, {sel}",
            f"v_perm_b32 v{t+1}, {K(0,p)}, {K(1,p)}, {sel}",
            f"v_perm_b32 v{t+2}, {K(3,p)}, {K(4,p)}, {sel}",
            f"v_perm_b32 v{t+3}, {K(1,p)}, {K(2,p)}, {sel}",
            f"v_dot2_f32_bf16 v{t+4}, v{t}, v{46+2*i}, 0",
            f"v_dot2_f32_bf16 v{t+5}, v{t+2}, v{46+2*i}, 0",
            f"v_dot2_f32_bf16 v{t+4}, v{t+1}, v{47+2*i}, v{t+4}",
            f"v_dot2_f32_bf16 v{t+5}, v{t+3}, v{47+2*i}, v{t+5}",
            (f"v_lshlrev_b32 v{t+6}, 16, v{30+p}" if half == 0 else f"v_and_b32 v{t+6}, s72, v{30+p}"),
            (f"v_lshlrev_b32 v{t+7}, 16, v{34+p}" if half == 0 else f"v_and_b32 v{t+7}, s72, v{34+p}"),
            f"v_mul_f32 v{t+4}, v{t+4}, v{t+6}",
            f"v_mul_f32 v{t+5}, v{t+5}, v{t+7}",
            f"v_cvt_pk_bf16_f32 v{t+4}, v{t+5}, v{t+4}",
            f"ds_write_b32 v95, v{t+4} offset:{128*i}",
        ])
    for k in range(len(seq[0])):
        A(seq[0][k]); A(seq[1][k])
p0wait(0)
for p in range(4):
    A(f"ds_write2_b32 v96, v{38+p}, v{42+p} offset0:{64*p} offset1:{64*p+1}")
A("""s_waitcnt lgkmcnt(0)
s_barrier""")
A(f"""s_and_b32 s36, s2, 7
s_mul_i32 s66, s37, 37
s_lshr_b32 s66, s66, 8
s_mul_i32 s67, s66, 7
s_sub_u32 s41, s37, s67
s_lshl_b32 s40, s36, 2
s_add_u32 s40, s40, s66
s_lshr_b32 s80, s40, 1
s_lshr_b32 s38, s36, 1
s_lshl_b32 s38, s38, 2
s_add_u32 s38, s38, s66
s_and_b32 s39, s36, 1
s_mul_i32 s39, s39, 7
s_add_u32 s39, s39, s41""")
ldmaw = A.label("dmaw"); laddr = A.label("w1addr"); ljoin = A.label("w1join")
A(f"s_cmp_ge_u32 s3, 2\ns_cbranch_scc1 {ldmaw}")
for q in range(4):
    if q == 0:
        A("ds_read_b128 v[10:13], v100\nds_read_b128 v[26:29], v106")
    else:
        A(f"v_xor_b32 v110, {32*q}, v100\nv_xor_b32 v111, {32*q}, v106\nds_read_b128 v[{10+4*q}:{13+4*q}], v110 offset:{2048*q}\nds_read_b128 v[{26+4*q}:{29+4*q}], v111 offset:{2048*q}")
for j in range(4):
    A(f"ds_read_b64_tr_b16 v[{42+4*j}:{43+4*j}], v123 offset:{128*j}\nds_read_b64_tr_b16 v[{44+4*j}:{45+4*j}], v123 offset:{128*j+3584}")
A("v_mov_b32 v248, 0\nglobal_load_dword v249, v248, s[32:33] sc1\ns_waitcnt lgkmcnt(0)")
for q in range(4):
    A(f"global_store_dwordx4 v102, v[{10+4*q}:{13+4*q}], s[52:53] sc1")
    if q < 3: A("v_add_u32 v102, 65536, v102")
for q in range(4):
    A(f"global_store_dwordx4 v108, v[{26+4*q}:{29+4*q}], s[54:55] sc1")
    if q < 3: A("v_add_u32 v108, 65536, v108")
lsk = A.label("w2s"); lsk2 = A.label("w2t")
for j in range(3):
    A(f"global_store_dwordx4 v124, v[{42+4*j}:{45+4*j}], s[62:63] sc1")
    A(f"v_add_u32 v124, {2*112*1024}, v124")
A(f"""s_cmp_eq_u32 s3, 1
s_cbranch_scc1 {lsk}
global_store_dwordx4 v124, v[54:57], s[62:63] sc1
s_branch {lsk2}
{lsk}:
v_subrev_u32 v124, {2*112*1024}, v124
s_nop 0
global_store_dwordx4 v124, v[50:53], s[62:63] sc1
{lsk2}:
s_barrier""")
stamp(1)
def lds_count_signal(off, last, build_addr):
    ln = A.label("nl")
    A(f"""v_mov_b32 v110, 1
    s_mov_b64 s[64:65], exec
    s_mov_b64 exec, 1
    ds_add_rtn_u32 v111, v101, v110 offset:{off}
    s_waitcnt lgkmcnt(0)
    v_readfirstlane_b32 s66, v111
    s_mov_b64 exec, s[64:65]
    s_cmp_eq_u32 s66, {last}
    s_cbranch_scc0 {ln}""")
    lio = A.label("initok")
    A(f"v_cmp_ne_u32 vcc, 1, v249\ns_cbranch_vccz {lio}")
    emit_poll("v248", 1, base="s[32:33]")
    A(f"v_mov_b32 v249, 1\n{lio}:")
    A(build_addr)
    emit_signal("s66")
    A(f"{ln}:")
A("s_waitcnt vmcnt(8)")
lds_count_signal(0, 1, "s_mov_b32 s66, s42")
stamp(2)
rstamp(32)
A("s_waitcnt vmcnt(0)")
lds_count_signal(4, 3, f"s_add_u32 s66, s36, {CL_AUX}")
A(f"""v_lshrrev_b32 v10, 5, v1
v_mul_u32_u24 v10, 4608, v10
v_and_b32 v11, 31, v1
v_lshl_add_u32 v10, v11, 4, v10
v_add_u32 v10, {L_UR + 4096}, v10
v_mov_b32 v12, 0
v_mov_b32 v13, 0
v_mov_b32 v14, 0
v_mov_b32 v15, 0
ds_write_b128 v10, v[12:15]
s_branch {laddr}""")
A(f"{ldmaw}:")
srd(44, 22, D*F*2)
A(f"""v_lshrrev_b32 v11, 4, v1
v_lshlrev_b32 v12, 2, v11
v_and_b32 v13, 15, v1
v_xor_b32 v12, v12, v13
v_lshlrev_b32 v12, 4, v12
v_mul_u32_u24 v11, 3584, v11
v_add_u32 v11, v11, v12
s_lshl_b32 s66, s39, 8
v_add_u32 v11, s66, v11
v_mov_b32 v13, s79
s_lshl_b32 s77, s77, 16
v_mov_b32 v12, s77
ds_write_b32 v13, v12
v_mov_b32 v248, 0
global_load_dword v249, v248, s[32:33] sc1
s_barrier""")
lns = A.label("nost2")
A(f"s_cmp_eq_u32 s76, 0\ns_cbranch_scc1 {lns}")
b = 64
A("s_waitcnt vmcnt(1)")
A(f"v_dot2_f32_bf16 v16, v{b}, s73, 0\nv_dot2_f32_bf16 v17, v{b}, v{b}, 0\nv_dot2_f32_bf16 v18, v{b+1}, s73, 0\nv_dot2_f32_bf16 v19, v{b+1}, v{b+1}, 0")
for i in range(2, 28, 2):
    A(f"v_dot2_f32_bf16 v16, v{b+i}, s73, v16\nv_dot2_f32_bf16 v17, v{b+i}, v{b+i}, v17\nv_dot2_f32_bf16 v18, v{b+i+1}, s73, v18\nv_dot2_f32_bf16 v19, v{b+i+1}, v{b+i+1}, v19")
A("""s_nop 2
v_add_f32 v16, v16, v18
v_add_f32 v17, v17, v19
s_nop 1
v_add_f32_dpp v16, v16, v16 quad_perm:[1,0,3,2] row_mask:0xf bank_mask:0xf
v_add_f32_dpp v17, v17, v17 quad_perm:[1,0,3,2] row_mask:0xf bank_mask:0xf
s_nop 1
v_add_f32_dpp v16, v16, v16 quad_perm:[2,3,0,1] row_mask:0xf bank_mask:0xf
v_add_f32_dpp v17, v17, v17 quad_perm:[2,3,0,1] row_mask:0xf bank_mask:0xf
s_nop 1
v_add_f32_dpp v16, v16, v16 row_half_mirror row_mask:0xf bank_mask:0xf
v_add_f32_dpp v17, v17, v17 row_half_mirror row_mask:0xf bank_mask:0xf
s_mov_b32 s66, 0x3b124925
v_mul_f32 v16, s66, v16
v_mul_f32 v17, s66, v17
v_fma_f32 v17, -v16, v16, v17
v_add_f32 v17, 0x3727c5ac, v17
v_rsq_f32 v17, v17
v_lshlrev_b32 v120, 2, v120
v_cmp_eq_u32 vcc, 0, v122
v_mul_f32 v18, -v16, v17
v_add_u32 v121, 8192, v120
s_and_saveexec_b64 s[64:65], vcc
global_store_dword v120, v17, s[58:59] sc1
global_store_dword v121, v18, s[58:59] sc1
s_mov_b64 exec, s[64:65]""")
A(f"{lns}:\ns_waitcnt vmcnt(0)")
lds_count_signal(4, 3, f"s_add_u32 s66, s36, {CL_AUX}")
lg = A.label("gate")
A(f"""{lg}:
ds_read_b64 v[12:13], v101
s_waitcnt lgkmcnt(0)
v_add_u32 v12, v12, v13
s_nop 0
v_readfirstlane_b32 s66, v12
s_nop 0
s_cmp_lt_u32 s66, 6
s_cbranch_scc1 {lg}
s_sub_u32 s66, s3, 2
s_mul_i32 s66, s66, 56
s_mul_i32 s67, s66, 14336
s_lshl_b32 s66, s66, 10
s_add_u32 m0, s66, {L_W1}
s_mov_b32 s69, 14""")
lp = A.label("w1l")
A(f"{lp}:")
for j in range(4):
    if E("NOW1", 0): continue
    A(f"s_nop 0\nbuffer_load_dwordx4 v11, s[44:47], s67 offen lds\ns_add_u32 m0, m0, 1024\ns_add_u32 s67, s67, 14336")
A(f"""s_sub_u32 s69, s69, 1
s_cmp_lg_u32 s69, 0
s_cbranch_scc1 {lp}""")
stamp(24, 3)
if E("FLOODWAIT", 0):
    A("s_waitcnt vmcnt(0)")
    stamp(25, 3)
A(f"{laddr}:")
XV, STV = 170, 178
A(f"""s_lshl_b32 s66, s2, 2
s_load_dword s74, s[18:19], s66
v_and_b32 v194, 15, v1
v_lshrrev_b32 v195, 4, v1
v_lshlrev_b32 v196, 4, v194
v_lshl_add_u32 v196, v195, 2, v196
s_lshl_b32 s66, s3, 9
v_add_u32 v196, s66, v196
v_lshlrev_b32 v197, 2, v196
v_mov_b32 v198, v197
s_lshl_b32 s66, s2, 13
v_add_u32 v197, s66, v197
s_lshr_b32 s66, s3, 1
s_and_b32 s67, s3, 1
s_mul_i32 s68, s66, 8320
s_lshl_b32 s69, s67, 8
s_sub_u32 s68, s68, s69
s_add_u32 s68, s68, {L_KA - 32}
v_add_u32 v199, 1, v194
v_lshrrev_b32 v199, 1, v199
v_lshl_add_u32 v199, v195, 2, v199
v_lshlrev_b32 v199, 2, v199
v_and_b32 v200, 1, v194
v_cmp_eq_u32 vcc, 0, v200
v_mov_b32 v201, 4160
v_add_u32 v199, s68, v199
v_cndmask_b32 v201, 0, v201, vcc
v_add_u32 v199, v199, v201
v_add_u32 v200, 1024, v199
v_add_u32 v201, 2048, v199
v_add_u32 v202, 3072, v199
s_mul_i32 s68, s66, 4608
s_sub_u32 s68, s68, s69
s_add_u32 s68, s68, {L_UR + 736}
v_lshlrev_b32 v203, 5, v194
v_sub_u32 v203, s68, v203
v_lshl_add_u32 v203, v195, 4, v203
s_cmp_eq_u32 s67, 0
s_cselect_b32 s68, 64, 0
v_lshl_add_u32 v204, v195, 3, v194
v_add_u32 v204, s68, v204
s_mov_b32 s75, 0xffff""")
for k in range(4):
    A(f"""v_cmp_le_u32 vcc, {15-2*k}, v204
    v_mov_b32 v205, s75
    s_nop 0
    v_cndmask_b32 v{206+k}, 0, v205, vcc
    v_cmp_le_u32 vcc, {14-2*k}, v204
    v_mov_b32 v205, s72
    s_nop 0
    v_cndmask_b32 v205, 0, v205, vcc
    v_or_b32 v{206+k}, v{206+k}, v205""")
A(f"""v_lshlrev_b32 v211, 4, v1
s_lshl_b32 s66, s3, 13
v_add_u32 v212, s66, v211
v_add_u32 v212, {L_X}, v212
s_lshl_b32 s66, s3, 11
v_add_u32 v213, s66, v211
v_add_u32 v213, {L_X}, v213
s_lshl_b32 s66, s3, 10
s_sub_u32 s66, {L_UR + 4088 - 512}, s66
v_lshlrev_b32 v210, 5, v194
v_lshl_add_u32 v210, v195, 3, v210
v_sub_u32 v210, s66, v210
v_and_b32 v214, 7, v1
v_add_u32 v214, {CL_AUX}, v214
v_lshlrev_b32 v214, 7, v214
s_mul_i32 s66, s41, {2*112*1024}
s_mul_i32 s67, s3, {28*1024}
s_add_u32 s81, s66, s67
s_and_b32 s67, s3, 1
s_mul_i32 s67, s67, {112*1024}
s_add_u32 s95, s81, {112*1024}
s_sub_u32 s95, s95, s67
s_add_u32 s81, s81, s67""")
srd(84, 62, F*D*2)
ACC = 138
for j in range(32): A(f"v_mov_b32 v{ACC+j}, 0")
lnw0 = A.label("w1n0")
A(f"s_cmp_lg_u32 s3, 0\ns_cbranch_scc1 {lnw0}")
A(f"s_lshl_b32 s66, s42, 7\nv_mov_b32 v16, s66")
emit_poll("v16", "32")
stamp(3)
A(f"""v_lshlrev_b32 v10, 4, v1
s_lshl_b32 s66, s2, 13
v_add_u32 v10, s66, v10
s_mov_b32 m0, {L_UR}""")
for c in range(2):
    for j in range(4):
        A(f"s_nop 0\nglobal_load_lds_dwordx4 v10, s[52:53] sc1\nv_add_u32 v10, 1024, v10\ns_add_u32 m0, m0, {1024 if j < 3 else 4608-3072}")
A(f"""s_waitcnt vmcnt(0) lgkmcnt(0)
s_branch {ljoin}
{lnw0}:
s_cmp_eq_u32 s3, 1
s_cbranch_scc1 {ljoin}
s_waitcnt vmcnt({0 if E("NOW1", 0) else 56}) lgkmcnt(0)
{ljoin}:
s_barrier""")
stamp(4)
rstamp(33)

AB = [10, 42]; UB = [74, 106]
def conv_loads(s, buf):
    L = []
    for m in range(8):
        L.append(f"ds_read_b128 v[{UB[buf]+4*m}:{UB[buf]+4*m+3}], v203 offset:{64*(59-8*m-s)}")
    for n in range(8):
        base = 199 + (n >> 1)
        o = (n & 1)*128 + 16*(7-s)
        L.append(f"ds_read2_b32 v[{AB[buf]+4*n}:{AB[buf]+4*n+1}], v{base} offset0:{o} offset1:{o+1}")
        L.append(f"ds_read2_b32 v[{AB[buf]+4*n+2}:{AB[buf]+4*n+3}], v{base} offset0:{o+2} offset1:{o+3}")
    return L
def w2f_load(dd, kk):
    L = []
    if kk % 4 == 0:
        L += [f"s_add_u32 s82, {'s81' if dd == 0 else 's95'}, {4096*(kk>>2)}"]
    a = 4*(dd*28 + kk)
    L += [f"buffer_load_dwordx4 a[{a}:{a+3}], v211, s[84:87], s82 offen offset:{1024*(kk&3)} sc1"]
    return L
for l in conv_loads(0, 0): A(l)
A(f"""global_load_dword v215, v214, s[34:35] sc1
s_waitcnt lgkmcnt(0)""")
stamp(19)
nw = 0
for s in range(4):
    buf = s & 1
    nxt = conv_loads(s+1, buf ^ 1) if s < 3 else []
    if s == 3:
        for k in range(4): A(f"v_and_b32 v{AB[buf]+k}, v{206+k}, v{AB[buf]+k}")
        A("s_nop 1")
    if s == E('AUXS', 1):
        lok = A.label("auxok"); lp = A.label("auxp")
        A(f"""s_cmp_lg_u32 s3, 0
        s_cbranch_scc1 {lok}
        s_waitcnt vmcnt(0)
        v_cmp_ne_u32 vcc, 28, v215
        s_cbranch_vccz {lok}""")
        emit_poll("v214", "28")
        A(f"""{lok}:
        s_barrier
        v_add_u32 v216, 8192, v198
        global_load_dwordx4 v[{XV}:{XV+3}], v197, s[54:55] sc1
        global_load_dwordx4 v[{XV+4}:{XV+7}], v197, s[54:55] offset:1024 sc1
        global_load_dwordx4 v[{STV}:{STV+3}], v198, s[58:59] sc1
        global_load_dwordx4 v[{STV+4}:{STV+7}], v216, s[58:59] sc1
        global_load_dwordx4 v[{STV+8}:{STV+11}], v198, s[58:59] offset:1024 sc1
        global_load_dwordx4 v[{STV+12}:{STV+15}], v216, s[58:59] offset:1024 sc1""")
    pairs = [(m, n) for m in range(8) for n in range(8 - m)]
    for idx, (m, n) in enumerate(pairs):
        j = m + n
        A(f"v_mfma_f32_16x16x32_bf16 v[{ACC+4*j}:{ACC+4*j+3}], v[{AB[buf]+4*n}:{AB[buf]+4*n+3}], v[{UB[buf]+4*m}:{UB[buf]+4*m+3}], v[{ACC+4*j}:{ACC+4*j+3}]")
        if idx < len(nxt): A(nxt[idx])
        if s >= E('AUXS', 1) and idx % (4 if E('AUXS', 1) == 1 else 2) == 1 and nw < 28 and not E("NOW2A", 0):
            for l in w2f_load(0, nw): A(l)
            nw += 1
    if s < 3: A("s_waitcnt lgkmcnt(0)")
while nw < 28 and not E("NOW2A", 0):
    for l in w2f_load(0, nw): A(l)
    nw += 1
stamp(5)
A("s_barrier")
for j in range(8):
    A(f"ds_write_b128 v212, v[{ACC+4*j}:{ACC+4*j+3}] offset:{1024*j}")
A("s_waitcnt lgkmcnt(0)\ns_barrier")
PB = 10
for jj in range(2):
    for w_ in range(4):
        A(f"ds_read_b128 v[{PB+16*jj+4*w_}:{PB+16*jj+4*w_+3}], v213 offset:{8192*w_+1024*jj}")
for jj in range(2):
    for c in range(2):
        A(f"ds_read_b64 v[{42+4*jj+2*c}:{43+4*jj+2*c}], v210 offset:{(512 if jj == 0 else 0) + 4608*c}")
A(f"""s_and_b32 s75, s74, s72
s_lshl_b32 s74, s74, 16
s_waitcnt vmcnt({0 if E("NOW2A", 0) else 28})""")
P2 = lambda r: f"v[{r}:{r+1}]"
for jj in range(2):
    P = PB + 16*jj
    X = XV + 4*jj; SA = STV + 8*jj; SB = SA + 4
    t = 50
    for c in range(2):
        q = t + 8*c
        for i in range(4):
            A(f"v_lshlrev_b32 v{q+i}, 16, v{X+i}" if c == 0 else f"v_and_b32 v{q+i}, s72, v{X+i}")
        for i in (0, 2):
            A(f"v_pk_fma_f32 {P2(q+4+i)}, {P2(q+i)}, {P2(SA+i)}, {P2(SB+i)}")
    A(f"s_waitcnt lgkmcnt({8 if jj == 0 else 0})")
    if jj == 0: A("s_waitcnt lgkmcnt(2)")
    for i in (0, 2):
        A(f"v_pk_add_f32 {P2(P+i)}, {P2(P+i)}, {P2(P+4+i)}\nv_pk_add_f32 {P2(P+8+i)}, {P2(P+8+i)}, {P2(P+12+i)}")
    for c in range(2):
        U = 42 + 4*jj + 2*c
        Y = P + 8*c
        u = 66 + 4*c
        A(f"v_and_b32 v{u}, s72, v{U+1}\nv_lshlrev_b32 v{u+1}, 16, v{U+1}\nv_and_b32 v{u+2}, s72, v{U}\nv_lshlrev_b32 v{u+3}, 16, v{U}")
        sel = "op_sel:[0,0,0] op_sel_hi:[1,0,1]" if c == 0 else "op_sel:[0,1,0] op_sel_hi:[1,1,1]"
        for i in (0, 2):
            A(f"v_pk_fma_f32 {P2(Y+i)}, {P2(u+i)}, s[74:75], {P2(Y+i)} {sel}")
        q = t + 8*c
        for i in (0, 2):
            A(f"v_pk_fma_f32 {P2(Y+i)}, {P2(q+4+i)}, {P2(Y+i)}, {P2(q+i)}")
    for i in range(4):
        A(f"v_cvt_pk_bf16_f32 v{74+4*jj+i}, v{P+i}, v{P+8+i}")
    A(f"global_store_dwordx4 v197, v[{74+4*jj}:{77+4*jj}], s[56:57] offset:{1024*jj} sc1")
stamp(6)
A("s_waitcnt vmcnt(0)\ns_barrier")
lw = A.label("s2w0")
wave0_only(lw)
A(f"s_add_u32 s66, s36, {CL_S2}")
emit_signal("s66")
A(f"{lw}:")
stamp(7)
rstamp(34)

A(f"""v_lshrrev_b32 v10, 5, v1
v_bfe_u32 v11, v1, 2, 2
v_lshl_add_u32 v10, v10, 3, v11
v_lshlrev_b32 v10, 8, v10
v_bfe_u32 v12, v1, 4, 1
v_bfe_u32 v13, v1, 1, 1
v_lshl_add_u32 v12, v12, 1, v13
v_lshlrev_b32 v12, 4, v12
v_add_u32 v10, v10, v12
v_and_b32 v12, 1, v1
v_lshl_add_u32 v10, v12, 3, v10
s_lshl_b32 s66, s3, 12
v_add_u32 v10, s66, v10
v_lshlrev_b32 v11, 6, v11""")
for ft in range(4):
    A(f"v_xor_b32 v{2+ft}, {64*ft}, v11\nv_add_u32 v{2+ft}, v{2+ft}, v10\nv_add_u32 v{6+ft}, 65536, v{2+ft}")
A(f"""v_lshlrev_b32 v12, 4, v1
v_add_u32 v12, s66, v12
v_add_u32 v13, 65536, v12
s_lshl_b32 s66, s39, 7
s_lshl_b32 s67, s3, 5
s_add_u32 s66, s66, s67
v_and_b32 v14, 31, v1
v_add_u32 v14, s66, v14
v_lshlrev_b32 v14, 1, v14
global_load_ushort v15, v14, s[24:25]""")
CB = 16
def cv_reads(i):
    L = []
    for ft in range(4):
        base, off = (2+ft, 16384*i) if i < 4 else (6+ft, 16384*(i-4))
        r = CB + 16*i + 4*ft
        L += [f"ds_read_b64_tr_b16 v[{r}:{r+1}], v{base} offset:{off}", f"ds_read_b64_tr_b16 v[{r+2}:{r+3}], v{base} offset:{off+1024}"]
    return L
def cv_writes(i):
    base, off = (12, 16384*i) if i < 4 else (13, 16384*(i-4))
    return [f"ds_write_b128 v{base}, v[{CB+16*i+4*ft}:{CB+16*i+4*ft+3}] offset:{off+1024*ft}" for ft in range(4)]
for l in cv_reads(0): A(l)
for i in range(7):
    if i < 6:
        for l in cv_reads(i+1): A(l)
        A("s_waitcnt lgkmcnt(8)")
    else:
        A("s_waitcnt lgkmcnt(0)")
    for l in cv_writes(i): A(l)
    for kk in range(4*i, 4*i+4):
        for l in w2f_load(1, kk): A(l)
A("s_waitcnt lgkmcnt(0)\ns_barrier")
A(f"""s_lshl_b32 s66, s3, 10
v_lshl_add_u32 v6, v1, 4, s66
v_add_u32 v7, 57344, v6""")
for half in range(2):
    base = "v6" if half == 0 else "v7"
    for k in range(14):
        A(f"ds_read_b128 v[{64+56*half+4*k}:{67+56*half+4*k}], {base} offset:{4096*k}")
    if half == 1: pass
for half in range(2):
    for k in range(14):
        idx = 14*half + k
        A(f"s_waitcnt lgkmcnt({min(15, 27-idx)})")
        for r in range(4):
            reg = 64+56*half+4*k+r
            if idx == 0:
                A(f"v_dot2_f32_bf16 v{42+r}, v{reg}, s73, 0")
            else:
                A(f"v_dot2_f32_bf16 v{42+r}, v{reg}, s73, v{42+r}")
A(f"""s_nop 2
v_add_f32 v42, v42, v43
v_add_f32 v44, v44, v45
s_nop 0
v_add_f32 v42, v42, v44
v_mov_b32 v43, v42
s_nop 1
v_permlane32_swap_b32 v42, v43
s_nop 1
v_add_f32 v42, v42, v43
v_cvt_pk_bf16_f32 v43, -v42, -v42
v_and_b32 v44, s72, v43
v_add_f32 v44, v42, v44
v_cvt_pk_bf16_f32 v44, -v44, -v44
s_waitcnt vmcnt(28)
v_perm_b32 v46, v44, v43, s70
v_perm_b32 v47, v15, v43, s70
v_mov_b32 v48, v15
v_mov_b32 v49, 0
v_cmp_gt_u32 vcc, 32, v1
v_lshlrev_b32 v50, 4, v1
s_lshl_b32 s66, s3, 10
s_add_u32 s66, s66, {L_AUG}
v_cndmask_b32 v46, 0, v46, vcc
v_cndmask_b32 v47, 0, v47, vcc
v_cndmask_b32 v48, 0, v48, vcc
v_add_u32 v50, s66, v50
ds_write_b128 v50, v[46:49]
v_lshrrev_b32 v10, 5, v1
v_lshlrev_b32 v2, 13, v10
v_and_b32 v11, 31, v1
v_lshl_add_u32 v2, v11, 4, v2
s_lshl_b32 s66, s38, 9
s_lshl_b32 s67, s3, 15
s_add_u32 s66, s66, s67
v_add_u32 v2, s66, v2
v_add_u32 v3, 15360, v2
v_lshlrev_b32 v4, 11, v10
v_lshl_add_u32 v4, v11, 2, v4
s_lshl_b32 s66, s3, 7
s_add_u32 s66, s66, {L_X}
v_add_u32 v4, s66, v4""")
srd(48, 56, S*D*2)
A(f"""v_lshlrev_b32 v6, 4, v1
v_add_u32 v7, 57344, v6
v_add_u32 v5, {L_AUG}, v6
s_mov_b32 s77, {'s39' if not E('NOROT2',0) else '0'}
s_lshl_b32 s78, s3, 11
s_add_u32 s78, s78, {L_X}
s_waitcnt lgkmcnt(0)""")
stamp(8)
lw = A.label("s2p")
wave0_only(lw)
A(f"v_and_b32 v16, 7, v1\nv_add_u32 v16, {CL_S2}, v16\nv_lshlrev_b32 v16, 7, v16\nv_mov_b32 v17, 28")
emit_poll("v16", "v17")
A(f"{lw}:\ns_barrier")
stamp(9)
rstamp(35)

BF = 16
TL = [128, 144, 160, 176]
AF = 192
NSLOT = 6; PDC = 5
def dmaH(c, part=None):
    L = [[f"s_add_u32 m0, s78, {8192*(c % NSLOT)}", f"s_mov_b32 s76, {c << 17}", "buffer_load_dwordx4 v2, s[48:51], s76 offen sc1 lds"],
         ["buffer_load_dwordx4 v3, s[48:51], s76 offen offset:1024 sc1 lds"]]
    for p in ((0, 1) if part is None else (part,)):
        for x in L[p]: A(x)
for c in range(PDC): dmaH(c)
for t in range(4):
    A(f"ds_read_b128 a[{224+4*t}:{227+4*t}], v5 offset:{1024*t}")
def afrag_addr(ks, ft):
    return ("v6", 4096*ks + 1024*ft) if ks < 14 else ("v7", 4096*(ks-14) + 1024*ft)
def ldA(ks, ft):
    b, o = afrag_addr(ks, ft)
    r = AF + 16*(ks & 1) + 4*ft
    A(f"ds_read_b128 v[{r}:{r+3}], {b} offset:{o}")
def M(ks, t):
    b = BF + 4*ks
    r = AF + 16*(ks & 1) + 4*t
    cc = "0" if ks == 0 else f"v[{TL[t]}:{TL[t]+15}]"
    A(f"v_mfma_f32_32x32x16_bf16 v[{TL[t]}:{TL[t]+15}], v[{r}:{r+3}], v[{b}:{b+3}], {cc}")
def rdB(c, ksl):
    so = 32*(c % NSLOT)
    b = BF + 4*(2*c + ksl)
    A(f"ds_read2st64_b32 v[{b}:{b+1}], v4 offset0:{so+16*ksl} offset1:{so+16*ksl+2}")
    A(f"ds_read2st64_b32 v[{b+2}:{b+3}], v4 offset0:{so+16*ksl+4} offset1:{so+16*ksl+6}")
for t in range(4): ldA(0, t)
for c in range(15):
    if c < 14:
        A(f"s_waitcnt vmcnt({2*(min(c+PDC-1, 13) - c)}) lgkmcnt(0)")
    else:
        A("s_waitcnt lgkmcnt(0)")
    if c == 0:
        A("s_barrier")
        stamp(20)
        rdB(0, 0); rdB(0, 1); dmaH(PDC)
        continue
    k0, k1, k2 = 2*c-2, 2*c-1, 2*c
    M(k0, 0); ldA(k1, 0); ldA(k1, 1)
    M(k0, 1); ldA(k1, 2); ldA(k1, 3)
    if c < 14: A("s_barrier")
    if c in (4, 8, 12): stamp(20 + c//4)
    M(k0, 2)
    if c < 14: rdB(c, 0)
    M(k0, 3)
    if c < 14: rdB(c, 1)
    A(f"s_waitcnt lgkmcnt({4 if c < 14 else 0})")
    M(k1, 0)
    if c < 14: ldA(k2, 0); ldA(k2, 1)
    M(k1, 1)
    if c < 14: ldA(k2, 2); ldA(k2, 3)
    M(k1, 2)
    if c + PDC <= 13: dmaH(c + PDC, 0)
    M(k1, 3)
    if c + PDC <= 13: dmaH(c + PDC, 1)
stamp(10)
ST0 = 232
for ks in range(28):
    b = BF + 4*ks
    for r in range(4):
        if E("NODOT", 0): continue
        if ks == 0 and r < 2:
            A(f"v_dot2_f32_bf16 v{ST0+(r&1)}, v{b+r}, s73, 0")
            A(f"v_dot2_f32_bf16 v{ST0+2+(r&1)}, v{b+r}, v{b+r}, 0")
        else:
            A(f"v_dot2_f32_bf16 v{ST0+(r&1)}, v{b+r}, s73, v{ST0+(r&1)}")
            A(f"v_dot2_f32_bf16 v{ST0+2+(r&1)}, v{b+r}, v{b+r}, v{ST0+2+(r&1)}")
A(f"""s_nop 1
v_add_f32 v232, v232, v233
v_add_f32 v234, v234, v235
v_mov_b32 v233, v232
v_mov_b32 v235, v234
v_lshlrev_b32 v9, 4, v1
s_nop 0
v_permlane32_swap_b32 v232, v233
v_permlane32_swap_b32 v234, v235
s_mov_b32 s66, 0x3b124925
s_nop 0
v_add_f32 v232, v232, v233
v_add_f32 v234, v234, v235
v_mul_f32 v232, s66, v232
v_mul_f32 v234, s66, v234
v_fma_f32 v234, -v232, v232, v234
v_add_f32 v234, 0x3727c5ac, v234
v_rsq_f32 v235, v234
v_sqrt_f32 v230, v234
s_mov_b32 s66, 0xc0135761
s_mov_b32 s67, 0xbdd2d3e8
v_mul_f32 v229, s66, v235
v_mul_f32 v228, v235, v235
v_mul_f32 v228, v228, v235
v_mul_f32 v228, s67, v228
v_cvt_pk_bf16_f32 v233, v232, v232
v_and_b32 v231, s72, v233
v_sub_f32 v231, v232, v231
v_cvt_pk_bf16_f32 v236, v230, v230
v_and_b32 v237, s72, v236
v_sub_f32 v237, v230, v237
v_and_b32 v225, s72, v236
v_cvt_pk_bf16_f32 v231, v231, v231
v_and_b32 v231, 0xffff, v231
v_or_b32 v225, v225, v231
v_cvt_pk_bf16_f32 v226, v237, 0
v_mov_b32 v224, v233
v_mov_b32 v227, 0
v_cmp_gt_u32 vcc, 32, v1
s_lshl_b32 s66, s38, 2
s_add_u32 s66, s66, s3
v_cndmask_b32 v224, 0, v224, vcc
v_cndmask_b32 v225, 0, v225, vcc
v_cndmask_b32 v226, 0, v226, vcc
s_mul_i32 s66, s66, 56
s_lshl_b32 s67, s39, 2""")
for t in range(4):
    A(f"v_mfma_f32_32x32x16_bf16 v[{TL[t]}:{TL[t]+15}], a[{224+4*t}:{227+4*t}], v[224:227], v[{TL[t]}:{TL[t]+15}]")
A(f"""s_add_u32 s66, s66, s67
s_lshl_b32 s66, s66, 11
v_lshl_add_u32 v8, v1, 4, s66
v_add_u32 v11, 4096, v8""")
GT = 236
def gelu_pk(tile, grp):
    L = []
    w = [TL[tile] + 8*grp + 2*e for e in range(4)]
    t = [GT + 2*e for e in range(4)]
    P = lambda r: f"v[{r}:{r+1}]"
    L += [f"v_pk_mul_f32 {P(t[e])}, {P(w[e])}, {P(w[e])}" for e in range(4)]
    L += [f"v_pk_fma_f32 {P(t[e])}, {P(t[e])}, v[228:229], v[228:229] op_sel:[0,0,1] op_sel_hi:[1,0,1]" for e in range(4)]
    L += [f"v_pk_mul_f32 {P(t[e])}, {P(t[e])}, {P(w[e])}" for e in range(4)]
    L += [f"v_exp_f32 v{t[e]+k}, v{t[e]+k}" for e in range(4) for k in range(2)]
    L += [f"v_pk_fma_f32 {P(t[e])}, {P(t[e])}, v[230:231], v[230:231] op_sel_hi:[1,0,0]" for e in range(4)]
    L += [f"v_rcp_f32 v{t[e]+k}, v{t[e]+k}" for e in range(4) for k in range(2)]
    L += [f"v_pk_mul_f32 {P(w[e])}, {P(w[e])}, {P(t[e])}" for e in range(4)]
    return L
def cvts(tile):
    o = AF + 8*(tile & 1)
    return [f"v_cvt_pk_bf16_f32 v{o+k}, v{TL[tile]+2*k}, v{TL[tile]+2*k+1}" for k in range(8)]
def h_store(tile):
    o = AF + 8*(tile & 1)
    base, off = ("v8", 2048*tile) if tile < 2 else ("v11", 2048*(tile-2))
    return [f"global_store_dwordx4 {base}, v[{o}:{o+3}], s[60:61] offset:{off} sc1", f"global_store_dwordx4 {base}, v[{o+4}:{o+7}], s[60:61] offset:{off+1024} sc1"]
def w2f_loadB(kk):
    return [l.replace("v211", "v9") for l in w2f_load(1, kk)]
stamp(11)
A("s_nop 7")
for t in range(4):
    for grp in range(2):
        for x in gelu_pk(t, grp): A(x)
    for x in cvts(t) + h_store(t): A(x)
stamp(12)
A("s_waitcnt vmcnt(0)\ns_barrier")
lw = A.label("s3w0")
wave0_only(lw)
A(f"s_add_u32 s66, s38, {CL_S3}")
emit_signal("s66")
A(f"{lw}:")
A(f"""s_lshr_b32 s66, s3, 1
s_and_b32 s67, s3, 1
s_lshl_b32 s68, s40, 1
s_add_u32 s68, s68, s66
s_lshl_b32 s68, s68, 7
s_lshl_b32 s69, s41, 1
s_add_u32 s69, s69, s67
s_lshl_b32 s76, s69, 17
s_add_u32 s68, s68, s76
v_lshrrev_b32 v12, 5, v1
v_lshlrev_b32 v13, 14, v12
v_and_b32 v14, 31, v1
v_lshl_add_u32 v13, v14, 2, v13
v_add_u32 v13, s68, v13""")
for j in range(4):
    A(f"buffer_load_dword v{16+2*j}, v13, s[48:51], 0 offen sc1")
    A(f"v_add_u32 v14, 8192, v13")
    A(f"buffer_load_dword v{17+2*j}, v14, s[48:51], 0 offen sc1")
    if j < 3: A("v_add_u32 v13, 32768, v13")
A(f"""s_lshl_b32 s69, s69, 6
v_lshl_add_u32 v12, v12, 3, s69""")
for j in range(4):
    A(f"global_load_dwordx2 v[{24+2*j}:{25+2*j}], v12, s[28:29] offset:{16*j}")
stamp(13)
rstamp(36)

ACC3 = 32; RING = 96; NS = 20
A(f"""s_lshl_b32 s66, s40, 1
s_mul_i32 s66, s66, {112*1024}
s_mul_i32 s67, s3, {28*1024}
s_add_u32 s81, s66, s67
s_lshr_b32 s67, s3, 1
s_mul_i32 s67, s67, {112*1024}
v_lshlrev_b32 v4, 4, v1
v_add_u32 v2, s67, v4
s_sub_u32 s67, {112*1024}, s67
v_add_u32 v3, s67, v4""")
srd(44, 60, S*F*2)
for sl in (1, 2, 3):
    A(f"""s_xor_b32 s66, s3, {sl}
    s_lshl_b32 s67, s66, 2
    s_add_u32 s67, s67, s3
    s_lshl_b32 s67, s67, 12
    v_add_u32 v{224+sl}, s67, v4
    s_lshl_b32 s67, s3, 2
    s_add_u32 s67, s67, s66
    s_lshl_b32 s67, s67, 12
    v_add_u32 v{228+sl}, s67, v4""")
A(f"""s_lshr_b32 s66, s3, 1
s_and_b32 s67, s3, 1
s_lshl_b32 s68, s40, 1
s_add_u32 s68, s68, s66
s_lshl_b32 s68, s68, 5
v_and_b32 v6, 31, v1
v_add_u32 v6, s68, v6
v_mul_u32_u24 v6, 896, v6
s_lshl_b32 s69, s41, 1
s_add_u32 s69, s69, s67
s_lshl_b32 s69, s69, 6
v_lshrrev_b32 v7, 5, v1
v_lshl_add_u32 v6, v7, 4, v6
v_add_u32 v6, s69, v6""")
lw = A.label("s3p")
wave0_only(lw)
A(f"s_add_u32 s66, s80, {CL_S3}\ns_lshl_b32 s66, s66, 7\nv_mov_b32 v10, s66")
emit_poll("v10", "14")
A(f"{lw}:\ns_barrier")
stamp(14)
rstamp(37)
NS = 16
def ldH(kk):
    slot = kk % NS
    if kk % 4 == 0:
        A(f"s_add_u32 s82, s81, {4096*(kk>>2)}")
    for tj in range(2):
        r = RING + 8*slot + 4*tj
        if E("NOLD3", 0): continue
        A(f"buffer_load_dwordx4 v[{r}:{r+3}], v{2+tj}, s[44:47], s82 offen offset:{1024*(kk&3)} sc1")
for kk in range(PD3): ldH(kk)
first = True
for kk in range(28):
    A(f"s_waitcnt vmcnt({2*(min(kk+PD3-1, 27) - kk)})")
    slot = kk % NS
    ms = []
    for tj in range(2):
        for dd in range(2):
            T_ = ACC3 + 16*(2*tj + dd)
            a = 4*(dd*28 + kk)
            r = RING + 8*slot + 4*tj
            c = "0" if kk == 0 else f"v[{T_}:{T_+15}]"
            ms.append(f"v_mfma_f32_32x32x16_bf16 v[{T_}:{T_+15}], a[{a}:{a+3}], v[{r}:{r+3}], {c}")
    A(ms[0]); A(ms[1])
    if kk + PD3 < 28: ldH(kk + PD3)
    A(ms[2]); A(ms[3])
    if 2 <= kk < 10:
        p = kk - 2; j = p >> 1; c_ = p & 1; k = 4*j + 2*c_
        A(f"""v_lshlrev_b32 v{232+k}, 16, v{16+2*j+c_}
        v_and_b32 v{233+k}, s72, v{16+2*j+c_}
        v_lshlrev_b32 v8, 16, v{24+2*j+c_}
        v_and_b32 v9, s72, v{24+2*j+c_}
        v_add_f32 v{232+k}, v{232+k}, v8
        v_add_f32 v{233+k}, v{233+k}, v9""")
stamp(15)
A("s_nop 10")
for sl in (1, 2, 3):
    for q in range(4):
        r = ACC3 + 16*sl + 4*q
        A(f"ds_write_b128 v{224+sl}, v[{r}:{r+3}] offset:{1024*q}")
for k in range(0, 16, 2): A(f"v_pk_add_f32 {P2(ACC3+k)}, {P2(ACC3+k)}, {P2(232+k)}")
A("s_waitcnt lgkmcnt(0)\ns_barrier")
RB = 96
for sl in (1, 2, 3):
    for q in range(4):
        r = RB + 16*(sl-1) + 4*q
        A(f"ds_read_b128 v[{r}:{r+3}], v{228+sl} offset:{1024*q}")
for sl in (1, 2, 3):
    A(f"s_waitcnt lgkmcnt({4*(3-sl)})")
    for k in range(0, 16, 2): A(f"v_pk_add_f32 {P2(ACC3+k)}, {P2(ACC3+k)}, {P2(RB+16*(sl-1)+k)}")
for k in range(8): A(f"v_cvt_pk_bf16_f32 v{192+k}, v{ACC3+2*k}, v{ACC3+2*k+1}")
A("""s_nop 1
v_permlane32_swap_b32 v192, v194
v_permlane32_swap_b32 v193, v195
v_permlane32_swap_b32 v196, v198
v_permlane32_swap_b32 v197, v199
s_nop 1
global_store_dwordx4 v6, v[192:195], s[30:31]
global_store_dwordx4 v6, v[196:199], s[30:31] offset:32""")
stamp(16)
rstamp(38)
A("s_branch L_END")

A(f"""L_OTHER:
s_cmp_ge_u32 s2, {NWG}
s_cbranch_scc1 L_END
v_and_b32 v1, 63, v0
v_lshrrev_b32 v2, 6, v0
s_nop 0
v_readfirstlane_b32 s3, v2
s_waitcnt lgkmcnt(0)
s_cmp_lg_u32 s2, {NMAIN}
s_cbranch_scc1 L_PREF
v_mov_b32 v4, 0
v_mov_b32 v5, 0
v_mov_b32 v6, 0
v_mov_b32 v7, 0
v_lshlrev_b32 v2, 4, v0
global_store_dwordx4 v2, v[4:7], s[34:35] sc1
v_add_u32 v3, 4096, v2
global_store_dwordx4 v3, v[4:7], s[34:35] sc1
s_waitcnt vmcnt(0)
s_barrier
s_cmp_lg_u32 s3, 0
s_cbranch_scc1 L_END
v_mov_b32 v2, 0
v_mov_b32 v3, 1
s_mov_b64 exec, 1
global_store_dword v2, v3, s[32:33] sc1""")
A(f"""s_branch L_END
L_PREF:""")
A(f"""v_min_u32 v2, 8, v1
v_lshlrev_b32 v2, 21, v2
v_add_u32 v2, {0x100000}, v2
global_load_dword v8, v2, s[34:35]
v_mov_b32 v3, 0
global_load_dword v9, v3, s[30:31]
global_load_dword v10, v3, s[22:23]
global_load_dword v11, v3, s[26:27]
global_load_dword v12, v3, s[16:17]
global_load_dword v13, v3, s[24:25]
global_load_dword v14, v3, s[28:29]
global_load_dword v15, v3, s[18:19]
global_load_dword v16, v3, s[34:35]""")
if E("HW1", 0):
    A(f"""s_sub_u32 s66, s2, {NMAIN+1}
    s_mul_i32 s66, s66, {52*1024}
    s_lshl_b32 s67, s3, 10
    s_add_u32 s66, s66, s67
    v_lshl_add_u32 v2, v1, 4, s66""")
    srd(44, 22, D*F*2)
    A("s_mov_b32 s69, 0")
    for j in range(13):
        A(f"buffer_load_dwordx4 v[{20+4*j}:{23+4*j}], v2, s[44:47], s69 offen\ns_add_u32 s69, s69, 4096")
A("s_waitcnt vmcnt(0)")
A("""L_END:
s_endpgm
L_CODE_END:""")

errs = check_hazards(A.lines)
for e in errs: print("HAZARD:", e, file=sys.stderr)
hdr = open(f"cdna_kernels/{NAME}.s.ref").read().split(".amdgcn_target")[0]
hdr = "\n".join(l for l in hdr.splitlines() if not l.startswith("; @launch"))
out = [hdr.rstrip(), f"; @launch grid=({NWG},1,1) block=(256,1,1) lds={LDS_BYTES}",
 '.amdgcn_target "amdgcn-amd-amdhsa--gfx950"', ".text", f".globl {KN}", ".p2align 8", f".type {KN},@function", f"{KN}:",
 A.text(), '.section .rodata,"a"', ".p2align 6", f".amdhsa_kernel {KN}",
 "  .amdhsa_next_free_vgpr 512", "  .amdhsa_next_free_sgpr 100", "  .amdhsa_accum_offset 256", "  .amdhsa_group_segment_fixed_size 0",
 "  .amdhsa_kernarg_size 112", "  .amdhsa_user_sgpr_count 2", "  .amdhsa_user_sgpr_kernarg_segment_ptr 1", "  .amdhsa_system_sgpr_workgroup_id_x 1",
 "  .amdhsa_float_denorm_mode_32 3", ".end_amdhsa_kernel", ""]
dst = os.environ.get("OUT", f"cdna_kernels/{NAME}.s")
open(dst, "w").write("\n".join(out))
print("wrote", dst, "instructions:", sum(1 for l in A.lines if not l.endswith(':')), "hazards:", len(errs))
```

```python
import sys, os
sys.path.insert(0, os.path.dirname(os.path.abspath(__file__)))
from asmlib import *

NAME = "sequential_preLN__ssm_conv_h3__dense_activation_gelu__prompt"
E = lambda k, d: int(os.environ.get(k, str(d)))
STAMPS = E("STAMPS", 0)
PD2 = E("PD2", 11)
PD3 = E("PD3", 6)
W1THR = E("W1THR", 0)
NMAIN = 224
NHELP = E("NHELP", 31)
NWG = NMAIN + 1 + NHELP
S, D, F = 2048, 448, 1792
WS_STAMP = 0x80000
WS_UR = 0x100000
WS_X2 = 0x300000
WS_H2 = 0x500000
WS_ST = 0x700000
WS_W2F = 0x800000
WS_HF = 0xA00000
CL_S1 = 0; CL_AUX = 8; CL_S2 = 16; CL_S3 = 32
L_W1 = 0
L_X = 0x1C000
L_UT = L_X + 0x0000
L_XT = L_X + 0x2000
L_KA = L_X + 0x4000 + 64
L_UR = L_X + 0x8100
L_AUG = L_X + 0xA500
L_CNT = L_X + 0xB600
LDS_BYTES = 163840
SPIN = 2000000
KN = NAME + "_kernel"

A = Asm()

def stamp(i, wave=0):
    if not STAMPS: return
    l = A.label("st")
    A(f"""s_cmp_lg_u32 s3, {wave}
    s_cbranch_scc1 {l}
    s_memtime s[92:93]
    s_waitcnt lgkmcnt(0)
    s_lshl_b32 s94, s2, 8
    s_add_u32 s94, s94, {WS_STAMP + 4*i}
    v_mov_b32 v250, s94
    v_mov_b32 v251, s92
    s_mov_b64 s[90:91], exec
    s_mov_b64 exec, 1
    global_store_dword v250, v251, s[34:35]
    s_mov_b64 exec, s[90:91]
    {l}:""")

def rstamp(i, xcc=False):
    if not STAMPS: return
    l = A.label("rt")
    A(f"""s_cmp_lg_u32 s3, 0
    s_cbranch_scc1 {l}
    {"s_getreg_b32 s92, hwreg(HW_REG_XCC_ID)" if xcc else "s_memrealtime s[92:93]"}
    s_waitcnt lgkmcnt(0)
    s_lshl_b32 s94, s2, 8
    s_add_u32 s94, s94, {WS_STAMP + 4*i}
    v_mov_b32 v250, s94
    v_mov_b32 v251, s92
    s_mov_b64 s[90:91], exec
    s_mov_b64 exec, 1
    global_store_dword v250, v251, s[34:35]
    s_mov_b64 exec, s[90:91]
    {l}:""")

def wave0_only(label):
    A(f"s_cmp_lg_u32 s3, 0\ns_cbranch_scc1 {label}")

def emit_signal(line_sreg):
    A(f"""s_lshl_b32 s67, {line_sreg}, 7
    v_mov_b32 v245, s67
    v_mov_b32 v246, 1
    s_mov_b64 s[64:65], exec
    s_mov_b64 exec, 1
    global_atomic_add v245, v246, s[34:35] sc1
    s_mov_b64 exec, s[64:65]""")

def emit_poll(addr_v, target, base="s[34:35]", tmp="v247"):
    lp = A.label("poll"); done = A.label("polld")
    A(f"""s_mov_b32 s68, {SPIN}
    {lp}:
    global_load_dword {tmp}, {addr_v}, {base} sc1
    s_waitcnt vmcnt(0)
    v_cmp_ne_u32 vcc, {target}, {tmp}
    s_cbranch_vccz {done}
    s_sub_u32 s68, s68, 1
    s_cmp_lg_u32 s68, 0
    s_cbranch_scc1 {lp}
    {done}:""")

def ws_base(sreg, off):
    A(f"s_add_u32 s{sreg}, s34, {off}\ns_addc_u32 s{sreg+1}, s35, 0")

def srd(base, ptr, size):
    A(f"s_mov_b32 s{base}, s{ptr}\ns_mov_b32 s{base+1}, s{ptr+1}\ns_mov_b32 s{base+2}, {size}\ns_mov_b32 s{base+3}, 0x20000")

if STAMPS: A("s_memrealtime s[78:79]")
A(f"""s_load_dwordx16 s[8:23], s[0:1], 0""")
A("s_getpc_b64 s[88:89]\nL_PC:")
if E("PF0", 0):
    A(f"""v_lshlrev_b32 v6, 4, v0
    global_load_dwordx4 v[116:119], v6, s[88:89] offset:{E("PFOFF", 128)}""")
A(f"""s_load_dwordx8 s[24:31], s[0:1], 64
s_load_dwordx4 s[32:35], s[0:1], 96
s_cmp_ge_u32 s2, {NMAIN}
s_cbranch_scc1 L_OTHER
s_lshr_b32 s42, s2, 5
s_and_b32 s43, s2, 31
v_lshrrev_b32 v2, 3, v0
v_and_b32 v3, 7, v0
s_mul_i32 s66, s43, {64*896}
s_lshl_b32 s67, s42, 7
s_add_u32 s66, s66, s67
v_mul_u32_u24 v4, 1792, v2
v_lshl_add_u32 v4, v3, 4, v4
v_add_u32 v7, s66, v4
v_subrev_u32 v92, 2688, v7
v_subrev_u32 v93, 1792, v7
v_subrev_u32 v94, 896, v7
s_lshl_b32 s67, s42, 9
v_lshl_add_u32 v8, v3, 6, s67
s_mov_b32 s46, {S*D*2}
s_mov_b32 s47, 0x20000
s_waitcnt lgkmcnt(0)""")
if STAMPS: A("s_memrealtime s[96:97]")
A(f"""s_mov_b32 s44, s10
s_mov_b32 s45, s11
buffer_load_dwordx4 v[10:13], v92, s[44:47], 0 offen
buffer_load_dwordx4 v[14:17], v93, s[44:47], 0 offen
buffer_load_dwordx4 v[18:21], v94, s[44:47], 0 offen
buffer_load_dwordx4 v[22:25], v7, s[44:47], 0 offen
buffer_load_dwordx4 v[26:29], v7, s[44:47], 0 offen offset:896
global_load_dwordx4 v[30:33], v7, s[12:13]
global_load_dwordx4 v[34:37], v7, s[12:13] offset:896
global_load_dwordx4 v[46:49], v8, s[14:15]
global_load_dwordx4 v[50:53], v8, s[14:15] offset:16
global_load_dwordx4 v[54:57], v8, s[14:15] offset:32
global_load_dwordx4 v[58:61], v8, s[14:15] offset:48
global_load_dwordx4 v[38:41], v7, s[8:9]
global_load_dwordx4 v[42:45], v7, s[8:9] offset:896
v_and_b32 v1, 63, v0
v_lshrrev_b32 v5, 6, v0
s_mov_b32 s70, 0x05040100
s_mov_b32 s71, 0x07060302
v_readfirstlane_b32 s3, v5
s_mov_b32 s72, 0xffff0000
s_mov_b32 s73, 0x3f803f80
s_lshr_b32 s37, s2, 3""")
A(f"""s_lshr_b32 s66, s2, 1
s_mul_i32 s66, s66, {16*896}
s_and_b32 s67, s2, 1
s_mul_i32 s67, s67, 448
s_add_u32 s66, s66, s67
s_mov_b32 s67, 2341
v_mul_lo_u32 v110, v0, s67
v_lshrrev_b32 v110, 16, v110
v_mul_u32_u24 v111, 28, v110
v_sub_u32 v111, v0, v111
v_mul_u32_u24 v110, 896, v110
v_lshl_add_u32 v110, v111, 4, v110
v_add_u32 v110, s66, v110
v_add_u32 v112, 256, v0
v_mul_lo_u32 v113, v112, s67
v_lshrrev_b32 v113, 16, v113
v_mul_u32_u24 v111, 28, v113
v_sub_u32 v111, v112, v111
v_mul_u32_u24 v113, 896, v113
v_lshl_add_u32 v113, v111, 4, v113
v_add_u32 v113, s66, v113
s_lshl_b32 s66, s37, 10
s_min_u32 s66, s66, L_CODE_END-{KN}-1024
v_lshl_add_u32 v114, v1, 4, s66
s_lshl_b32 s69, s3, 10
s_add_u32 m0, s69, {L_W1}
s_nop 0
global_load_lds_dwordx4 v110, s[26:27]""")
l3 = A.label("x3"); lx = A.label("xd")
A(f"""s_cmp_eq_u32 s3, 3
s_cbranch_scc1 {l3}
s_add_u32 m0, m0, 4096
s_nop 0
global_load_lds_dwordx4 v113, s[26:27]
s_branch {lx}
{l3}:
s_sub_u32 s88, s88, L_PC-{KN}
s_subb_u32 s89, s89, 0
global_load_dwordx4 v[116:119], v114, s[88:89]
{lx}:""")
lns = A.label("nost")
A(f"""s_mov_b32 s76, 0
s_cmp_lt_u32 s3, 2
s_cbranch_scc1 {lns}""")
srd(48, 16, D*S*2)
A(f"""v_lshlrev_b32 v115, 4, v1
s_sub_u32 s66, s3, 2
s_lshl_b32 s67, s2, 1
s_add_u32 s67, s67, s66
s_lshl_b32 s67, s67, 12
s_load_dword s77, s[16:17], s67
s_mul_i32 s66, s66, 8320
s_add_u32 m0, s66, {L_KA}
s_add_u32 s79, s66, {L_KA + 4160 - 4}""")
for j in range(4):
    A(f"s_nop 0\nbuffer_load_dwordx4 v115, s[48:51], s67 offen lds\ns_add_u32 m0, m0, 1024\ns_add_u32 s67, s67, 1024")
A(f"s_add_u32 m0, m0, {4160-4096}\ns_sub_u32 s67, s67, {4096-2}")
for j in range(4):
    A(f"s_nop 0\nbuffer_load_dwordx4 v115, s[48:51], s67 offen lds\ns_add_u32 m0, m0, 1024\ns_add_u32 s67, s67, 1024")
A(f"""s_cmp_lt_u32 s42, 4
s_cbranch_scc0 {lns}
s_mov_b32 s76, 1
s_lshl_b32 s66, s43, 6
s_lshl_b32 s67, s42, 4
s_add_u32 s66, s66, s67
s_sub_u32 s67, s3, 2
s_lshl_b32 s67, s67, 3
s_add_u32 s66, s66, s67
v_lshrrev_b32 v120, 3, v1
v_add_u32 v120, s66, v120
v_mul_u32_u24 v121, 896, v120
v_and_b32 v122, 7, v1
v_lshl_add_u32 v121, v122, 4, v121""")
for i in range(7):
    A(f"global_load_dwordx4 v[{64+4*i}:{67+4*i}], v121, s[8:9] offset:{128*i}")
A(f"{lns}:")
ws_base(52, WS_UR); ws_base(54, WS_X2); ws_base(56, WS_H2); ws_base(58, WS_ST); ws_base(60, WS_HF); ws_base(62, WS_W2F)
stamp(0)
rstamp(30)
rstamp(31, True)
if STAMPS:
    for (i, r) in ((28, 78), (29, 96)):
        l = A.label("rt0")
        A(f"""s_cmp_lg_u32 s3, 0
        s_cbranch_scc1 {l}
        s_lshl_b32 s94, s2, 8
        s_add_u32 s94, s94, {WS_STAMP + 4*i}
        v_mov_b32 v250, s94
        v_mov_b32 v251, s{r}
        s_mov_b64 s[90:91], exec
        s_mov_b64 exec, 1
        global_store_dword v250, v251, s[34:35]
        s_mov_b64 exec, s[90:91]
        {l}:""")
A(f"""v_sub_u32 v96, 31, v2
v_lshrrev_b32 v97, 2, v96
v_xor_b32 v97, v97, v3
v_lshlrev_b32 v97, 4, v97
v_and_b32 v96, 3, v96
v_lshl_add_u32 v97, v96, 2, v97
v_lshl_add_u32 v95, v3, 10, v97
v_add_u32 v95, {L_UT}, v95
v_lshrrev_b32 v96, 1, v2
v_xor_b32 v96, v96, v3
v_lshlrev_b32 v96, 4, v96
v_and_b32 v97, 1, v2
v_lshl_add_u32 v96, v97, 3, v96
v_lshl_add_u32 v96, v3, 10, v96
v_add_u32 v96, {L_XT}, v96
v_lshrrev_b32 v98, 6, v0
v_xor_b32 v99, v3, v98
v_lshlrev_b32 v99, 4, v99
v_lshl_add_u32 v100, v2, 7, v99
v_add_u32 v100, {L_UT}, v100
s_lshl_b32 s66, s42, 18
s_sub_u32 s67, 31, s43
s_lshl_b32 s67, s67, 7
s_add_u32 s66, s66, s67
v_lshlrev_b32 v102, 12, v2
v_lshl_add_u32 v102, v3, 4, v102
v_add_u32 v102, s66, v102
v_and_b32 v104, 15, v0
v_lshrrev_b32 v105, 4, v0
v_xor_b32 v106, v104, v98
v_lshlrev_b32 v106, 4, v106
v_lshl_add_u32 v106, v105, 8, v106
v_add_u32 v106, {L_XT}, v106
s_lshl_b32 s66, s42, 18
s_lshl_b32 s67, s43, 8
s_add_u32 s66, s66, s67
v_lshlrev_b32 v108, 13, v105
v_lshl_add_u32 v108, v104, 4, v108
v_add_u32 v108, s66, v108
v_mov_b32 v101, {L_CNT}
v_mov_b32 v103, 0
ds_write2_b32 v101, v103, v103 offset1:1""")
A(f"""v_lshrrev_b32 v123, 5, v1
v_bfe_u32 v124, v1, 2, 2
v_lshl_add_u32 v123, v123, 2, v124
v_mul_u32_u24 v123, 448, v123
v_bfe_u32 v124, v1, 4, 1
v_lshl_add_u32 v123, v124, 5, v123
v_and_b32 v124, 3, v1
v_lshl_add_u32 v123, v124, 3, v123
s_lshl_b32 s66, s3, 6
s_add_u32 s66, s66, {L_W1}
v_add_u32 v123, s66, v123
s_and_b32 s66, s2, 1
s_mul_i32 s66, s66, 7
s_add_u32 s66, s66, s3
s_mul_i32 s66, s66, 112
s_lshr_b32 s67, s2, 1
s_add_u32 s66, s66, s67
s_lshl_b32 s66, s66, 10
v_lshl_add_u32 v124, v1, 4, s66""")
def p0wait(base):
    l1 = A.label("wa"); l2 = A.label("wb"); l3_ = A.label("wc")
    A(f"""s_cmp_ge_u32 s3, 2
    s_cbranch_scc1 {l3_}
    s_waitcnt vmcnt({base})
    s_branch {l2}
    {l3_}:
    s_cmp_eq_u32 s76, 0
    s_cbranch_scc1 {l1}
    s_waitcnt vmcnt({base+15})
    s_branch {l2}
    {l1}:
    s_waitcnt vmcnt({base+8})
    {l2}:""")
p0wait(4)
K = lambda j, p: f"v{10 + 4*j + p}"
T = 126
for p in range(4):
    seq = []
    for half in range(2):
        i = 2*p + half
        sel = "s70" if half == 0 else "s71"
        t = T + 8*half
        seq.append([
            f"v_perm_b32 v{t}, {K(2,p)}, {K(3,p)}, {sel}",
            f"v_perm_b32 v{t+1}, {K(0,p)}, {K(1,p)}, {sel}",
            f"v_perm_b32 v{t+2}, {K(3,p)}, {K(4,p)}, {sel}",
            f"v_perm_b32 v{t+3}, {K(1,p)}, {K(2,p)}, {sel}",
            f"v_dot2_f32_bf16 v{t+4}, v{t}, v{46+2*i}, 0",
            f"v_dot2_f32_bf16 v{t+5}, v{t+2}, v{46+2*i}, 0",
            f"v_dot2_f32_bf16 v{t+4}, v{t+1}, v{47+2*i}, v{t+4}",
            f"v_dot2_f32_bf16 v{t+5}, v{t+3}, v{47+2*i}, v{t+5}",
            (f"v_lshlrev_b32 v{t+6}, 16, v{30+p}" if half == 0 else f"v_and_b32 v{t+6}, s72, v{30+p}"),
            (f"v_lshlrev_b32 v{t+7}, 16, v{34+p}" if half == 0 else f"v_and_b32 v{t+7}, s72, v{34+p}"),
            f"v_mul_f32 v{t+4}, v{t+4}, v{t+6}",
            f"v_mul_f32 v{t+5}, v{t+5}, v{t+7}",
            f"v_cvt_pk_bf16_f32 v{t+4}, v{t+5}, v{t+4}",
            f"ds_write_b32 v95, v{t+4} offset:{128*i}",
        ])
    for k in range(len(seq[0])):
        A(seq[0][k]); A(seq[1][k])
p0wait(0)
for p in range(4):
    A(f"ds_write2_b32 v96, v{38+p}, v{42+p} offset0:{64*p} offset1:{64*p+1}")
A("""s_waitcnt lgkmcnt(0)
s_barrier""")
A(f"""s_and_b32 s36, s2, 7
s_mul_i32 s66, s37, 37
s_lshr_b32 s66, s66, 8
s_mul_i32 s67, s66, 7
s_sub_u32 s41, s37, s67
s_lshl_b32 s40, s36, 2
s_add_u32 s40, s40, s66
s_lshr_b32 s80, s40, 1
s_lshr_b32 s38, s36, 1
s_lshl_b32 s38, s38, 2
s_add_u32 s38, s38, s66
s_and_b32 s39, s36, 1
s_mul_i32 s39, s39, 7
s_add_u32 s39, s39, s41""")
ldmaw = A.label("dmaw"); laddr = A.label("w1addr"); ljoin = A.label("w1join")
A(f"s_cmp_ge_u32 s3, 2\ns_cbranch_scc1 {ldmaw}")
for q in range(4):
    if q == 0:
        A("ds_read_b128 v[10:13], v100\nds_read_b128 v[26:29], v106")
    else:
        A(f"v_xor_b32 v110, {32*q}, v100\nv_xor_b32 v111, {32*q}, v106\nds_read_b128 v[{10+4*q}:{13+4*q}], v110 offset:{2048*q}\nds_read_b128 v[{26+4*q}:{29+4*q}], v111 offset:{2048*q}")
for j in range(4):
    A(f"ds_read_b64_tr_b16 v[{42+4*j}:{43+4*j}], v123 offset:{128*j}\nds_read_b64_tr_b16 v[{44+4*j}:{45+4*j}], v123 offset:{128*j+3584}")
A("v_mov_b32 v248, 0\nglobal_load_dword v249, v248, s[32:33] sc1\ns_waitcnt lgkmcnt(0)")
for q in range(4):
    A(f"global_store_dwordx4 v102, v[{10+4*q}:{13+4*q}], s[52:53] sc1")
    if q < 3: A("v_add_u32 v102, 65536, v102")
for q in range(4):
    A(f"global_store_dwordx4 v108, v[{26+4*q}:{29+4*q}], s[54:55] sc1")
    if q < 3: A("v_add_u32 v108, 65536, v108")
lsk = A.label("w2s"); lsk2 = A.label("w2t")
for j in range(3):
    A(f"global_store_dwordx4 v124, v[{42+4*j}:{45+4*j}], s[62:63] sc1")
    A(f"v_add_u32 v124, {2*112*1024}, v124")
A(f"""s_cmp_eq_u32 s3, 1
s_cbranch_scc1 {lsk}
global_store_dwordx4 v124, v[54:57], s[62:63] sc1
s_branch {lsk2}
{lsk}:
v_subrev_u32 v124, {2*112*1024}, v124
s_nop 0
global_store_dwordx4 v124, v[50:53], s[62:63] sc1
{lsk2}:
s_barrier""")
stamp(1)
def lds_count_signal(off, last, build_addr):
    ln = A.label("nl")
    A(f"""v_mov_b32 v110, 1
    s_mov_b64 s[64:65], exec
    s_mov_b64 exec, 1
    ds_add_rtn_u32 v111, v101, v110 offset:{off}
    s_waitcnt lgkmcnt(0)
    v_readfirstlane_b32 s66, v111
    s_mov_b64 exec, s[64:65]
    s_cmp_eq_u32 s66, {last}
    s_cbranch_scc0 {ln}""")
    lio = A.label("initok")
    A(f"v_cmp_ne_u32 vcc, 1, v249\ns_cbranch_vccz {lio}")
    emit_poll("v248", 1, base="s[32:33]")
    A(f"v_mov_b32 v249, 1\n{lio}:")
    A(build_addr)
    emit_signal("s66")
    A(f"{ln}:")
A("s_waitcnt vmcnt(8)")
lds_count_signal(0, 1, "s_mov_b32 s66, s42")
stamp(2)
rstamp(32)
A("s_waitcnt vmcnt(0)")
lds_count_signal(4, 3, f"s_add_u32 s66, s36, {CL_AUX}")
A(f"""v_lshrrev_b32 v10, 5, v1
v_mul_u32_u24 v10, 4608, v10
v_and_b32 v11, 31, v1
v_lshl_add_u32 v10, v11, 4, v10
v_add_u32 v10, {L_UR + 4096}, v10
v_mov_b32 v12, 0
v_mov_b32 v13, 0
v_mov_b32 v14, 0
v_mov_b32 v15, 0
ds_write_b128 v10, v[12:15]
s_branch {laddr}""")
A(f"{ldmaw}:")
srd(44, 22, D*F*2)
A(f"""v_lshrrev_b32 v11, 4, v1
v_lshlrev_b32 v12, 2, v11
v_and_b32 v13, 15, v1
v_xor_b32 v12, v12, v13
v_lshlrev_b32 v12, 4, v12
v_mul_u32_u24 v11, 3584, v11
v_add_u32 v11, v11, v12
s_lshl_b32 s66, s39, 8
v_add_u32 v11, s66, v11
v_mov_b32 v13, s79
s_lshl_b32 s77, s77, 16
v_mov_b32 v12, s77
ds_write_b32 v13, v12
v_mov_b32 v248, 0
global_load_dword v249, v248, s[32:33] sc1
s_barrier""")
lns = A.label("nost2")
A(f"s_cmp_eq_u32 s76, 0\ns_cbranch_scc1 {lns}")
b = 64
A("s_waitcnt vmcnt(1)")
A(f"v_dot2_f32_bf16 v16, v{b}, s73, 0\nv_dot2_f32_bf16 v17, v{b}, v{b}, 0\nv_dot2_f32_bf16 v18, v{b+1}, s73, 0\nv_dot2_f32_bf16 v19, v{b+1}, v{b+1}, 0")
for i in range(2, 28, 2):
    A(f"v_dot2_f32_bf16 v16, v{b+i}, s73, v16\nv_dot2_f32_bf16 v17, v{b+i}, v{b+i}, v17\nv_dot2_f32_bf16 v18, v{b+i+1}, s73, v18\nv_dot2_f32_bf16 v19, v{b+i+1}, v{b+i+1}, v19")
A("""s_nop 2
v_add_f32 v16, v16, v18
v_add_f32 v17, v17, v19
s_nop 1
v_add_f32_dpp v16, v16, v16 quad_perm:[1,0,3,2] row_mask:0xf bank_mask:0xf
v_add_f32_dpp v17, v17, v17 quad_perm:[1,0,3,2] row_mask:0xf bank_mask:0xf
s_nop 1
v_add_f32_dpp v16, v16, v16 quad_perm:[2,3,0,1] row_mask:0xf bank_mask:0xf
v_add_f32_dpp v17, v17, v17 quad_perm:[2,3,0,1] row_mask:0xf bank_mask:0xf
s_nop 1
v_add_f32_dpp v16, v16, v16 row_half_mirror row_mask:0xf bank_mask:0xf
v_add_f32_dpp v17, v17, v17 row_half_mirror row_mask:0xf bank_mask:0xf
s_mov_b32 s66, 0x3b124925
v_mul_f32 v16, s66, v16
v_mul_f32 v17, s66, v17
v_fma_f32 v17, -v16, v16, v17
v_add_f32 v17, 0x3727c5ac, v17
v_rsq_f32 v17, v17
v_lshlrev_b32 v120, 2, v120
v_cmp_eq_u32 vcc, 0, v122
v_mul_f32 v18, -v16, v17
v_add_u32 v121, 8192, v120
s_and_saveexec_b64 s[64:65], vcc
global_store_dword v120, v17, s[58:59] sc1
global_store_dword v121, v18, s[58:59] sc1
s_mov_b64 exec, s[64:65]""")
A(f"{lns}:\ns_waitcnt vmcnt(0)")
lds_count_signal(4, 3, f"s_add_u32 s66, s36, {CL_AUX}")
lg = A.label("gate")
A(f"""{lg}:
ds_read_b64 v[12:13], v101
s_waitcnt lgkmcnt(0)
v_add_u32 v12, v12, v13
s_nop 0
v_readfirstlane_b32 s66, v12
s_nop 0
s_cmp_lt_u32 s66, 6
s_cbranch_scc1 {lg}
s_sub_u32 s66, s3, 2
s_mul_i32 s66, s66, 56
s_mul_i32 s67, s66, 14336
s_lshl_b32 s66, s66, 10
s_add_u32 m0, s66, {L_W1}
s_mov_b32 s69, 14""")
lp = A.label("w1l")
A(f"{lp}:")
for j in range(4):
    if E("NOW1", 0): continue
    A(f"s_nop 0\nbuffer_load_dwordx4 v11, s[44:47], s67 offen lds\ns_add_u32 m0, m0, 1024\ns_add_u32 s67, s67, 14336")
A(f"""s_sub_u32 s69, s69, 1
s_cmp_lg_u32 s69, 0
s_cbranch_scc1 {lp}""")
stamp(24, 3)
if E("FLOODWAIT", 0):
    A("s_waitcnt vmcnt(0)")
    stamp(25, 3)
A(f"{laddr}:")
XV, STV = 170, 178
A(f"""s_lshl_b32 s66, s2, 2
s_load_dword s74, s[18:19], s66
v_and_b32 v194, 15, v1
v_lshrrev_b32 v195, 4, v1
v_lshlrev_b32 v196, 4, v194
v_lshl_add_u32 v196, v195, 2, v196
s_lshl_b32 s66, s3, 9
v_add_u32 v196, s66, v196
v_lshlrev_b32 v197, 2, v196
v_mov_b32 v198, v197
s_lshl_b32 s66, s2, 13
v_add_u32 v197, s66, v197
s_lshr_b32 s66, s3, 1
s_and_b32 s67, s3, 1
s_mul_i32 s68, s66, 8320
s_lshl_b32 s69, s67, 8
s_sub_u32 s68, s68, s69
s_add_u32 s68, s68, {L_KA - 32}
v_add_u32 v199, 1, v194
v_lshrrev_b32 v199, 1, v199
v_lshl_add_u32 v199, v195, 2, v199
v_lshlrev_b32 v199, 2, v199
v_and_b32 v200, 1, v194
v_cmp_eq_u32 vcc, 0, v200
v_mov_b32 v201, 4160
v_add_u32 v199, s68, v199
v_cndmask_b32 v201, 0, v201, vcc
v_add_u32 v199, v199, v201
v_add_u32 v200, 1024, v199
v_add_u32 v201, 2048, v199
v_add_u32 v202, 3072, v199
s_mul_i32 s68, s66, 4608
s_sub_u32 s68, s68, s69
s_add_u32 s68, s68, {L_UR + 736}
v_lshlrev_b32 v203, 5, v194
v_sub_u32 v203, s68, v203
v_lshl_add_u32 v203, v195, 4, v203
s_cmp_eq_u32 s67, 0
s_cselect_b32 s68, 64, 0
v_lshl_add_u32 v204, v195, 3, v194
v_add_u32 v204, s68, v204
s_mov_b32 s75, 0xffff""")
for k in range(4):
    A(f"""v_cmp_le_u32 vcc, {15-2*k}, v204
    v_mov_b32 v205, s75
    s_nop 0
    v_cndmask_b32 v{206+k}, 0, v205, vcc
    v_cmp_le_u32 vcc, {14-2*k}, v204
    v_mov_b32 v205, s72
    s_nop 0
    v_cndmask_b32 v205, 0, v205, vcc
    v_or_b32 v{206+k}, v{206+k}, v205""")
A(f"""v_lshlrev_b32 v211, 4, v1
s_lshl_b32 s66, s3, 13
v_add_u32 v212, s66, v211
v_add_u32 v212, {L_X}, v212
s_lshl_b32 s66, s3, 11
v_add_u32 v213, s66, v211
v_add_u32 v213, {L_X}, v213
s_lshl_b32 s66, s3, 10
s_sub_u32 s66, {L_UR + 4088 - 512}, s66
v_lshlrev_b32 v210, 5, v194
v_lshl_add_u32 v210, v195, 3, v210
v_sub_u32 v210, s66, v210
v_and_b32 v214, 7, v1
v_add_u32 v214, {CL_AUX}, v214
v_lshlrev_b32 v214, 7, v214
s_mul_i32 s66, s41, {2*112*1024}
s_mul_i32 s67, s3, {28*1024}
s_add_u32 s81, s66, s67
s_and_b32 s67, s3, 1
s_mul_i32 s67, s67, {112*1024}
s_add_u32 s95, s81, {112*1024}
s_sub_u32 s95, s95, s67
s_add_u32 s81, s81, s67""")
srd(84, 62, F*D*2)
ACC = 138
for j in range(32): A(f"v_mov_b32 v{ACC+j}, 0")
lnw0 = A.label("w1n0")
A(f"s_cmp_lg_u32 s3, 0\ns_cbranch_scc1 {lnw0}")
A(f"s_lshl_b32 s66, s42, 7\nv_mov_b32 v16, s66")
emit_poll("v16", "32")
stamp(3)
A(f"""v_lshlrev_b32 v10, 4, v1
s_lshl_b32 s66, s2, 13
v_add_u32 v10, s66, v10
s_mov_b32 m0, {L_UR}""")
for c in range(2):
    for j in range(4):
        A(f"s_nop 0\nglobal_load_lds_dwordx4 v10, s[52:53] sc1\nv_add_u32 v10, 1024, v10\ns_add_u32 m0, m0, {1024 if j < 3 else 4608-3072}")
A(f"""s_waitcnt vmcnt(0) lgkmcnt(0)
s_branch {ljoin}
{lnw0}:
s_cmp_eq_u32 s3, 1
s_cbranch_scc1 {ljoin}
s_waitcnt vmcnt({0 if E("NOW1", 0) else 56}) lgkmcnt(0)
{ljoin}:
s_barrier""")
stamp(4)
rstamp(33)

AB = [10, 42]; UB = [74, 106]
def conv_loads(s, buf):
    L = []
    for m in range(8):
        L.append(f"ds_read_b128 v[{UB[buf]+4*m}:{UB[buf]+4*m+3}], v203 offset:{64*(59-8*m-s)}")
    for n in range(8):
        base = 199 + (n >> 1)
        o = (n & 1)*128 + 16*(7-s)
        L.append(f"ds_read2_b32 v[{AB[buf]+4*n}:{AB[buf]+4*n+1}], v{base} offset0:{o} offset1:{o+1}")
        L.append(f"ds_read2_b32 v[{AB[buf]+4*n+2}:{AB[buf]+4*n+3}], v{base} offset0:{o+2} offset1:{o+3}")
    return L
def w2f_load(dd, kk):
    L = []
    if kk % 4 == 0:
        L += [f"s_add_u32 s82, {'s81' if dd == 0 else 's95'}, {4096*(kk>>2)}"]
    a = 4*(dd*28 + kk)
    L += [f"buffer_load_dwordx4 a[{a}:{a+3}], v211, s[84:87], s82 offen offset:{1024*(kk&3)} sc1"]
    return L
for l in conv_loads(0, 0): A(l)
A(f"""global_load_dword v215, v214, s[34:35] sc1
s_waitcnt lgkmcnt(0)""")
stamp(19)
nw = 0
for s in range(4):
    buf = s & 1
    nxt = conv_loads(s+1, buf ^ 1) if s < 3 else []
    if s == 3:
        for k in range(4): A(f"v_and_b32 v{AB[buf]+k}, v{206+k}, v{AB[buf]+k}")
        A("s_nop 1")
    if s == E('AUXS', 1):
        lok = A.label("auxok"); lp = A.label("auxp")
        A(f"""s_cmp_lg_u32 s3, 0
        s_cbranch_scc1 {lok}
        s_waitcnt vmcnt(0)
        v_cmp_ne_u32 vcc, 28, v215
        s_cbranch_vccz {lok}""")
        emit_poll("v214", "28")
        A(f"""{lok}:
        s_barrier
        v_add_u32 v216, 8192, v198
        global_load_dwordx4 v[{XV}:{XV+3}], v197, s[54:55] sc1
        global_load_dwordx4 v[{XV+4}:{XV+7}], v197, s[54:55] offset:1024 sc1
        global_load_dwordx4 v[{STV}:{STV+3}], v198, s[58:59] sc1
        global_load_dwordx4 v[{STV+4}:{STV+7}], v216, s[58:59] sc1
        global_load_dwordx4 v[{STV+8}:{STV+11}], v198, s[58:59] offset:1024 sc1
        global_load_dwordx4 v[{STV+12}:{STV+15}], v216, s[58:59] offset:1024 sc1""")
    pairs = [(m, n) for m in range(8) for n in range(8 - m)]
    for idx, (m, n) in enumerate(pairs):
        j = m + n
        A(f"v_mfma_f32_16x16x32_bf16 v[{ACC+4*j}:{ACC+4*j+3}], v[{AB[buf]+4*n}:{AB[buf]+4*n+3}], v[{UB[buf]+4*m}:{UB[buf]+4*m+3}], v[{ACC+4*j}:{ACC+4*j+3}]")
        if idx < len(nxt): A(nxt[idx])
        if s >= E('AUXS', 1) and idx % (4 if E('AUXS', 1) == 1 else 2) == 1 and nw < 28 and not E("NOW2A", 0):
            for l in w2f_load(0, nw): A(l)
            nw += 1
    if s < 3: A("s_waitcnt lgkmcnt(0)")
while nw < 28 and not E("NOW2A", 0):
    for l in w2f_load(0, nw): A(l)
    nw += 1
stamp(5)
A("s_barrier")
for j in range(8):
    A(f"ds_write_b128 v212, v[{ACC+4*j}:{ACC+4*j+3}] offset:{1024*j}")
A("s_waitcnt lgkmcnt(0)\ns_barrier")
PB = 10
for jj in range(2):
    for w_ in range(4):
        A(f"ds_read_b128 v[{PB+16*jj+4*w_}:{PB+16*jj+4*w_+3}], v213 offset:{8192*w_+1024*jj}")
for jj in range(2):
    for c in range(2):
        A(f"ds_read_b64 v[{42+4*jj+2*c}:{43+4*jj+2*c}], v210 offset:{(512 if jj == 0 else 0) + 4608*c}")
A(f"""s_and_b32 s75, s74, s72
s_lshl_b32 s74, s74, 16
s_waitcnt vmcnt({0 if E("NOW2A", 0) else 28})""")
P2 = lambda r: f"v[{r}:{r+1}]"
for jj in range(2):
    P = PB + 16*jj
    X = XV + 4*jj; SA = STV + 8*jj; SB = SA + 4
    t = 50
    for c in range(2):
        q = t + 8*c
        for i in range(4):
            A(f"v_lshlrev_b32 v{q+i}, 16, v{X+i}" if c == 0 else f"v_and_b32 v{q+i}, s72, v{X+i}")
        for i in (0, 2):
            A(f"v_pk_fma_f32 {P2(q+4+i)}, {P2(q+i)}, {P2(SA+i)}, {P2(SB+i)}")
    A(f"s_waitcnt lgkmcnt({8 if jj == 0 else 0})")
    if jj == 0: A("s_waitcnt lgkmcnt(2)")
    for i in (0, 2):
        A(f"v_pk_add_f32 {P2(P+i)}, {P2(P+i)}, {P2(P+4+i)}\nv_pk_add_f32 {P2(P+8+i)}, {P2(P+8+i)}, {P2(P+12+i)}")
    for c in range(2):
        U = 42 + 4*jj + 2*c
        Y = P + 8*c
        u = 66 + 4*c
        A(f"v_and_b32 v{u}, s72, v{U+1}\nv_lshlrev_b32 v{u+1}, 16, v{U+1}\nv_and_b32 v{u+2}, s72, v{U}\nv_lshlrev_b32 v{u+3}, 16, v{U}")
        sel = "op_sel:[0,0,0] op_sel_hi:[1,0,1]" if c == 0 else "op_sel:[0,1,0] op_sel_hi:[1,1,1]"
        for i in (0, 2):
            A(f"v_pk_fma_f32 {P2(Y+i)}, {P2(u+i)}, s[74:75], {P2(Y+i)} {sel}")
        q = t + 8*c
        for i in (0, 2):
            A(f"v_pk_fma_f32 {P2(Y+i)}, {P2(q+4+i)}, {P2(Y+i)}, {P2(q+i)}")
    for i in range(4):
        A(f"v_cvt_pk_bf16_f32 v{74+4*jj+i}, v{P+i}, v{P+8+i}")
    A(f"global_store_dwordx4 v197, v[{74+4*jj}:{77+4*jj}], s[56:57] offset:{1024*jj} sc1")
stamp(6)
A("s_waitcnt vmcnt(0)\ns_barrier")
lw = A.label("s2w0")
wave0_only(lw)
A(f"s_add_u32 s66, s36, {CL_S2}")
emit_signal("s66")
A(f"{lw}:")
stamp(7)
rstamp(34)

A(f"""v_lshrrev_b32 v10, 5, v1
v_bfe_u32 v11, v1, 2, 2
v_lshl_add_u32 v10, v10, 3, v11
v_lshlrev_b32 v10, 8, v10
v_bfe_u32 v12, v1, 4, 1
v_bfe_u32 v13, v1, 1, 1
v_lshl_add_u32 v12, v12, 1, v13
v_lshlrev_b32 v12, 4, v12
v_add_u32 v10, v10, v12
v_and_b32 v12, 1, v1
v_lshl_add_u32 v10, v12, 3, v10
s_lshl_b32 s66, s3, 12
v_add_u32 v10, s66, v10
v_lshlrev_b32 v11, 6, v11""")
for ft in range(4):
    A(f"v_xor_b32 v{2+ft}, {64*ft}, v11\nv_add_u32 v{2+ft}, v{2+ft}, v10\nv_add_u32 v{6+ft}, 65536, v{2+ft}")
A(f"""v_lshlrev_b32 v12, 4, v1
v_add_u32 v12, s66, v12
v_add_u32 v13, 65536, v12
s_lshl_b32 s66, s39, 7
s_lshl_b32 s67, s3, 5
s_add_u32 s66, s66, s67
v_and_b32 v14, 31, v1
v_add_u32 v14, s66, v14
v_lshlrev_b32 v14, 1, v14
global_load_ushort v15, v14, s[24:25]""")
CB = 16
def cv_reads(i):
    L = []
    for ft in range(4):
        base, off = (2+ft, 16384*i) if i < 4 else (6+ft, 16384*(i-4))
        r = CB + 16*i + 4*ft
        L += [f"ds_read_b64_tr_b16 v[{r}:{r+1}], v{base} offset:{off}", f"ds_read_b64_tr_b16 v[{r+2}:{r+3}], v{base} offset:{off+1024}"]
    return L
def cv_writes(i):
    base, off = (12, 16384*i) if i < 4 else (13, 16384*(i-4))
    return [f"ds_write_b128 v{base}, v[{CB+16*i+4*ft}:{CB+16*i+4*ft+3}] offset:{off+1024*ft}" for ft in range(4)]
for l in cv_reads(0): A(l)
for i in range(7):
    if i < 6:
        for l in cv_reads(i+1): A(l)
        A("s_waitcnt lgkmcnt(8)")
    else:
        A("s_waitcnt lgkmcnt(0)")
    for l in cv_writes(i): A(l)
    for kk in range(4*i, 4*i+4):
        for l in w2f_load(1, kk): A(l)
A("s_waitcnt lgkmcnt(0)\ns_barrier")
A(f"""s_lshl_b32 s66, s3, 10
v_lshl_add_u32 v6, v1, 4, s66
v_add_u32 v7, 57344, v6""")
for half in range(2):
    base = "v6" if half == 0 else "v7"
    for k in range(14):
        A(f"ds_read_b128 v[{64+56*half+4*k}:{67+56*half+4*k}], {base} offset:{4096*k}")
    if half == 1: pass
for half in range(2):
    for k in range(14):
        idx = 14*half + k
        A(f"s_waitcnt lgkmcnt({min(15, 27-idx)})")
        for r in range(4):
            reg = 64+56*half+4*k+r
            if idx == 0:
                A(f"v_dot2_f32_bf16 v{42+r}, v{reg}, s73, 0")
            else:
                A(f"v_dot2_f32_bf16 v{42+r}, v{reg}, s73, v{42+r}")
A(f"""s_nop 2
v_add_f32 v42, v42, v43
v_add_f32 v44, v44, v45
s_nop 0
v_add_f32 v42, v42, v44
v_mov_b32 v43, v42
s_nop 1
v_permlane32_swap_b32 v42, v43
s_nop 1
v_add_f32 v42, v42, v43
v_cvt_pk_bf16_f32 v43, -v42, -v42
v_and_b32 v44, s72, v43
v_add_f32 v44, v42, v44
v_cvt_pk_bf16_f32 v44, -v44, -v44
s_waitcnt vmcnt(28)
v_perm_b32 v46, v44, v43, s70
v_perm_b32 v47, v15, v43, s70
v_mov_b32 v48, v15
v_mov_b32 v49, 0
v_cmp_gt_u32 vcc, 32, v1
v_lshlrev_b32 v50, 4, v1
s_lshl_b32 s66, s3, 10
s_add_u32 s66, s66, {L_AUG}
v_cndmask_b32 v46, 0, v46, vcc
v_cndmask_b32 v47, 0, v47, vcc
v_cndmask_b32 v48, 0, v48, vcc
v_add_u32 v50, s66, v50
ds_write_b128 v50, v[46:49]
v_lshrrev_b32 v10, 5, v1
v_lshlrev_b32 v2, 13, v10
v_and_b32 v11, 31, v1
v_lshl_add_u32 v2, v11, 4, v2
s_lshl_b32 s66, s38, 9
s_lshl_b32 s67, s3, 15
s_add_u32 s66, s66, s67
v_add_u32 v2, s66, v2
v_add_u32 v3, 15360, v2
v_lshlrev_b32 v4, 11, v10
v_lshl_add_u32 v4, v11, 2, v4
s_lshl_b32 s66, s3, 7
s_add_u32 s66, s66, {L_X}
v_add_u32 v4, s66, v4""")
srd(48, 56, S*D*2)
A(f"""v_lshlrev_b32 v6, 4, v1
v_add_u32 v7, 57344, v6
v_add_u32 v5, {L_AUG}, v6
s_mov_b32 s77, {'s39' if not E('NOROT2',0) else '0'}
s_lshl_b32 s78, s3, 11
s_add_u32 s78, s78, {L_X}
s_waitcnt lgkmcnt(0)""")
stamp(8)
lw = A.label("s2p")
wave0_only(lw)
A(f"v_and_b32 v16, 7, v1\nv_add_u32 v16, {CL_S2}, v16\nv_lshlrev_b32 v16, 7, v16\nv_mov_b32 v17, 28")
emit_poll("v16", "v17")
A(f"{lw}:\ns_barrier")
stamp(9)
rstamp(35)

BF = 16
TL = [128, 144, 160, 176]
AF = 192
NSLOT = 6; PDC = 5
def dmaH(c, part=None):
    L = [[f"s_add_u32 m0, s78, {8192*(c % NSLOT)}", f"s_mov_b32 s76, {c << 17}", "buffer_load_dwordx4 v2, s[48:51], s76 offen sc1 lds"],
         ["buffer_load_dwordx4 v3, s[48:51], s76 offen offset:1024 sc1 lds"]]
    for p in ((0, 1) if part is None else (part,)):
        for x in L[p]: A(x)
for c in range(PDC): dmaH(c)
for t in range(4):
    A(f"ds_read_b128 a[{224+4*t}:{227+4*t}], v5 offset:{1024*t}")
def afrag_addr(ks, ft):
    return ("v6", 4096*ks + 1024*ft) if ks < 14 else ("v7", 4096*(ks-14) + 1024*ft)
def ldA(ks, ft):
    b, o = afrag_addr(ks, ft)
    r = AF + 16*(ks & 1) + 4*ft
    A(f"ds_read_b128 v[{r}:{r+3}], {b} offset:{o}")
def M(ks, t):
    b = BF + 4*ks
    r = AF + 16*(ks & 1) + 4*t
    cc = "0" if ks == 0 else f"v[{TL[t]}:{TL[t]+15}]"
    A(f"v_mfma_f32_32x32x16_bf16 v[{TL[t]}:{TL[t]+15}], v[{r}:{r+3}], v[{b}:{b+3}], {cc}")
def rdB(c, ksl):
    so = 32*(c % NSLOT)
    b = BF + 4*(2*c + ksl)
    A(f"ds_read2st64_b32 v[{b}:{b+1}], v4 offset0:{so+16*ksl} offset1:{so+16*ksl+2}")
    A(f"ds_read2st64_b32 v[{b+2}:{b+3}], v4 offset0:{so+16*ksl+4} offset1:{so+16*ksl+6}")
for t in range(4): ldA(0, t)
for c in range(15):
    if c < 14:
        A(f"s_waitcnt vmcnt({2*(min(c+PDC-1, 13) - c)}) lgkmcnt(0)")
    else:
        A("s_waitcnt lgkmcnt(0)")
    if c == 0:
        A("s_barrier")
        stamp(20)
        rdB(0, 0); rdB(0, 1); dmaH(PDC)
        continue
    k0, k1, k2 = 2*c-2, 2*c-1, 2*c
    M(k0, 0); ldA(k1, 0); ldA(k1, 1)
    M(k0, 1); ldA(k1, 2); ldA(k1, 3)
    if c < 14: A("s_barrier")
    if c in (4, 8, 12): stamp(20 + c//4)
    M(k0, 2)
    if c < 14: rdB(c, 0)
    M(k0, 3)
    if c < 14: rdB(c, 1)
    A(f"s_waitcnt lgkmcnt({4 if c < 14 else 0})")
    M(k1, 0)
    if c < 14: ldA(k2, 0); ldA(k2, 1)
    M(k1, 1)
    if c < 14: ldA(k2, 2); ldA(k2, 3)
    M(k1, 2)
    if c + PDC <= 13: dmaH(c + PDC, 0)
    M(k1, 3)
    if c + PDC <= 13: dmaH(c + PDC, 1)
stamp(10)
ST0 = 232
for ks in range(28):
    b = BF + 4*ks
    for r in range(4):
        if E("NODOT", 0): continue
        if ks == 0 and r < 2:
            A(f"v_dot2_f32_bf16 v{ST0+(r&1)}, v{b+r}, s73, 0")
            A(f"v_dot2_f32_bf16 v{ST0+2+(r&1)}, v{b+r}, v{b+r}, 0")
        else:
            A(f"v_dot2_f32_bf16 v{ST0+(r&1)}, v{b+r}, s73, v{ST0+(r&1)}")
            A(f"v_dot2_f32_bf16 v{ST0+2+(r&1)}, v{b+r}, v{b+r}, v{ST0+2+(r&1)}")
A(f"""s_nop 1
v_add_f32 v232, v232, v233
v_add_f32 v234, v234, v235
v_mov_b32 v233, v232
v_mov_b32 v235, v234
v_lshlrev_b32 v9, 4, v1
s_nop 0
v_permlane32_swap_b32 v232, v233
v_permlane32_swap_b32 v234, v235
s_mov_b32 s66, 0x3b124925
s_nop 0
v_add_f32 v232, v232, v233
v_add_f32 v234, v234, v235
v_mul_f32 v232, s66, v232
v_mul_f32 v234, s66, v234
v_fma_f32 v234, -v232, v232, v234
v_add_f32 v234, 0x3727c5ac, v234
v_rsq_f32 v235, v234
v_sqrt_f32 v230, v234
s_mov_b32 s66, 0xc0135761
s_mov_b32 s67, 0xbdd2d3e8
v_mul_f32 v229, s66, v235
v_mul_f32 v228, v235, v235
v_mul_f32 v228, v228, v235
v_mul_f32 v228, s67, v228
v_cvt_pk_bf16_f32 v233, v232, v232
v_and_b32 v231, s72, v233
v_sub_f32 v231, v232, v231
v_cvt_pk_bf16_f32 v236, v230, v230
v_and_b32 v237, s72, v236
v_sub_f32 v237, v230, v237
v_and_b32 v225, s72, v236
v_cvt_pk_bf16_f32 v231, v231, v231
v_and_b32 v231, 0xffff, v231
v_or_b32 v225, v225, v231
v_cvt_pk_bf16_f32 v226, v237, 0
v_mov_b32 v224, v233
v_mov_b32 v227, 0
v_cmp_gt_u32 vcc, 32, v1
s_lshl_b32 s66, s38, 2
s_add_u32 s66, s66, s3
v_cndmask_b32 v224, 0, v224, vcc
v_cndmask_b32 v225, 0, v225, vcc
v_cndmask_b32 v226, 0, v226, vcc
s_mul_i32 s66, s66, 56
s_lshl_b32 s67, s39, 2""")
for t in range(4):
    A(f"v_mfma_f32_32x32x16_bf16 v[{TL[t]}:{TL[t]+15}], a[{224+4*t}:{227+4*t}], v[224:227], v[{TL[t]}:{TL[t]+15}]")
A(f"""s_add_u32 s66, s66, s67
s_lshl_b32 s66, s66, 11
v_lshl_add_u32 v8, v1, 4, s66
v_add_u32 v11, 4096, v8""")
GT = 236
def gelu_pk(tile, grp):
    L = []
    w = [TL[tile] + 8*grp + 2*e for e in range(4)]
    t = [GT + 2*e for e in range(4)]
    P = lambda r: f"v[{r}:{r+1}]"
    L += [f"v_pk_mul_f32 {P(t[e])}, {P(w[e])}, {P(w[e])}" for e in range(4)]
    L += [f"v_pk_fma_f32 {P(t[e])}, {P(t[e])}, v[228:229], v[228:229] op_sel:[0,0,1] op_sel_hi:[1,0,1]" for e in range(4)]
    L += [f"v_pk_mul_f32 {P(t[e])}, {P(t[e])}, {P(w[e])}" for e in range(4)]
    L += [f"v_exp_f32 v{t[e]+k}, v{t[e]+k}" for e in range(4) for k in range(2)]
    L += [f"v_pk_fma_f32 {P(t[e])}, {P(t[e])}, v[230:231], v[230:231] op_sel_hi:[1,0,0]" for e in range(4)]
    L += [f"v_rcp_f32 v{t[e]+k}, v{t[e]+k}" for e in range(4) for k in range(2)]
    L += [f"v_pk_mul_f32 {P(w[e])}, {P(w[e])}, {P(t[e])}" for e in range(4)]
    return L
def cvts(tile):
    o = AF + 8*(tile & 1)
    return [f"v_cvt_pk_bf16_f32 v{o+k}, v{TL[tile]+2*k}, v{TL[tile]+2*k+1}" for k in range(8)]
def h_store(tile):
    o = AF + 8*(tile & 1)
    base, off = ("v8", 2048*tile) if tile < 2 else ("v11", 2048*(tile-2))
    return [f"global_store_dwordx4 {base}, v[{o}:{o+3}], s[60:61] offset:{off} sc1", f"global_store_dwordx4 {base}, v[{o+4}:{o+7}], s[60:61] offset:{off+1024} sc1"]
def w2f_loadB(kk):
    return [l.replace("v211", "v9") for l in w2f_load(1, kk)]
stamp(11)
A("s_nop 7")
for t in range(4):
    for grp in range(2):
        for x in gelu_pk(t, grp): A(x)
    for x in cvts(t) + h_store(t): A(x)
stamp(12)
A("s_waitcnt vmcnt(0)\ns_barrier")
lw = A.label("s3w0")
wave0_only(lw)
A(f"s_add_u32 s66, s38, {CL_S3}")
emit_signal("s66")
A(f"{lw}:")
A(f"""s_lshr_b32 s66, s3, 1
s_and_b32 s67, s3, 1
s_lshl_b32 s68, s40, 1
s_add_u32 s68, s68, s66
s_lshl_b32 s68, s68, 7
s_lshl_b32 s69, s41, 1
s_add_u32 s69, s69, s67
s_lshl_b32 s76, s69, 17
s_add_u32 s68, s68, s76
v_lshrrev_b32 v12, 5, v1
v_lshlrev_b32 v13, 14, v12
v_and_b32 v14, 31, v1
v_lshl_add_u32 v13, v14, 2, v13
v_add_u32 v13, s68, v13""")
for j in range(4):
    A(f"buffer_load_dword v{16+2*j}, v13, s[48:51], 0 offen sc1")
    A(f"v_add_u32 v14, 8192, v13")
    A(f"buffer_load_dword v{17+2*j}, v14, s[48:51], 0 offen sc1")
    if j < 3: A("v_add_u32 v13, 32768, v13")
A(f"""s_lshl_b32 s69, s69, 6
v_lshl_add_u32 v12, v12, 3, s69""")
for j in range(4):
    A(f"global_load_dwordx2 v[{24+2*j}:{25+2*j}], v12, s[28:29] offset:{16*j}")
stamp(13)
rstamp(36)

ACC3 = 32; RING = 96; NS = 20
A(f"""s_lshl_b32 s66, s40, 1
s_mul_i32 s66, s66, {112*1024}
s_mul_i32 s67, s3, {28*1024}
s_add_u32 s81, s66, s67
s_lshr_b32 s67, s3, 1
s_mul_i32 s67, s67, {112*1024}
v_lshlrev_b32 v4, 4, v1
v_add_u32 v2, s67, v4
s_sub_u32 s67, {112*1024}, s67
v_add_u32 v3, s67, v4""")
srd(44, 60, S*F*2)
for sl in (1, 2, 3):
    A(f"""s_xor_b32 s66, s3, {sl}
    s_lshl_b32 s67, s66, 2
    s_add_u32 s67, s67, s3
    s_lshl_b32 s67, s67, 12
    v_add_u32 v{224+sl}, s67, v4
    s_lshl_b32 s67, s3, 2
    s_add_u32 s67, s67, s66
    s_lshl_b32 s67, s67, 12
    v_add_u32 v{228+sl}, s67, v4""")
A(f"""s_lshr_b32 s66, s3, 1
s_and_b32 s67, s3, 1
s_lshl_b32 s68, s40, 1
s_add_u32 s68, s68, s66
s_lshl_b32 s68, s68, 5
v_and_b32 v6, 31, v1
v_add_u32 v6, s68, v6
v_mul_u32_u24 v6, 896, v6
s_lshl_b32 s69, s41, 1
s_add_u32 s69, s69, s67
s_lshl_b32 s69, s69, 6
v_lshrrev_b32 v7, 5, v1
v_lshl_add_u32 v6, v7, 4, v6
v_add_u32 v6, s69, v6""")
lw = A.label("s3p")
wave0_only(lw)
A(f"s_add_u32 s66, s80, {CL_S3}\ns_lshl_b32 s66, s66, 7\nv_mov_b32 v10, s66")
emit_poll("v10", "14")
A(f"{lw}:\ns_barrier")
stamp(14)
rstamp(37)
NS = 16
def ldH(kk):
    slot = kk % NS
    if kk % 4 == 0:
        A(f"s_add_u32 s82, s81, {4096*(kk>>2)}")
    for tj in range(2):
        r = RING + 8*slot + 4*tj
        if E("NOLD3", 0): continue
        A(f"buffer_load_dwordx4 v[{r}:{r+3}], v{2+tj}, s[44:47], s82 offen offset:{1024*(kk&3)} sc1")
for kk in range(PD3): ldH(kk)
first = True
for kk in range(28):
    A(f"s_waitcnt vmcnt({2*(min(kk+PD3-1, 27) - kk)})")
    slot = kk % NS
    ms = []
    for tj in range(2):
        for dd in range(2):
            T_ = ACC3 + 16*(2*tj + dd)
            a = 4*(dd*28 + kk)
            r = RING + 8*slot + 4*tj
            c = "0" if kk == 0 else f"v[{T_}:{T_+15}]"
            ms.append(f"v_mfma_f32_32x32x16_bf16 v[{T_}:{T_+15}], a[{a}:{a+3}], v[{r}:{r+3}], {c}")
    A(ms[0]); A(ms[1])
    if kk + PD3 < 28: ldH(kk + PD3)
    A(ms[2]); A(ms[3])
    if 2 <= kk < 10:
        p = kk - 2; j = p >> 1; c_ = p & 1; k = 4*j + 2*c_
        A(f"""v_lshlrev_b32 v{232+k}, 16, v{16+2*j+c_}
        v_and_b32 v{233+k}, s72, v{16+2*j+c_}
        v_lshlrev_b32 v8, 16, v{24+2*j+c_}
        v_and_b32 v9, s72, v{24+2*j+c_}
        v_add_f32 v{232+k}, v{232+k}, v8
        v_add_f32 v{233+k}, v{233+k}, v9""")
stamp(15)
A("s_nop 10")
for sl in (1, 2, 3):
    for q in range(4):
        r = ACC3 + 16*sl + 4*q
        A(f"ds_write_b128 v{224+sl}, v[{r}:{r+3}] offset:{1024*q}")
for k in range(0, 16, 2): A(f"v_pk_add_f32 {P2(ACC3+k)}, {P2(ACC3+k)}, {P2(232+k)}")
A("s_waitcnt lgkmcnt(0)\ns_barrier")
RB = 96
for sl in (1, 2, 3):
    for q in range(4):
        r = RB + 16*(sl-1) + 4*q
        A(f"ds_read_b128 v[{r}:{r+3}], v{228+sl} offset:{1024*q}")
for sl in (1, 2, 3):
    A(f"s_waitcnt lgkmcnt({4*(3-sl)})")
    for k in range(0, 16, 2): A(f"v_pk_add_f32 {P2(ACC3+k)}, {P2(ACC3+k)}, {P2(RB+16*(sl-1)+k)}")
for k in range(8): A(f"v_cvt_pk_bf16_f32 v{192+k}, v{ACC3+2*k}, v{ACC3+2*k+1}")
A("""s_nop 1
v_permlane32_swap_b32 v192, v194
v_permlane32_swap_b32 v193, v195
v_permlane32_swap_b32 v196, v198
v_permlane32_swap_b32 v197, v199
s_nop 1
global_store_dwordx4 v6, v[192:195], s[30:31]
global_store_dwordx4 v6, v[196:199], s[30:31] offset:32""")
stamp(16)
rstamp(38)
A("s_branch L_END")

A(f"""L_OTHER:
s_cmp_ge_u32 s2, {NWG}
s_cbranch_scc1 L_END
v_and_b32 v1, 63, v0
v_lshrrev_b32 v2, 6, v0
s_nop 0
v_readfirstlane_b32 s3, v2
s_waitcnt lgkmcnt(0)
s_cmp_lg_u32 s2, {NMAIN}
s_cbranch_scc1 L_PREF
v_mov_b32 v4, 0
v_mov_b32 v5, 0
v_mov_b32 v6, 0
v_mov_b32 v7, 0
v_lshlrev_b32 v2, 4, v0
global_store_dwordx4 v2, v[4:7], s[34:35] sc1
v_add_u32 v3, 4096, v2
global_store_dwordx4 v3, v[4:7], s[34:35] sc1
s_waitcnt vmcnt(0)
s_barrier
s_cmp_lg_u32 s3, 0
s_cbranch_scc1 L_END
v_mov_b32 v2, 0
v_mov_b32 v3, 1
s_mov_b64 exec, 1
global_store_dword v2, v3, s[32:33] sc1""")
A(f"""s_branch L_END
L_PREF:""")
A(f"""v_min_u32 v2, 8, v1
v_lshlrev_b32 v2, 21, v2
v_add_u32 v2, {0x100000}, v2
global_load_dword v8, v2, s[34:35]
v_mov_b32 v3, 0
global_load_dword v9, v3, s[30:31]
global_load_dword v10, v3, s[22:23]
global_load_dword v11, v3, s[26:27]
global_load_dword v12, v3, s[16:17]
global_load_dword v13, v3, s[24:25]
global_load_dword v14, v3, s[28:29]
global_load_dword v15, v3, s[18:19]
global_load_dword v16, v3, s[34:35]""")
HPF = E("HPF", 1)
if HPF:
    A(f"""s_sub_u32 s66, s2, {NMAIN+1}
    s_lshr_b32 s66, s66, 3
    s_and_b32 s67, s2, 1
    s_mul_i32 s67, s67, 1792
    s_mul_i32 s68, s66, {112*3584}
    s_add_u32 s67, s67, s68
    s_mul_i32 s68, s3, {28*3584}
    s_add_u32 s67, s67, s68
    v_lshlrev_b32 v2, 4, v1""")
    srd(44, 22, D*F*2)
    lp = A.label("hw1")
    A(f"""s_mov_b32 s69, 7
    {lp}:""")
    for j in range(4):
        A(f"buffer_load_dwordx4 v[{20+8*j}:{23+8*j}], v2, s[44:47], s67 offen\nbuffer_load_dwordx4 v[{24+8*j}:{27+8*j}], v2, s[44:47], s67 offen offset:1024\ns_add_u32 s67, s67, 3584")
    A(f"""s_waitcnt vmcnt(8)
    s_sub_u32 s69, s69, 1
    s_cmp_lg_u32 s69, 0
    s_cbranch_scc1 {lp}""")
    if HPF >= 2:
        A(f"""s_waitcnt vmcnt(0)
        v_and_b32 v10, 7, v1
        v_add_u32 v10, {CL_AUX}, v10
        v_lshlrev_b32 v10, 7, v10
        v_mov_b32 v3, 0""")
        emit_poll("v3", 1, base="s[32:33]")
        emit_poll("v10", "28")
        ws_base(62, WS_W2F)
        srd(44, 62, F*D*2)
        A(f"""s_mul_i32 s67, s66, {392*1024}
        s_mul_i32 s68, s3, {98*1024}
        s_add_u32 s67, s67, s68
        s_mov_b32 s69, 25""")
        lp = A.label("hw2")
        A(f"{lp}:")
        for j in range(4):
            A(f"buffer_load_dwordx4 v[{20+4*j}:{23+4*j}], v2, s[44:47], s67 offen offset:{1024*j} sc1")
        A(f"""s_add_u32 s67, s67, 4096
        s_waitcnt vmcnt(8)
        s_sub_u32 s69, s69, 1
        s_cmp_lg_u32 s69, 0
        s_cbranch_scc1 {lp}""")
A("s_waitcnt vmcnt(0)")
A("""L_END:
s_endpgm
L_CODE_END:""")

errs = check_hazards(A.lines)
for e in errs: print("HAZARD:", e, file=sys.stderr)
hdr = open(f"cdna_kernels/{NAME}.s.ref").read().split(".amdgcn_target")[0]
hdr = "\n".join(l for l in hdr.splitlines() if not l.startswith("; @launch"))
out = [hdr.rstrip(), f"; @launch grid=({NWG},1,1) block=(256,1,1) lds={LDS_BYTES}",
 '.amdgcn_target "amdgcn-amd-amdhsa--gfx950"', ".text", f".globl {KN}", ".p2align 8", f".type {KN},@function", f"{KN}:",
 A.text(), '.section .rodata,"a"', ".p2align 6", f".amdhsa_kernel {KN}",
 "  .amdhsa_next_free_vgpr 512", "  .amdhsa_next_free_sgpr 100", "  .amdhsa_accum_offset 256", "  .amdhsa_group_segment_fixed_size 0",
 "  .amdhsa_kernarg_size 112", "  .amdhsa_user_sgpr_count 2", "  .amdhsa_user_sgpr_kernarg_segment_ptr 1", "  .amdhsa_system_sgpr_workgroup_id_x 1",
 "  .amdhsa_float_denorm_mode_32 3", ".end_amdhsa_kernel", ""]
dst = os.environ.get("OUT", f"cdna_kernels/{NAME}.s")
open(dst, "w").write("\n".join(out))
print("wrote", dst, "instructions:", sum(1 for l in A.lines if not l.endswith(':')), "hazards:", len(errs))
```

```python
import sys, os
sys.path.insert(0, os.path.dirname(os.path.abspath(__file__)))
from asmlib import *

NAME = "sequential_preLN__ssm_conv_h3__dense_activation_gelu__prompt"
E = lambda k, d: int(os.environ.get(k, str(d)))
STAMPS = E("STAMPS", 0)
SENT = E("SENT", 1)
PD2 = E("PD2", 11)
PD3 = E("PD3", 5)
W1THR = E("W1THR", 0)
NMAIN = 224
NHELP = E("NHELP", 8)
NWG = NMAIN + 1 + NHELP
S, D, F = 2048, 448, 1792
WS_STAMP = 0x80000
WS_UR = 0x100000
WS_X2 = 0x300000
WS_H2 = 0x500000
WS_ST = 0x700000
WS_W2F = 0x800000
WS_HF = 0xA00000
CL_S1 = 0; CL_AUX = 8; CL_S2 = 16; CL_S3 = 32
L_W1 = 0
L_X = 0x1C000
L_UT = L_X + 0x0000
L_XT = L_X + 0x2000
L_KA = L_X + 0x4000 + 64
L_UR = L_X + 0x8100
L_AUG = L_X + 0xA500
L_CNT = L_X + 0xB600
LDS_BYTES = 163840
SPIN = 2000000
KN = NAME + "_kernel"

A = Asm()

def stamp(i, wave=0):
    if not STAMPS: return
    l = A.label("st")
    A(f"""s_cmp_lg_u32 s3, {wave}
    s_cbranch_scc1 {l}
    s_memtime s[92:93]
    s_waitcnt lgkmcnt(0)
    s_lshl_b32 s94, s2, 8
    s_add_u32 s94, s94, {WS_STAMP + 4*i}
    v_mov_b32 v250, s94
    v_mov_b32 v251, s92
    s_mov_b64 s[90:91], exec
    s_mov_b64 exec, 1
    global_store_dword v250, v251, s[34:35]
    s_mov_b64 exec, s[90:91]
    {l}:""")

def rstamp(i, xcc=False):
    if not STAMPS: return
    l = A.label("rt")
    A(f"""s_cmp_lg_u32 s3, 0
    s_cbranch_scc1 {l}
    {"s_getreg_b32 s92, hwreg(HW_REG_XCC_ID)" if xcc else "s_memrealtime s[92:93]"}
    s_waitcnt lgkmcnt(0)
    s_lshl_b32 s94, s2, 8
    s_add_u32 s94, s94, {WS_STAMP + 4*i}
    v_mov_b32 v250, s94
    v_mov_b32 v251, s92
    s_mov_b64 s[90:91], exec
    s_mov_b64 exec, 1
    global_store_dword v250, v251, s[34:35]
    s_mov_b64 exec, s[90:91]
    {l}:""")

def wave0_only(label):
    A(f"s_cmp_lg_u32 s3, 0\ns_cbranch_scc1 {label}")

def emit_signal(line_sreg):
    A(f"""s_lshl_b32 s67, {line_sreg}, 7
    v_mov_b32 v245, s67
    v_mov_b32 v246, 1
    s_mov_b64 s[64:65], exec
    s_mov_b64 exec, 1
    global_atomic_add v245, v246, s[34:35] sc1
    s_mov_b64 exec, s[64:65]""")

def emit_poll(addr_v, target, base="s[34:35]", tmp="v247"):
    lp = A.label("poll"); done = A.label("polld")
    A(f"""s_mov_b32 s68, {SPIN}
    {lp}:
    global_load_dword {tmp}, {addr_v}, {base} sc1
    s_waitcnt vmcnt(0)
    v_cmp_ne_u32 vcc, {target}, {tmp}
    s_cbranch_vccz {done}
    {"s_sleep %d" % E("PSLEEP", 0) if E("PSLEEP", 0) else ""}
    s_sub_u32 s68, s68, 1
    s_cmp_lg_u32 s68, 0
    s_cbranch_scc1 {lp}
    {done}:""")

def ws_base(sreg, off):
    A(f"s_add_u32 s{sreg}, s34, {off}\ns_addc_u32 s{sreg+1}, s35, 0")

def srd(base, ptr, size):
    A(f"s_mov_b32 s{base}, s{ptr}\ns_mov_b32 s{base+1}, s{ptr+1}\ns_mov_b32 s{base+2}, {size}\ns_mov_b32 s{base+3}, 0x20000")

if STAMPS: A("s_memrealtime s[78:79]")
A(f"""s_load_dwordx16 s[8:23], s[0:1], 0""")
A("s_getpc_b64 s[88:89]\nL_PC:")
if E("PF0", 0):
    A(f"""v_lshlrev_b32 v6, 4, v0
    global_load_dwordx4 v[116:119], v6, s[88:89] offset:{E("PFOFF", 128)}""")
A(f"""s_load_dwordx8 s[24:31], s[0:1], 64
s_load_dwordx4 s[32:35], s[0:1], 96
s_cmp_ge_u32 s2, {NMAIN}
s_cbranch_scc1 L_OTHER
s_lshr_b32 s42, s2, 5
s_and_b32 s43, s2, 31
v_lshrrev_b32 v2, 3, v0
v_and_b32 v3, 7, v0
s_mul_i32 s66, s43, {64*896}
s_lshl_b32 s67, s42, 7
s_add_u32 s66, s66, s67
v_mul_u32_u24 v4, 1792, v2
v_lshl_add_u32 v4, v3, 4, v4
v_add_u32 v7, s66, v4
v_subrev_u32 v92, 2688, v7
v_subrev_u32 v93, 1792, v7
v_subrev_u32 v94, 896, v7
s_lshl_b32 s67, s42, 9
v_lshl_add_u32 v8, v3, 6, s67
s_mov_b32 s46, {S*D*2}
s_mov_b32 s47, 0x20000
s_waitcnt lgkmcnt(0)""")
if STAMPS: A("s_memrealtime s[96:97]")
A(f"""s_mov_b32 s44, s10
s_mov_b32 s45, s11
buffer_load_dwordx4 v[10:13], v92, s[44:47], 0 offen
buffer_load_dwordx4 v[14:17], v93, s[44:47], 0 offen
buffer_load_dwordx4 v[18:21], v94, s[44:47], 0 offen
buffer_load_dwordx4 v[22:25], v7, s[44:47], 0 offen
buffer_load_dwordx4 v[26:29], v7, s[44:47], 0 offen offset:896
global_load_dwordx4 v[30:33], v7, s[12:13]
global_load_dwordx4 v[34:37], v7, s[12:13] offset:896
global_load_dwordx4 v[46:49], v8, s[14:15]
global_load_dwordx4 v[50:53], v8, s[14:15] offset:16
global_load_dwordx4 v[54:57], v8, s[14:15] offset:32
global_load_dwordx4 v[58:61], v8, s[14:15] offset:48
global_load_dwordx4 v[38:41], v7, s[8:9]
global_load_dwordx4 v[42:45], v7, s[8:9] offset:896
v_and_b32 v1, 63, v0
v_lshrrev_b32 v5, 6, v0
s_mov_b32 s70, 0x05040100
s_mov_b32 s71, 0x07060302
v_readfirstlane_b32 s3, v5
s_mov_b32 s72, 0xffff0000
s_mov_b32 s73, 0x3f803f80
s_lshr_b32 s37, s2, 3""")
A(f"""s_lshr_b32 s66, s2, 1
s_mul_i32 s66, s66, {16*896}
s_and_b32 s67, s2, 1
s_mul_i32 s67, s67, 448
s_add_u32 s66, s66, s67
s_mov_b32 s67, 2341
v_mul_lo_u32 v110, v0, s67
v_lshrrev_b32 v110, 16, v110
v_mul_u32_u24 v111, 28, v110
v_sub_u32 v111, v0, v111
v_mul_u32_u24 v110, 896, v110
v_lshl_add_u32 v110, v111, 4, v110
v_add_u32 v110, s66, v110
v_add_u32 v112, 256, v0
v_mul_lo_u32 v113, v112, s67
v_lshrrev_b32 v113, 16, v113
v_mul_u32_u24 v111, 28, v113
v_sub_u32 v111, v112, v111
v_mul_u32_u24 v113, 896, v113
v_lshl_add_u32 v113, v111, 4, v113
v_add_u32 v113, s66, v113
s_lshl_b32 s66, s37, 10
s_min_u32 s66, s66, L_CODE_END-{KN}-1024
v_lshl_add_u32 v114, v1, 4, s66
s_lshl_b32 s69, s3, 10
s_add_u32 m0, s69, {L_W1}
s_nop 0
global_load_lds_dwordx4 v110, s[26:27]""")
l3 = A.label("x3"); lx = A.label("xd")
A(f"""s_cmp_eq_u32 s3, 3
s_cbranch_scc1 {l3}
s_add_u32 m0, m0, 4096
s_nop 0
global_load_lds_dwordx4 v113, s[26:27]
s_branch {lx}
{l3}:
s_sub_u32 s88, s88, L_PC-{KN}
s_subb_u32 s89, s89, 0
global_load_dwordx4 v[116:119], v114, s[88:89]
{lx}:""")
lns = A.label("nost")
A(f"""s_mov_b32 s76, 0
s_cmp_lt_u32 s3, 2
s_cbranch_scc1 {lns}""")
srd(48, 16, D*S*2)
A(f"""v_lshlrev_b32 v115, 4, v1
s_sub_u32 s66, s3, 2
s_lshl_b32 s67, s2, 1
s_add_u32 s67, s67, s66
s_lshl_b32 s67, s67, 12
s_load_dword s77, s[16:17], s67
s_mul_i32 s66, s66, 8320
s_add_u32 m0, s66, {L_KA}
s_add_u32 s79, s66, {L_KA + 4160 - 4}""")
for j in range(4):
    A(f"s_nop 0\nbuffer_load_dwordx4 v115, s[48:51], s67 offen lds\ns_add_u32 m0, m0, 1024\ns_add_u32 s67, s67, 1024")
A(f"s_add_u32 m0, m0, {4160-4096}\ns_sub_u32 s67, s67, {4096-2}")
for j in range(4):
    A(f"s_nop 0\nbuffer_load_dwordx4 v115, s[48:51], s67 offen lds\ns_add_u32 m0, m0, 1024\ns_add_u32 s67, s67, 1024")
A(f"""s_cmp_lt_u32 s42, 4
s_cbranch_scc0 {lns}
s_mov_b32 s76, 1
s_lshl_b32 s66, s43, 6
s_lshl_b32 s67, s42, 4
s_add_u32 s66, s66, s67
s_sub_u32 s67, s3, 2
s_lshl_b32 s67, s67, 3
s_add_u32 s66, s66, s67
v_lshrrev_b32 v120, 3, v1
v_add_u32 v120, s66, v120
v_mul_u32_u24 v121, 896, v120
v_and_b32 v122, 7, v1
v_lshl_add_u32 v121, v122, 4, v121""")
for i in range(7):
    A(f"global_load_dwordx4 v[{64+4*i}:{67+4*i}], v121, s[8:9] offset:{128*i}")
A(f"{lns}:")
ws_base(52, WS_UR); ws_base(54, WS_X2); ws_base(56, WS_H2); ws_base(58, WS_ST); ws_base(60, WS_HF); ws_base(62, WS_W2F)
stamp(0)
rstamp(30)
rstamp(31, True)
if STAMPS:
    for (i, r) in ((28, 78), (29, 96)):
        l = A.label("rt0")
        A(f"""s_cmp_lg_u32 s3, 0
        s_cbranch_scc1 {l}
        s_lshl_b32 s94, s2, 8
        s_add_u32 s94, s94, {WS_STAMP + 4*i}
        v_mov_b32 v250, s94
        v_mov_b32 v251, s{r}
        s_mov_b64 s[90:91], exec
        s_mov_b64 exec, 1
        global_store_dword v250, v251, s[34:35]
        s_mov_b64 exec, s[90:91]
        {l}:""")
A(f"""v_sub_u32 v96, 31, v2
v_lshrrev_b32 v97, 2, v96
v_xor_b32 v97, v97, v3
v_lshlrev_b32 v97, 4, v97
v_and_b32 v96, 3, v96
v_lshl_add_u32 v97, v96, 2, v97
v_lshl_add_u32 v95, v3, 10, v97
v_add_u32 v95, {L_UT}, v95
v_lshrrev_b32 v96, 1, v2
v_xor_b32 v96, v96, v3
v_lshlrev_b32 v96, 4, v96
v_and_b32 v97, 1, v2
v_lshl_add_u32 v96, v97, 3, v96
v_lshl_add_u32 v96, v3, 10, v96
v_add_u32 v96, {L_XT}, v96
v_lshrrev_b32 v98, 6, v0
v_xor_b32 v99, v3, v98
v_lshlrev_b32 v99, 4, v99
v_lshl_add_u32 v100, v2, 7, v99
v_add_u32 v100, {L_UT}, v100
s_lshl_b32 s66, s42, 18
s_sub_u32 s67, 31, s43
s_lshl_b32 s67, s67, 7
s_add_u32 s66, s66, s67
v_lshlrev_b32 v102, 12, v2
v_lshl_add_u32 v102, v3, 4, v102
v_add_u32 v102, s66, v102
v_and_b32 v104, 15, v0
v_lshrrev_b32 v105, 4, v0
v_xor_b32 v106, v104, v98
v_lshlrev_b32 v106, 4, v106
v_lshl_add_u32 v106, v105, 8, v106
v_add_u32 v106, {L_XT}, v106
s_lshl_b32 s66, s42, 18
s_lshl_b32 s67, s43, 8
s_add_u32 s66, s66, s67
v_lshlrev_b32 v108, 13, v105
v_lshl_add_u32 v108, v104, 4, v108
v_add_u32 v108, s66, v108
v_mov_b32 v101, {L_CNT}
v_mov_b32 v103, 0
ds_write2_b32 v101, v103, v103 offset1:1""")
A(f"""v_lshrrev_b32 v123, 5, v1
v_bfe_u32 v124, v1, 2, 2
v_lshl_add_u32 v123, v123, 2, v124
v_mul_u32_u24 v123, 448, v123
v_bfe_u32 v124, v1, 4, 1
v_lshl_add_u32 v123, v124, 5, v123
v_and_b32 v124, 3, v1
v_lshl_add_u32 v123, v124, 3, v123
s_lshl_b32 s66, s3, 6
s_add_u32 s66, s66, {L_W1}
v_add_u32 v123, s66, v123
s_and_b32 s66, s2, 1
s_mul_i32 s66, s66, 7
s_add_u32 s66, s66, s3
s_mul_i32 s66, s66, 112
s_lshr_b32 s67, s2, 1
s_add_u32 s66, s66, s67
s_lshl_b32 s66, s66, 10
v_lshl_add_u32 v124, v1, 4, s66""")
def p0wait(base):
    l1 = A.label("wa"); l2 = A.label("wb"); l3_ = A.label("wc")
    A(f"""s_cmp_ge_u32 s3, 2
    s_cbranch_scc1 {l3_}
    s_waitcnt vmcnt({base})
    s_branch {l2}
    {l3_}:
    s_cmp_eq_u32 s76, 0
    s_cbranch_scc1 {l1}
    s_waitcnt vmcnt({base+15})
    s_branch {l2}
    {l1}:
    s_waitcnt vmcnt({base+8})
    {l2}:""")
p0wait(4)
stamp(26)
rstamp(39)
K = lambda j, p: f"v{10 + 4*j + p}"
T = 126
for p in range(4):
    seq = []
    for half in range(2):
        i = 2*p + half
        sel = "s70" if half == 0 else "s71"
        t = T + 8*half
        seq.append([
            f"v_perm_b32 v{t}, {K(2,p)}, {K(3,p)}, {sel}",
            f"v_perm_b32 v{t+1}, {K(0,p)}, {K(1,p)}, {sel}",
            f"v_perm_b32 v{t+2}, {K(3,p)}, {K(4,p)}, {sel}",
            f"v_perm_b32 v{t+3}, {K(1,p)}, {K(2,p)}, {sel}",
            f"v_dot2_f32_bf16 v{t+4}, v{t}, v{46+2*i}, 0",
            f"v_dot2_f32_bf16 v{t+5}, v{t+2}, v{46+2*i}, 0",
            f"v_dot2_f32_bf16 v{t+4}, v{t+1}, v{47+2*i}, v{t+4}",
            f"v_dot2_f32_bf16 v{t+5}, v{t+3}, v{47+2*i}, v{t+5}",
            (f"v_lshlrev_b32 v{t+6}, 16, v{30+p}" if half == 0 else f"v_and_b32 v{t+6}, s72, v{30+p}"),
            (f"v_lshlrev_b32 v{t+7}, 16, v{34+p}" if half == 0 else f"v_and_b32 v{t+7}, s72, v{34+p}"),
            f"v_mul_f32 v{t+4}, v{t+4}, v{t+6}",
            f"v_mul_f32 v{t+5}, v{t+5}, v{t+7}",
            f"v_cvt_pk_bf16_f32 v{t+4}, v{t+5}, v{t+4}",
            f"ds_write_b32 v95, v{t+4} offset:{128*i}",
        ])
    for k in range(len(seq[0])):
        A(seq[0][k]); A(seq[1][k])
stamp(27)
rstamp(40)
p0wait(0)
rstamp(41)
for p in range(4):
    A(f"ds_write2_b32 v96, v{38+p}, v{42+p} offset0:{64*p} offset1:{64*p+1}")
A("""s_waitcnt lgkmcnt(0)
s_barrier""")
A(f"""s_and_b32 s36, s2, 7
s_mul_i32 s66, s37, 37
s_lshr_b32 s66, s66, 8
s_mul_i32 s67, s66, 7
s_sub_u32 s41, s37, s67
s_lshl_b32 s40, s36, 2
s_add_u32 s40, s40, s66
s_lshr_b32 s80, s40, 1
s_lshr_b32 s38, s36, 1
s_lshl_b32 s38, s38, 2
s_add_u32 s38, s38, s66
s_and_b32 s39, s36, 1
s_mul_i32 s39, s39, 7
s_add_u32 s39, s39, s41""")
ldmaw = A.label("dmaw"); laddr = A.label("w1addr"); ljoin = A.label("w1join")
A(f"s_cmp_ge_u32 s3, 2\ns_cbranch_scc1 {ldmaw}")
for q in range(4):
    if q == 0:
        A("ds_read_b128 v[10:13], v100\nds_read_b128 v[26:29], v106")
    else:
        A(f"v_xor_b32 v110, {32*q}, v100\nv_xor_b32 v111, {32*q}, v106\nds_read_b128 v[{10+4*q}:{13+4*q}], v110 offset:{2048*q}\nds_read_b128 v[{26+4*q}:{29+4*q}], v111 offset:{2048*q}")
for j in range(4):
    A(f"ds_read_b64_tr_b16 v[{42+4*j}:{43+4*j}], v123 offset:{128*j}\nds_read_b64_tr_b16 v[{44+4*j}:{45+4*j}], v123 offset:{128*j+3584}")
A("v_mov_b32 v248, 0\nglobal_load_dword v249, v248, s[32:33] sc1\ns_waitcnt lgkmcnt(0)")
for q in range(4):
    A(f"global_store_dwordx4 v102, v[{10+4*q}:{13+4*q}], s[52:53] sc1")
    if q < 3: A("v_add_u32 v102, 65536, v102")
for q in range(4):
    A(f"global_store_dwordx4 v108, v[{26+4*q}:{29+4*q}], s[54:55] sc1")
    if q < 3: A("v_add_u32 v108, 65536, v108")
lsk = A.label("w2s"); lsk2 = A.label("w2t")
for j in range(3):
    A(f"global_store_dwordx4 v124, v[{42+4*j}:{45+4*j}], s[62:63] sc1")
    A(f"v_add_u32 v124, {2*112*1024}, v124")
A(f"""s_cmp_eq_u32 s3, 1
s_cbranch_scc1 {lsk}
global_store_dwordx4 v124, v[54:57], s[62:63] sc1
s_branch {lsk2}
{lsk}:
v_subrev_u32 v124, {2*112*1024}, v124
s_nop 0
global_store_dwordx4 v124, v[50:53], s[62:63] sc1
{lsk2}:
s_barrier""")
stamp(1)
def lds_count_signal(off, last, build_addr):
    ln = A.label("nl")
    A(f"""v_mov_b32 v110, 1
    s_mov_b64 s[64:65], exec
    s_mov_b64 exec, 1
    ds_add_rtn_u32 v111, v101, v110 offset:{off}
    s_waitcnt lgkmcnt(0)
    v_readfirstlane_b32 s66, v111
    s_mov_b64 exec, s[64:65]
    s_cmp_eq_u32 s66, {last}
    s_cbranch_scc0 {ln}""")
    lio = A.label("initok")
    A(f"v_cmp_ne_u32 vcc, 1, v249\ns_cbranch_vccz {lio}")
    emit_poll("v248", 1, base="s[32:33]")
    A(f"v_mov_b32 v249, 1\n{lio}:")
    A(build_addr)
    emit_signal("s66")
    A(f"{ln}:")
A("s_waitcnt vmcnt(8)")
lds_count_signal(0, 1, "s_mov_b32 s66, s42")
stamp(2)
rstamp(32)
A("s_waitcnt vmcnt(0)")
lds_count_signal(4, 3, f"s_add_u32 s66, s36, {CL_AUX}")
A(f"""v_lshrrev_b32 v10, 5, v1
v_mul_u32_u24 v10, 4608, v10
v_and_b32 v11, 31, v1
v_lshl_add_u32 v10, v11, 4, v10
v_add_u32 v10, {L_UR + 4096}, v10
v_mov_b32 v12, 0
v_mov_b32 v13, 0
v_mov_b32 v14, 0
v_mov_b32 v15, 0
ds_write_b128 v10, v[12:15]
s_branch {laddr}""")
A(f"{ldmaw}:")
srd(44, 22, D*F*2)
A(f"""v_lshrrev_b32 v11, 4, v1
v_lshlrev_b32 v12, 2, v11
v_and_b32 v13, 15, v1
v_xor_b32 v12, v12, v13
v_lshlrev_b32 v12, 4, v12
v_mul_u32_u24 v11, 3584, v11
v_add_u32 v11, v11, v12
s_lshl_b32 s66, s39, 8
v_add_u32 v11, s66, v11
v_mov_b32 v13, s79
s_lshl_b32 s77, s77, 16
v_mov_b32 v12, s77
ds_write_b32 v13, v12
v_mov_b32 v248, 0
global_load_dword v249, v248, s[32:33] sc1
s_barrier""")
lns = A.label("nost2")
A(f"s_cmp_eq_u32 s76, 0\ns_cbranch_scc1 {lns}")
b = 64
A("s_waitcnt vmcnt(1)")
A(f"v_dot2_f32_bf16 v16, v{b}, s73, 0\nv_dot2_f32_bf16 v17, v{b}, v{b}, 0\nv_dot2_f32_bf16 v18, v{b+1}, s73, 0\nv_dot2_f32_bf16 v19, v{b+1}, v{b+1}, 0")
for i in range(2, 28, 2):
    A(f"v_dot2_f32_bf16 v16, v{b+i}, s73, v16\nv_dot2_f32_bf16 v17, v{b+i}, v{b+i}, v17\nv_dot2_f32_bf16 v18, v{b+i+1}, s73, v18\nv_dot2_f32_bf16 v19, v{b+i+1}, v{b+i+1}, v19")
A("""s_nop 2
v_add_f32 v16, v16, v18
v_add_f32 v17, v17, v19
s_nop 1
v_add_f32_dpp v16, v16, v16 quad_perm:[1,0,3,2] row_mask:0xf bank_mask:0xf
v_add_f32_dpp v17, v17, v17 quad_perm:[1,0,3,2] row_mask:0xf bank_mask:0xf
s_nop 1
v_add_f32_dpp v16, v16, v16 quad_perm:[2,3,0,1] row_mask:0xf bank_mask:0xf
v_add_f32_dpp v17, v17, v17 quad_perm:[2,3,0,1] row_mask:0xf bank_mask:0xf
s_nop 1
v_add_f32_dpp v16, v16, v16 row_half_mirror row_mask:0xf bank_mask:0xf
v_add_f32_dpp v17, v17, v17 row_half_mirror row_mask:0xf bank_mask:0xf
s_mov_b32 s66, 0x3b124925
v_mul_f32 v16, s66, v16
v_mul_f32 v17, s66, v17
v_fma_f32 v17, -v16, v16, v17
v_add_f32 v17, 0x3727c5ac, v17
v_rsq_f32 v17, v17
v_lshlrev_b32 v120, 2, v120
v_cmp_eq_u32 vcc, 0, v122
v_mul_f32 v18, -v16, v17
v_add_u32 v121, 8192, v120
s_and_saveexec_b64 s[64:65], vcc
global_store_dword v120, v17, s[58:59] sc1
global_store_dword v121, v18, s[58:59] sc1
s_mov_b64 exec, s[64:65]""")
A(f"{lns}:\ns_waitcnt vmcnt(0)")
lds_count_signal(4, 3, f"s_add_u32 s66, s36, {CL_AUX}")
lg = A.label("gate")
A(f"""{lg}:
ds_read_b64 v[12:13], v101
s_waitcnt lgkmcnt(0)
v_add_u32 v12, v12, v13
s_nop 0
v_readfirstlane_b32 s66, v12
s_nop 0
s_cmp_lt_u32 s66, 6
s_cbranch_scc1 {lg}
s_sub_u32 s66, s3, 2
s_mul_i32 s66, s66, 56
s_mul_i32 s67, s66, 14336
s_lshl_b32 s66, s66, 10
s_add_u32 m0, s66, {L_W1}
s_mov_b32 s69, 14""")
lp = A.label("w1l")
A(f"{lp}:")
for j in range(4):
    if E("NOW1", 0): continue
    A(f"s_nop 0\nbuffer_load_dwordx4 v11, s[44:47], s67 offen lds\ns_add_u32 m0, m0, 1024\ns_add_u32 s67, s67, 14336")
A(f"""s_sub_u32 s69, s69, 1
s_cmp_lg_u32 s69, 0
s_cbranch_scc1 {lp}""")
stamp(24, 3)
if E("FLOODWAIT", 0):
    A("s_waitcnt vmcnt(0)")
    stamp(25, 3)
A(f"{laddr}:")
XV, STV = 170, 178
A(f"""s_lshl_b32 s66, s2, 2
s_load_dword s74, s[18:19], s66
v_and_b32 v194, 15, v1
v_lshrrev_b32 v195, 4, v1
v_lshlrev_b32 v196, 4, v194
v_lshl_add_u32 v196, v195, 2, v196
s_lshl_b32 s66, s3, 9
v_add_u32 v196, s66, v196
v_lshlrev_b32 v197, 2, v196
v_mov_b32 v198, v197
s_lshl_b32 s66, s2, 13
v_add_u32 v197, s66, v197
s_lshr_b32 s66, s3, 1
s_and_b32 s67, s3, 1
s_mul_i32 s68, s66, 8320
s_lshl_b32 s69, s67, 8
s_sub_u32 s68, s68, s69
s_add_u32 s68, s68, {L_KA - 32}
v_add_u32 v199, 1, v194
v_lshrrev_b32 v199, 1, v199
v_lshl_add_u32 v199, v195, 2, v199
v_lshlrev_b32 v199, 2, v199
v_and_b32 v200, 1, v194
v_cmp_eq_u32 vcc, 0, v200
v_mov_b32 v201, 4160
v_add_u32 v199, s68, v199
v_cndmask_b32 v201, 0, v201, vcc
v_add_u32 v199, v199, v201
v_add_u32 v200, 1024, v199
v_add_u32 v201, 2048, v199
v_add_u32 v202, 3072, v199
s_mul_i32 s68, s66, 4608
s_sub_u32 s68, s68, s69
s_add_u32 s68, s68, {L_UR + 736}
v_lshlrev_b32 v203, 5, v194
v_sub_u32 v203, s68, v203
v_lshl_add_u32 v203, v195, 4, v203
s_cmp_eq_u32 s67, 0
s_cselect_b32 s68, 64, 0
v_lshl_add_u32 v204, v195, 3, v194
v_add_u32 v204, s68, v204
s_mov_b32 s75, 0xffff""")
for k in range(4):
    A(f"""v_cmp_le_u32 vcc, {15-2*k}, v204
    v_mov_b32 v205, s75
    s_nop 0
    v_cndmask_b32 v{206+k}, 0, v205, vcc
    v_cmp_le_u32 vcc, {14-2*k}, v204
    v_mov_b32 v205, s72
    s_nop 0
    v_cndmask_b32 v205, 0, v205, vcc
    v_or_b32 v{206+k}, v{206+k}, v205""")
A(f"""v_lshlrev_b32 v211, 4, v1
s_lshl_b32 s66, s3, 13
v_add_u32 v212, s66, v211
v_add_u32 v212, {L_X}, v212
s_lshl_b32 s66, s3, 11
v_add_u32 v213, s66, v211
v_add_u32 v213, {L_X}, v213
s_lshl_b32 s66, s3, 10
s_sub_u32 s66, {L_UR + 4088 - 512}, s66
v_lshlrev_b32 v210, 5, v194
v_lshl_add_u32 v210, v195, 3, v210
v_sub_u32 v210, s66, v210
v_and_b32 v214, 7, v1
v_add_u32 v214, {CL_AUX}, v214
v_lshlrev_b32 v214, 7, v214
s_mul_i32 s66, s41, {2*112*1024}
s_mul_i32 s67, s3, {28*1024}
s_add_u32 s81, s66, s67
s_and_b32 s67, s3, 1
s_mul_i32 s67, s67, {112*1024}
s_add_u32 s95, s81, {112*1024}
s_sub_u32 s95, s95, s67
s_add_u32 s81, s81, s67""")
srd(84, 62, F*D*2)
ACC = 138
for j in range(32): A(f"v_mov_b32 v{ACC+j}, 0")
lnw0 = A.label("w1n0")
A(f"s_cmp_lg_u32 s3, 0\ns_cbranch_scc1 {lnw0}")
A(f"s_lshl_b32 s66, s42, 7\nv_mov_b32 v16, s66")
emit_poll("v16", "32")
stamp(3)
A(f"""v_lshlrev_b32 v10, 4, v1
s_lshl_b32 s66, s2, 13
v_add_u32 v10, s66, v10
s_mov_b32 m0, {L_UR}""")
for c in range(2):
    for j in range(4):
        A(f"s_nop 0\nglobal_load_lds_dwordx4 v10, s[52:53] sc1\nv_add_u32 v10, 1024, v10\ns_add_u32 m0, m0, {1024 if j < 3 else 4608-3072}")
A(f"""s_waitcnt vmcnt(0) lgkmcnt(0)
s_branch {ljoin}
{lnw0}:
s_waitcnt lgkmcnt(0)
s_cmp_eq_u32 s3, 1
s_cbranch_scc1 {ljoin}
s_waitcnt vmcnt({0 if E("NOW1", 0) else 56}) lgkmcnt(0)
{ljoin}:
s_barrier""")
stamp(4)
rstamp(33)

AB = [10, 42]; UB = [74, 106]
def conv_loads(s, buf):
    L = []
    for m in range(8):
        L.append(f"ds_read_b128 v[{UB[buf]+4*m}:{UB[buf]+4*m+3}], v203 offset:{64*(59-8*m-s)}")
    for n in range(8):
        base = 199 + (n >> 1)
        o = (n & 1)*128 + 16*(7-s)
        L.append(f"ds_read2_b32 v[{AB[buf]+4*n}:{AB[buf]+4*n+1}], v{base} offset0:{o} offset1:{o+1}")
        L.append(f"ds_read2_b32 v[{AB[buf]+4*n+2}:{AB[buf]+4*n+3}], v{base} offset0:{o+2} offset1:{o+3}")
    return L
def w2f_load(dd, kk):
    L = []
    if kk % 4 == 0:
        L += [f"s_add_u32 s82, {'s81' if dd == 0 else 's95'}, {4096*(kk>>2)}"]
    a = 4*(dd*28 + kk)
    L += [f"buffer_load_dwordx4 a[{a}:{a+3}], v211, s[84:87], s82 offen offset:{1024*(kk&3)} sc1"]
    return L
L0 = conv_loads(0, 0)
L0 = [L0[0]] + L0[8:] + L0[1:8]
for l in L0: A(l)
A(f"""global_load_dword v215, v214, s[34:35] sc1""")
stamp(19)
nw = 0
npf = 0
for s in range(4):
    buf = s & 1
    nxt = conv_loads(s+1, buf ^ 1) if s < 3 else []
    if s == 3:
        for k in range(4): A(f"v_and_b32 v{AB[buf]+k}, v{206+k}, v{AB[buf]+k}")
        A("s_nop 1")
    if s == E('AUXS', 1):
        lok = A.label("auxok"); lp = A.label("auxp")
        A(f"""s_cmp_lg_u32 s3, 0
        s_cbranch_scc1 {lok}
        s_waitcnt vmcnt(0)
        v_cmp_ne_u32 vcc, 28, v215
        s_cbranch_vccz {lok}""")
        emit_poll("v214", "28")
        A(f"""{lok}:
        s_barrier
        v_add_u32 v216, 8192, v198
        global_load_dwordx4 v[{XV}:{XV+3}], v197, s[54:55] sc1
        global_load_dwordx4 v[{XV+4}:{XV+7}], v197, s[54:55] offset:1024 sc1
        global_load_dwordx4 v[{STV}:{STV+3}], v198, s[58:59] sc1
        global_load_dwordx4 v[{STV+4}:{STV+7}], v216, s[58:59] sc1
        global_load_dwordx4 v[{STV+8}:{STV+11}], v198, s[58:59] offset:1024 sc1
        global_load_dwordx4 v[{STV+12}:{STV+15}], v216, s[58:59] offset:1024 sc1""")
    pairs = [(m, n) for m in range(8) for n in range(8 - m)]
    for idx, (m, n) in enumerate(pairs):
        j = m + n
        if s == 0 and m == 0:
            A(f"s_waitcnt lgkmcnt({min(15, 24 - 3 - 2*n)})")
        if s == 0 and n == 0 and 1 <= m <= 2:
            A(f"s_waitcnt lgkmcnt({(7 - m) if m == 1 else 0})")
        A(f"v_mfma_f32_16x16x32_bf16 v[{ACC+4*j}:{ACC+4*j+3}], v[{AB[buf]+4*n}:{AB[buf]+4*n+3}], v[{UB[buf]+4*m}:{UB[buf]+4*m+3}], v[{ACC+4*j}:{ACC+4*j+3}]")
        if s == 0:
            if idx >= 15:
                k0 = (idx - 15) * 24 // 21; k1 = (idx - 14) * 24 // 21
                for q in nxt[k0:k1]: A(q)
        elif idx < len(nxt): A(nxt[idx])
        if s >= E('AUXS', 1) and idx % (4 if E('AUXS', 1) == 1 else 2) == 1 and nw < 28 and not E("NOW2A", 0):
            for l in w2f_load(0, nw): A(l)
            nw += 1

    if s < 3: A("s_waitcnt lgkmcnt(0)")
while nw < 28 and not E("NOW2A", 0):
    for l in w2f_load(0, nw): A(l)
    nw += 1
stamp(5)
A("s_barrier")
for j in range(8):
    A(f"ds_write_b128 v212, v[{ACC+4*j}:{ACC+4*j+3}] offset:{1024*j}")
A("s_waitcnt lgkmcnt(0)\ns_barrier")
PB = 10
for jj in range(2):
    for w_ in range(4):
        A(f"ds_read_b128 v[{PB+16*jj+4*w_}:{PB+16*jj+4*w_+3}], v213 offset:{8192*w_+1024*jj}")
for jj in range(2):
    for c in range(2):
        A(f"ds_read_b64 v[{42+4*jj+2*c}:{43+4*jj+2*c}], v210 offset:{(512 if jj == 0 else 0) + 4608*c}")
A(f"""s_and_b32 s75, s74, s72
s_lshl_b32 s74, s74, 16
s_waitcnt vmcnt({0 if E("NOW2A", 0) else 28})""")
P2 = lambda r: f"v[{r}:{r+1}]"
for jj in range(2):
    P = PB + 16*jj
    X = XV + 4*jj; SA = STV + 8*jj; SB = SA + 4
    t = 50
    for c in range(2):
        q = t + 8*c
        for i in range(4):
            A(f"v_lshlrev_b32 v{q+i}, 16, v{X+i}" if c == 0 else f"v_and_b32 v{q+i}, s72, v{X+i}")
        for i in (0, 2):
            A(f"v_pk_fma_f32 {P2(q+4+i)}, {P2(q+i)}, {P2(SA+i)}, {P2(SB+i)}")
    A(f"s_waitcnt lgkmcnt({8 if jj == 0 else 0})")
    if jj == 0: A("s_waitcnt lgkmcnt(2)")
    for i in (0, 2):
        A(f"v_pk_add_f32 {P2(P+i)}, {P2(P+i)}, {P2(P+4+i)}\nv_pk_add_f32 {P2(P+8+i)}, {P2(P+8+i)}, {P2(P+12+i)}")
    for c in range(2):
        U = 42 + 4*jj + 2*c
        Y = P + 8*c
        u = 66 + 4*c
        A(f"v_and_b32 v{u}, s72, v{U+1}\nv_lshlrev_b32 v{u+1}, 16, v{U+1}\nv_and_b32 v{u+2}, s72, v{U}\nv_lshlrev_b32 v{u+3}, 16, v{U}")
        sel = "op_sel:[0,0,0] op_sel_hi:[1,0,1]" if c == 0 else "op_sel:[0,1,0] op_sel_hi:[1,1,1]"
        for i in (0, 2):
            A(f"v_pk_fma_f32 {P2(Y+i)}, {P2(u+i)}, s[74:75], {P2(Y+i)} {sel}")
        q = t + 8*c
        for i in (0, 2):
            A(f"v_pk_fma_f32 {P2(Y+i)}, {P2(q+4+i)}, {P2(Y+i)}, {P2(q+i)}")
    for i in range(4):
        A(f"v_cvt_pk_bf16_f32 v{74+4*jj+i}, v{P+i}, v{P+8+i}")
    A(f"global_store_dwordx4 v197, v[{74+4*jj}:{77+4*jj}], s[56:57] offset:{1024*jj} sc1")
stamp(6)
A("s_waitcnt vmcnt(0)\ns_barrier")
lw = A.label("s2w0")
wave0_only(lw)
A(f"s_add_u32 s66, s36, {CL_S2}")
emit_signal("s66")
A(f"{lw}:")
stamp(7)
rstamp(34)

A(f"""v_lshrrev_b32 v10, 5, v1
v_bfe_u32 v11, v1, 2, 2
v_lshl_add_u32 v10, v10, 3, v11
v_lshlrev_b32 v10, 8, v10
v_bfe_u32 v12, v1, 4, 1
v_bfe_u32 v13, v1, 1, 1
v_lshl_add_u32 v12, v12, 1, v13
v_lshlrev_b32 v12, 4, v12
v_add_u32 v10, v10, v12
v_and_b32 v12, 1, v1
v_lshl_add_u32 v10, v12, 3, v10
s_lshl_b32 s66, s3, 12
v_add_u32 v10, s66, v10
v_lshlrev_b32 v11, 6, v11""")
for ft in range(4):
    A(f"v_xor_b32 v{2+ft}, {64*ft}, v11\nv_add_u32 v{2+ft}, v{2+ft}, v10\nv_add_u32 v{6+ft}, 65536, v{2+ft}")
A(f"""v_lshlrev_b32 v12, 4, v1
v_add_u32 v12, s66, v12
v_add_u32 v13, 65536, v12
s_lshl_b32 s66, s39, 7
s_lshl_b32 s67, s3, 5
s_add_u32 s66, s66, s67
v_and_b32 v14, 31, v1
v_add_u32 v14, s66, v14
v_lshlrev_b32 v14, 1, v14
global_load_ushort v15, v14, s[24:25]""")
CB = 16
def cv_reads(i):
    L = []
    for ft in range(4):
        base, off = (2+ft, 16384*i) if i < 4 else (6+ft, 16384*(i-4))
        r = CB + 16*i + 4*ft
        L += [f"ds_read_b64_tr_b16 v[{r}:{r+1}], v{base} offset:{off}", f"ds_read_b64_tr_b16 v[{r+2}:{r+3}], v{base} offset:{off+1024}"]
    return L
def cv_writes(i):
    base, off = (12, 16384*i) if i < 4 else (13, 16384*(i-4))
    return [f"ds_write_b128 v{base}, v[{CB+16*i+4*ft}:{CB+16*i+4*ft+3}] offset:{off+1024*ft}" for ft in range(4)]
for l in cv_reads(0): A(l)
for i in range(7):
    if i < 6:
        for l in cv_reads(i+1): A(l)
        A("s_waitcnt lgkmcnt(8)")
    else:
        A("s_waitcnt lgkmcnt(0)")
    for l in cv_writes(i): A(l)
    for kk in range(4*i, 4*i+4):
        for l in w2f_load(1, kk): A(l)
A("s_waitcnt lgkmcnt(0)\ns_barrier")
A(f"""s_lshl_b32 s66, s3, 10
v_lshl_add_u32 v6, v1, 4, s66
v_add_u32 v7, 57344, v6""")
for half in range(2):
    base = "v6" if half == 0 else "v7"
    for k in range(14):
        A(f"ds_read_b128 v[{64+56*half+4*k}:{67+56*half+4*k}], {base} offset:{4096*k}")
    if half == 1: pass
for half in range(2):
    for k in range(14):
        idx = 14*half + k
        A(f"s_waitcnt lgkmcnt({min(15, 27-idx)})")
        for r in range(4):
            reg = 64+56*half+4*k+r
            if idx == 0:
                A(f"v_dot2_f32_bf16 v{42+r}, v{reg}, s73, 0")
            else:
                A(f"v_dot2_f32_bf16 v{42+r}, v{reg}, s73, v{42+r}")
A(f"""s_nop 2
v_add_f32 v42, v42, v43
v_add_f32 v44, v44, v45
s_nop 0
v_add_f32 v42, v42, v44
v_mov_b32 v43, v42
s_nop 1
v_permlane32_swap_b32 v42, v43
s_nop 1
v_add_f32 v42, v42, v43
v_cvt_pk_bf16_f32 v43, -v42, -v42
v_and_b32 v44, s72, v43
v_add_f32 v44, v42, v44
v_cvt_pk_bf16_f32 v44, -v44, -v44
s_waitcnt vmcnt(28)
v_perm_b32 v46, v44, v43, s70
v_perm_b32 v47, v15, v43, s70
v_mov_b32 v48, v15
v_mov_b32 v49, 0
v_cmp_gt_u32 vcc, 32, v1
v_lshlrev_b32 v50, 4, v1
s_lshl_b32 s66, s3, 10
s_add_u32 s66, s66, {L_AUG}
v_cndmask_b32 v46, 0, v46, vcc
v_cndmask_b32 v47, 0, v47, vcc
v_cndmask_b32 v48, 0, v48, vcc
v_add_u32 v50, s66, v50
ds_write_b128 v50, v[46:49]
v_lshrrev_b32 v10, 5, v1
v_lshlrev_b32 v2, 13, v10
v_and_b32 v11, 31, v1
v_lshl_add_u32 v2, v11, 4, v2
s_lshl_b32 s66, s38, 9
s_lshl_b32 s67, s3, 15
s_add_u32 s66, s66, s67
v_add_u32 v2, s66, v2
v_add_u32 v3, 15360, v2
v_lshlrev_b32 v4, 11, v10
v_lshl_add_u32 v4, v11, 2, v4
s_lshl_b32 s66, s3, 7
s_add_u32 s66, s66, {L_X}
v_add_u32 v4, s66, v4""")
srd(48, 56, S*D*2)
A(f"""v_lshlrev_b32 v6, 4, v1
v_add_u32 v7, 57344, v6
v_add_u32 v5, {L_AUG}, v6
s_mov_b32 s77, {'s39' if not E('NOROT2',0) else '0'}
s_lshl_b32 s78, s3, 11
s_add_u32 s78, s78, {L_X}
s_waitcnt lgkmcnt(0)""")
stamp(8)
lw = A.label("s2p")
wave0_only(lw)
A(f"v_and_b32 v16, 7, v1\nv_add_u32 v16, {CL_S2}, v16\nv_lshlrev_b32 v16, 7, v16\nv_mov_b32 v17, 28")
emit_poll("v16", "v17")
A(f"{lw}:\ns_barrier")
stamp(9)
rstamp(35)

BF = 16
TL = [128, 144, 160, 176]
AF = 192
NSLOT = 6; PDC = E('PDC', 5)
def dmaH(c, part=None):
    L = [[f"s_add_u32 m0, s78, {8192*(c % NSLOT)}", f"s_mov_b32 s76, {c << 17}", "buffer_load_dwordx4 v2, s[48:51], s76 offen sc1 lds"],
         ["buffer_load_dwordx4 v3, s[48:51], s76 offen offset:1024 sc1 lds"]]
    for p in ((0, 1) if part is None else (part,)):
        for x in L[p]: A(x)
for c in range(PDC): dmaH(c)
for t in range(4):
    A(f"ds_read_b128 a[{224+4*t}:{227+4*t}], v5 offset:{1024*t}")
def afrag_addr(ks, ft):
    return ("v6", 4096*ks + 1024*ft) if ks < 14 else ("v7", 4096*(ks-14) + 1024*ft)
def ldA(ks, ft):
    b, o = afrag_addr(ks, ft)
    r = AF + 16*(ks & 1) + 4*ft
    A(f"ds_read_b128 v[{r}:{r+3}], {b} offset:{o}")
def M(ks, t):
    b = BF + 4*ks
    r = AF + 16*(ks & 1) + 4*t
    cc = "0" if ks == 0 else f"v[{TL[t]}:{TL[t]+15}]"
    A(f"v_mfma_f32_32x32x16_bf16 v[{TL[t]}:{TL[t]+15}], v[{r}:{r+3}], v[{b}:{b+3}], {cc}")
def rdB(c, ksl):
    so = 32*(c % NSLOT)
    b = BF + 4*(2*c + ksl)
    A(f"ds_read2st64_b32 v[{b}:{b+1}], v4 offset0:{so+16*ksl} offset1:{so+16*ksl+2}")
    A(f"ds_read2st64_b32 v[{b+2}:{b+3}], v4 offset0:{so+16*ksl+4} offset1:{so+16*ksl+6}")
if SENT:
    A(f"""s_lshl_b32 s66, s38, 2
    s_add_u32 s66, s66, s3
    s_mul_i32 s66, s66, 56
    s_lshl_b32 s67, s39, 2
    s_add_u32 s66, s66, s67
    s_lshl_b32 s66, s66, 11
    v_lshl_add_u32 v240, v1, 4, s66
    v_add_u32 v241, 4096, v240
    v_mov_b32 v236, -1
    v_mov_b32 v237, -1
    v_mov_b32 v238, -1
    v_mov_b32 v239, -1""")
npf = 0
def prefill():
    global npf
    if SENT and npf < 8:
        A(f"global_store_dwordx4 v{240 + (npf >> 2)}, v[236:239], s[60:61] offset:{1024*(npf & 3)} sc1")
        npf += 1
for t in range(4): ldA(0, t)
for c in range(15):
    if c < 14:
        A(f"s_waitcnt vmcnt({2*(min(c+PDC-1, 13) - c) + npf}) lgkmcnt(0)")
    else:
        A("s_waitcnt lgkmcnt(0)")
    if c == 0:
        A("s_barrier")
        stamp(20)
        rdB(0, 0); rdB(0, 1); dmaH(PDC)
        continue
    k0, k1, k2 = 2*c-2, 2*c-1, 2*c
    M(k0, 0); ldA(k1, 0); ldA(k1, 1)
    M(k0, 1); ldA(k1, 2); ldA(k1, 3)
    if c < 14: A("s_barrier")
    if c in (4, 8, 12): stamp(20 + c//4)
    M(k0, 2)
    if c < 14: rdB(c, 0)
    M(k0, 3)
    if c < 14: rdB(c, 1)
    A(f"s_waitcnt lgkmcnt({4 if c < 14 else 0})")
    M(k1, 0)
    if c < 14: ldA(k2, 0); ldA(k2, 1)
    M(k1, 1)
    if c < 14: ldA(k2, 2); ldA(k2, 3)
    M(k1, 2)
    if c + PDC <= 13: dmaH(c + PDC, 0)
    else: prefill()
    M(k1, 3)
    if c + PDC <= 13: dmaH(c + PDC, 1)
    else: prefill()
stamp(10)
ST0 = 232
for ks in range(28):
    b = BF + 4*ks
    for r in range(4):
        if E("NODOT", 0): continue
        if ks == 0 and r < 2:
            A(f"v_dot2_f32_bf16 v{ST0+(r&1)}, v{b+r}, s73, 0")
            A(f"v_dot2_f32_bf16 v{ST0+2+(r&1)}, v{b+r}, v{b+r}, 0")
        else:
            A(f"v_dot2_f32_bf16 v{ST0+(r&1)}, v{b+r}, s73, v{ST0+(r&1)}")
            A(f"v_dot2_f32_bf16 v{ST0+2+(r&1)}, v{b+r}, v{b+r}, v{ST0+2+(r&1)}")
if SENT:
    assert npf == 8, npf
    A("s_waitcnt vmcnt(0)\ns_barrier")
    lw = A.label("s3w0")
    wave0_only(lw)
    A(f"s_add_u32 s66, s38, {CL_S3}")
    emit_signal("s66")
    A(f"{lw}:")
A(f"""s_nop 1
v_add_f32 v232, v232, v233
v_add_f32 v234, v234, v235
v_mov_b32 v233, v232
v_mov_b32 v235, v234
v_lshlrev_b32 v9, 4, v1
s_nop 0
v_permlane32_swap_b32 v232, v233
v_permlane32_swap_b32 v234, v235
s_mov_b32 s66, 0x3b124925
s_nop 0
v_add_f32 v232, v232, v233
v_add_f32 v234, v234, v235
v_mul_f32 v232, s66, v232
v_mul_f32 v234, s66, v234
v_fma_f32 v234, -v232, v232, v234
v_add_f32 v234, 0x3727c5ac, v234
v_rsq_f32 v235, v234
v_sqrt_f32 v230, v234
s_mov_b32 s66, 0xc0135761
s_mov_b32 s67, 0xbdd2d3e8
v_mul_f32 v229, s66, v235
v_mul_f32 v228, v235, v235
v_mul_f32 v228, v228, v235
v_mul_f32 v228, s67, v228
v_cvt_pk_bf16_f32 v233, v232, v232
v_and_b32 v231, s72, v233
v_sub_f32 v231, v232, v231
v_cvt_pk_bf16_f32 v236, v230, v230
v_and_b32 v237, s72, v236
v_sub_f32 v237, v230, v237
v_and_b32 v225, s72, v236
v_cvt_pk_bf16_f32 v231, v231, v231
v_and_b32 v231, 0xffff, v231
v_or_b32 v225, v225, v231
v_cvt_pk_bf16_f32 v226, v237, 0
v_mov_b32 v224, v233
v_mov_b32 v227, 0
v_cmp_gt_u32 vcc, 32, v1
s_lshl_b32 s66, s38, 2
s_add_u32 s66, s66, s3
v_cndmask_b32 v224, 0, v224, vcc
v_cndmask_b32 v225, 0, v225, vcc
v_cndmask_b32 v226, 0, v226, vcc
s_mul_i32 s66, s66, 56
s_lshl_b32 s67, s39, 2""")
for t in range(4):
    A(f"v_mfma_f32_32x32x16_bf16 v[{TL[t]}:{TL[t]+15}], a[{224+4*t}:{227+4*t}], v[224:227], v[{TL[t]}:{TL[t]+15}]")
A(f"""s_add_u32 s66, s66, s67
s_lshl_b32 s66, s66, 11
v_lshl_add_u32 v8, v1, 4, s66
v_add_u32 v11, 4096, v8""")
GT = 236
def gelu_pk(tile, grp):
    L = []
    w = [TL[tile] + 8*grp + 2*e for e in range(4)]
    t = [GT + 2*e for e in range(4)]
    P = lambda r: f"v[{r}:{r+1}]"
    L += [f"v_pk_mul_f32 {P(t[e])}, {P(w[e])}, {P(w[e])}" for e in range(4)]
    L += [f"v_pk_fma_f32 {P(t[e])}, {P(t[e])}, v[228:229], v[228:229] op_sel:[0,0,1] op_sel_hi:[1,0,1]" for e in range(4)]
    L += [f"v_pk_mul_f32 {P(t[e])}, {P(t[e])}, {P(w[e])}" for e in range(4)]
    L += [f"v_exp_f32 v{t[e]+k}, v{t[e]+k}" for e in range(4) for k in range(2)]
    L += [f"v_pk_fma_f32 {P(t[e])}, {P(t[e])}, v[230:231], v[230:231] op_sel_hi:[1,0,0]" for e in range(4)]
    L += [f"v_rcp_f32 v{t[e]+k}, v{t[e]+k}" for e in range(4) for k in range(2)]
    L += [f"v_pk_mul_f32 {P(w[e])}, {P(w[e])}, {P(t[e])}" for e in range(4)]
    return L
def cvts(tile):
    o = AF + 8*(tile & 1)
    return [f"v_cvt_pk_bf16_f32 v{o+k}, v{TL[tile]+2*k}, v{TL[tile]+2*k+1}" for k in range(8)]
def h_store(tile):
    o = AF + 8*(tile & 1)
    base, off = ("v8", 2048*tile) if tile < 2 else ("v11", 2048*(tile-2))
    return [f"global_store_dwordx4 {base}, v[{o}:{o+3}], s[60:61] offset:{off} sc1", f"global_store_dwordx4 {base}, v[{o+4}:{o+7}], s[60:61] offset:{off+1024} sc1"]
def w2f_loadB(kk):
    return [l.replace("v211", "v9") for l in w2f_load(1, kk)]
stamp(11)
A("s_nop 7")
for t in range(4):
    if SENT and t == 2:
        A(f"s_add_u32 s66, s80, {CL_S3}\ns_lshl_b32 s66, s66, 7\nv_mov_b32 v248, s66\nglobal_load_dword v249, v248, s[34:35] sc1")
    for grp in range(2):
        for x in gelu_pk(t, grp): A(x)
    for x in cvts(t) + h_store(t): A(x)
stamp(12)
ACC3 = 32; RING = 96; NS = 16
def p3_haddr():
    A(f"""s_lshl_b32 s66, s40, 1
    s_mul_i32 s66, s66, {112*1024}
    s_mul_i32 s67, s3, {28*1024}
    s_add_u32 s81, s66, s67
    s_lshr_b32 s67, s3, 1
    s_mul_i32 s67, s67, {112*1024}
    v_lshlrev_b32 v4, 4, v1
    v_add_u32 v2, s67, v4
    s_sub_u32 s67, {112*1024}, s67
    v_add_u32 v3, s67, v4""")
    srd(44, 60, S*F*2)
def p3_resid():
    A(f"""s_lshr_b32 s66, s3, 1
    s_and_b32 s67, s3, 1
    s_lshl_b32 s68, s40, 1
    s_add_u32 s68, s68, s66
    s_lshl_b32 s68, s68, 7
    s_lshl_b32 s69, s41, 1
    s_add_u32 s69, s69, s67
    s_lshl_b32 s76, s69, 17
    s_add_u32 s68, s68, s76
    v_lshrrev_b32 v12, 5, v1
    v_lshlrev_b32 v13, 14, v12
    v_and_b32 v14, 31, v1
    v_lshl_add_u32 v13, v14, 2, v13
    v_add_u32 v13, s68, v13""")
    for j in range(4):
        A(f"buffer_load_dword v{16+2*j}, v13, s[48:51], 0 offen sc1")
        A(f"v_add_u32 v14, 8192, v13")
        A(f"buffer_load_dword v{17+2*j}, v14, s[48:51], 0 offen sc1")
        if j < 3: A("v_add_u32 v13, 32768, v13")
    A(f"""s_lshl_b32 s69, s69, 6
    v_lshl_add_u32 v12, v12, 3, s69""")
    for j in range(4):
        A(f"global_load_dwordx2 v[{24+2*j}:{25+2*j}], v12, s[28:29] offset:{16*j}")
def p3_addrs():
    for sl in (1, 2, 3):
        A(f"""s_xor_b32 s66, s3, {sl}
        s_lshl_b32 s67, s66, 2
        s_add_u32 s67, s67, s3
        s_lshl_b32 s67, s67, 12
        v_add_u32 v{224+sl}, s67, v4
        s_lshl_b32 s67, s3, 2
        s_add_u32 s67, s67, s66
        s_lshl_b32 s67, s67, 12
        v_add_u32 v{228+sl}, s67, v4""")
    A(f"""s_lshr_b32 s66, s3, 1
    s_and_b32 s67, s3, 1
    s_lshl_b32 s68, s40, 1
    s_add_u32 s68, s68, s66
    s_lshl_b32 s68, s68, 5
    v_and_b32 v6, 31, v1
    v_add_u32 v6, s68, v6
    v_mul_u32_u24 v6, 896, v6
    s_lshl_b32 s69, s41, 1
    s_add_u32 s69, s69, s67
    s_lshl_b32 s69, s69, 6
    v_lshrrev_b32 v7, 5, v1
    v_lshl_add_u32 v6, v7, 4, v6
    v_add_u32 v6, s69, v6""")
def ldH(kk):
    slot = kk % NS
    if kk % 4 == 0:
        A(f"s_add_u32 s82, s81, {4096*(kk>>2)}")
    for tj in range(2):
        r = RING + 8*slot + 4*tj
        if E("NOLD3", 0): continue
        A(f"buffer_load_dwordx4 v[{r}:{r+3}], v{2+tj}, s[44:47], s82 offen offset:{1024*(kk&3)} sc1")
slow = []
if not SENT:
    A("s_waitcnt vmcnt(0)\ns_barrier")
    lw = A.label("s3w0")
    wave0_only(lw)
    A(f"s_add_u32 s66, s38, {CL_S3}")
    emit_signal("s66")
    A(f"{lw}:")
    p3_resid()
    stamp(13); rstamp(36)
    p3_haddr(); p3_addrs()
    lw = A.label("s3p")
    wave0_only(lw)
    A(f"s_add_u32 s66, s80, {CL_S3}\ns_lshl_b32 s66, s66, 7\nv_mov_b32 v10, s66")
    emit_poll("v10", "14")
    A(f"{lw}:\ns_barrier")
    stamp(14); rstamp(37)
    for kk in range(PD3): ldH(kk)
else:
    p3_haddr()
    lok = A.label("pfok")
    A(f"s_waitcnt vmcnt(4)\nv_cmp_ne_u32 vcc, 14, v249\ns_cbranch_vccz {lok}")
    emit_poll("v248", "14")
    A(f"{lok}:")
    stamp(13); rstamp(36)
    regs = [RING + 8*(kk % NS) + 4*tj for kk in range(PD3) for tj in range(2)]
    def chk0():
        A(f"v_max_u32 v10, v{regs[0]}, v{regs[1]}")
        for i in range(2, len(regs), 2):
            A(f"v_max3_u32 v10, v10, v{regs[i]}, v{regs[i+1]}")
        A("v_cmp_eq_u32 vcc, -1, v10")
    if E("RESFIRST", 1):
        p3_resid(); p3_addrs()
        for kk in range(PD3): ldH(kk)
    else:
        for kk in range(PD3): ldH(kk)
        p3_addrs(); p3_resid()
    stamp(14); rstamp(37)
    lp0 = A.label("h0"); ld0 = A.label("h0d")
    A(f"s_waitcnt vmcnt({0 if E('RESFIRST', 1) else 12})")
    chk0()
    A(f"s_cbranch_vccz {ld0}\ns_mov_b32 s68, {SPIN}\n{lp0}:")
    for kk in range(PD3): ldH(kk)
    A("s_waitcnt vmcnt(0)")
    chk0()
    A(f"""s_cbranch_vccz {ld0}
    s_sub_u32 s68, s68, 1
    s_cmp_lg_u32 s68, 0
    s_cbranch_scc1 {lp0}
    {ld0}:""")
    stamp(18)
for kk in range(28):
    A(f"s_waitcnt vmcnt({2*(min(kk+PD3-1, 27) - kk)})")
    slot = kk % NS
    if SENT and kk >= PD3:
        r0 = RING + 8*slot
        A(f"""v_max_u32 v10, v{r0}, v{r0+4}
        v_cmp_eq_u32 vcc, -1, v10
        s_cbranch_vccnz L_SLOW_{kk}
        L_BACK_{kk}:""")
        slow.append(kk)
    ms = []
    for tj in range(2):
        for dd in range(2):
            T_ = ACC3 + 16*(2*tj + dd)
            a = 4*(dd*28 + kk)
            r = RING + 8*slot + 4*tj
            c = "0" if kk == 0 else f"v[{T_}:{T_+15}]"
            ms.append(f"v_mfma_f32_32x32x16_bf16 v[{T_}:{T_+15}], a[{a}:{a+3}], v[{r}:{r+3}], {c}")
    A(ms[0]); A(ms[1])
    if kk + PD3 < 28: ldH(kk + PD3)
    A(ms[2]); A(ms[3])
    if SENT and kk == 2: A("s_waitcnt vmcnt(6)")
    if 2 <= kk < 10:
        p = kk - 2; j = p >> 1; c_ = p & 1; k = 4*j + 2*c_
        A(f"""v_lshlrev_b32 v{232+k}, 16, v{16+2*j+c_}
        v_and_b32 v{233+k}, s72, v{16+2*j+c_}
        v_lshlrev_b32 v8, 16, v{24+2*j+c_}
        v_and_b32 v9, s72, v{24+2*j+c_}
        v_add_f32 v{232+k}, v{232+k}, v8
        v_add_f32 v{233+k}, v{233+k}, v9""")
stamp(15)
A("s_nop 10")
for sl in (1, 2, 3):
    for q in range(4):
        r = ACC3 + 16*sl + 4*q
        A(f"ds_write_b128 v{224+sl}, v[{r}:{r+3}] offset:{1024*q}")
for k in range(0, 16, 2): A(f"v_pk_add_f32 {P2(ACC3+k)}, {P2(ACC3+k)}, {P2(232+k)}")
A("s_waitcnt lgkmcnt(0)\ns_barrier")
RB = 96
for sl in (1, 2, 3):
    for q in range(4):
        r = RB + 16*(sl-1) + 4*q
        A(f"ds_read_b128 v[{r}:{r+3}], v{228+sl} offset:{1024*q}")
for sl in (1, 2, 3):
    A(f"s_waitcnt lgkmcnt({4*(3-sl)})")
    for k in range(0, 16, 2): A(f"v_pk_add_f32 {P2(ACC3+k)}, {P2(ACC3+k)}, {P2(RB+16*(sl-1)+k)}")
for k in range(8): A(f"v_cvt_pk_bf16_f32 v{192+k}, v{ACC3+2*k}, v{ACC3+2*k+1}")
A("""s_nop 1
v_permlane32_swap_b32 v192, v194
v_permlane32_swap_b32 v193, v195
v_permlane32_swap_b32 v196, v198
v_permlane32_swap_b32 v197, v199
s_nop 1
""")
OF = "sc1" if E("OUTSC1", 0) else ("nt" if E("OUTNT", 0) else "")
A(f"""global_store_dwordx4 v6, v[192:195], s[30:31] {OF}
global_store_dwordx4 v6, v[196:199], s[30:31] offset:32 {OF}""")
stamp(16)
rstamp(38)
A("s_branch L_END")
for kk in slow:
    r0 = RING + 8*(kk % NS)
    A(f"""L_SLOW_{kk}:
    s_mov_b32 s68, {SPIN}
    s_add_u32 s83, s81, {4096*(kk>>2)}
    L_SLOWL_{kk}:
    buffer_load_dwordx4 v[{r0}:{r0+3}], v2, s[44:47], s83 offen offset:{1024*(kk&3)} sc1
    buffer_load_dwordx4 v[{r0+4}:{r0+7}], v3, s[44:47], s83 offen offset:{1024*(kk&3)} sc1
    s_waitcnt vmcnt(0)
    v_max_u32 v10, v{r0}, v{r0+4}
    v_cmp_eq_u32 vcc, -1, v10
    s_cbranch_vccz L_BACK_{kk}
    s_sub_u32 s68, s68, 1
    s_cmp_lg_u32 s68, 0
    s_cbranch_scc1 L_SLOWL_{kk}
    s_branch L_BACK_{kk}""")

A(f"""L_OTHER:
s_cmp_ge_u32 s2, {NWG}
s_cbranch_scc1 L_END
v_and_b32 v1, 63, v0
v_lshrrev_b32 v2, 6, v0
s_nop 0
v_readfirstlane_b32 s3, v2
s_waitcnt lgkmcnt(0)
s_cmp_lg_u32 s2, {NMAIN}
s_cbranch_scc1 L_PREF
v_mov_b32 v4, 0
v_mov_b32 v5, 0
v_mov_b32 v6, 0
v_mov_b32 v7, 0
v_lshlrev_b32 v2, 4, v0
global_store_dwordx4 v2, v[4:7], s[34:35] sc1
v_add_u32 v3, 4096, v2
global_store_dwordx4 v3, v[4:7], s[34:35] sc1
s_waitcnt vmcnt(0)
s_barrier
s_cmp_lg_u32 s3, 0
s_cbranch_scc1 L_END
v_mov_b32 v2, 0
v_mov_b32 v3, 1
s_mov_b64 exec, 1
global_store_dword v2, v3, s[32:33] sc1""")
A(f"""s_branch L_END
L_PREF:""")
A(f"""v_min_u32 v2, 8, v1
v_lshlrev_b32 v2, 21, v2
v_add_u32 v2, {0x100000}, v2
global_load_dword v8, v2, s[34:35]
v_mov_b32 v3, 0
global_load_dword v9, v3, s[30:31]
global_load_dword v10, v3, s[22:23]
global_load_dword v11, v3, s[26:27]
global_load_dword v12, v3, s[16:17]
global_load_dword v13, v3, s[24:25]
global_load_dword v14, v3, s[28:29]
global_load_dword v15, v3, s[18:19]
global_load_dword v16, v3, s[34:35]""")
if E("HW1", 0):
    A(f"""s_sub_u32 s66, s2, {NMAIN+1}
    s_mul_i32 s66, s66, {52*1024}
    s_lshl_b32 s67, s3, 10
    s_add_u32 s66, s66, s67
    v_lshl_add_u32 v2, v1, 4, s66""")
    srd(44, 22, D*F*2)
    A("s_mov_b32 s69, 0")
    for j in range(13):
        A(f"buffer_load_dwordx4 v[{20+4*j}:{23+4*j}], v2, s[44:47], s69 offen\ns_add_u32 s69, s69, 4096")
A("s_waitcnt vmcnt(0)")
A("""L_END:
s_endpgm
L_CODE_END:""")

errs = check_hazards(A.lines)
for e in errs: print("HAZARD:", e, file=sys.stderr)
hdr = open(f"cdna_kernels/{NAME}.s.ref").read().split(".amdgcn_target")[0]
hdr = "\n".join(l for l in hdr.splitlines() if not l.startswith("; @launch"))
out = [hdr.rstrip(), f"; @launch grid=({NWG},1,1) block=(256,1,1) lds={LDS_BYTES}",
 '.amdgcn_target "amdgcn-amd-amdhsa--gfx950"', ".text", f".globl {KN}", ".p2align 8", f".type {KN},@function", f"{KN}:",
 A.text(), '.section .rodata,"a"', ".p2align 6", f".amdhsa_kernel {KN}",
 "  .amdhsa_next_free_vgpr 512", "  .amdhsa_next_free_sgpr 100", "  .amdhsa_accum_offset 256", "  .amdhsa_group_segment_fixed_size 0",
 "  .amdhsa_kernarg_size 112", "  .amdhsa_user_sgpr_count 2", "  .amdhsa_user_sgpr_kernarg_segment_ptr 1", "  .amdhsa_system_sgpr_workgroup_id_x 1",
 "  .amdhsa_float_denorm_mode_32 3", ".end_amdhsa_kernel", ""]
dst = os.environ.get("OUT", f"cdna_kernels/{NAME}.s")
open(dst, "w").write("\n".join(out))
print("wrote", dst, "instructions:", sum(1 for l in A.lines if not l.endswith(':')), "hazards:", len(errs))
```

```python
import sys, os
sys.path.insert(0, os.path.dirname(os.path.abspath(__file__)))
from asmlib import *

NAME = "sequential_preLN__ssm_conv_h3__dense_activation_gelu__prompt"
E = lambda k, d: int(os.environ.get(k, str(d)))
STAMPS = E("STAMPS", 0)
SENT = E("SENT", 1)
PD2 = E("PD2", 11)
PD3 = E("PD3", 5)
W1THR = E("W1THR", 0)
NMAIN = 224
NHELP = E("NHELP", 8)
NWG = NMAIN + 1 + NHELP
S, D, F = 2048, 448, 1792
WS_STAMP = 0x80000
WS_UR = 0x100000
WS_X2 = 0x300000
WS_H2 = 0x500000
WS_ST = 0x700000
WS_W2F = 0x800000
WS_HF = 0xA00000
CL_S1 = 0; CL_AUX = 8; CL_S2 = 16; CL_S3 = 32
L_W1 = 0
L_X = 0x1C000
L_UT = L_X + 0x0000
L_XT = L_X + 0x2000
L_KA = L_X + 0x4000 + 64
L_UR = L_X + 0x8100
L_AUG = L_X + 0xA500
L_CNT = L_X + 0xB600
LDS_BYTES = 163840
SPIN = 2000000
KN = NAME + "_kernel"

A = Asm()

def stamp(i, wave=0):
    if not STAMPS: return
    l = A.label("st")
    A(f"""s_cmp_lg_u32 s3, {wave}
    s_cbranch_scc1 {l}
    s_memtime s[92:93]
    s_waitcnt lgkmcnt(0)
    s_lshl_b32 s94, s2, 8
    s_add_u32 s94, s94, {WS_STAMP + 4*i}
    v_mov_b32 v250, s94
    v_mov_b32 v251, s92
    s_mov_b64 s[90:91], exec
    s_mov_b64 exec, 1
    global_store_dword v250, v251, s[34:35]
    s_mov_b64 exec, s[90:91]
    {l}:""")

def rstamp(i, xcc=False):
    if not STAMPS: return
    l = A.label("rt")
    A(f"""s_cmp_lg_u32 s3, 0
    s_cbranch_scc1 {l}
    {"s_getreg_b32 s92, hwreg(HW_REG_XCC_ID)" if xcc else "s_memrealtime s[92:93]"}
    s_waitcnt lgkmcnt(0)
    s_lshl_b32 s94, s2, 8
    s_add_u32 s94, s94, {WS_STAMP + 4*i}
    v_mov_b32 v250, s94
    v_mov_b32 v251, s92
    s_mov_b64 s[90:91], exec
    s_mov_b64 exec, 1
    global_store_dword v250, v251, s[34:35]
    s_mov_b64 exec, s[90:91]
    {l}:""")

def wave0_only(label):
    A(f"s_cmp_lg_u32 s3, 0\ns_cbranch_scc1 {label}")

def emit_signal(line_sreg):
    A(f"""s_lshl_b32 s67, {line_sreg}, 7
    v_mov_b32 v245, s67
    v_mov_b32 v246, 1
    s_mov_b64 s[64:65], exec
    s_mov_b64 exec, 1
    global_atomic_add v245, v246, s[34:35] sc1
    s_mov_b64 exec, s[64:65]""")

def emit_poll(addr_v, target, base="s[34:35]", tmp="v247"):
    lp = A.label("poll"); done = A.label("polld")
    A(f"""s_mov_b32 s68, {SPIN}
    {lp}:
    global_load_dword {tmp}, {addr_v}, {base} sc1
    s_waitcnt vmcnt(0)
    v_cmp_ne_u32 vcc, {target}, {tmp}
    s_cbranch_vccz {done}
    {"s_sleep %d" % E("PSLEEP", 0) if E("PSLEEP", 0) else ""}
    s_sub_u32 s68, s68, 1
    s_cmp_lg_u32 s68, 0
    s_cbranch_scc1 {lp}
    {done}:""")

def ws_base(sreg, off):
    A(f"s_add_u32 s{sreg}, s34, {off}\ns_addc_u32 s{sreg+1}, s35, 0")

def srd(base, ptr, size):
    A(f"s_mov_b32 s{base}, s{ptr}\ns_mov_b32 s{base+1}, s{ptr+1}\ns_mov_b32 s{base+2}, {size}\ns_mov_b32 s{base+3}, 0x20000")

if STAMPS: A("s_memrealtime s[78:79]")
A(f"""s_load_dwordx16 s[8:23], s[0:1], 0""")
A("s_getpc_b64 s[88:89]\nL_PC:")
if E("PF0", 0):
    A(f"""v_lshlrev_b32 v6, 4, v0
    global_load_dwordx4 v[116:119], v6, s[88:89] offset:{E("PFOFF", 128)}""")
A(f"""s_load_dwordx8 s[24:31], s[0:1], 64
s_load_dwordx4 s[32:35], s[0:1], 96
s_cmp_ge_u32 s2, {NMAIN}
s_cbranch_scc1 L_OTHER
s_lshr_b32 s42, s2, 5
s_and_b32 s43, s2, 31
v_lshrrev_b32 v2, 3, v0
v_and_b32 v3, 7, v0
s_mul_i32 s66, s43, {64*896}
s_lshl_b32 s67, s42, 7
s_add_u32 s66, s66, s67
v_mul_u32_u24 v4, 1792, v2
v_lshl_add_u32 v4, v3, 4, v4
v_add_u32 v7, s66, v4
v_subrev_u32 v92, 2688, v7
v_subrev_u32 v93, 1792, v7
v_subrev_u32 v94, 896, v7
s_lshl_b32 s67, s42, 9
v_lshl_add_u32 v8, v3, 6, s67
s_mov_b32 s46, {S*D*2}
s_mov_b32 s47, 0x20000
s_waitcnt lgkmcnt(0)""")
if STAMPS: A("s_memrealtime s[96:97]")
A(f"""s_mov_b32 s44, s10
s_mov_b32 s45, s11
buffer_load_dwordx4 v[10:13], v92, s[44:47], 0 offen
buffer_load_dwordx4 v[14:17], v93, s[44:47], 0 offen
buffer_load_dwordx4 v[18:21], v94, s[44:47], 0 offen
buffer_load_dwordx4 v[22:25], v7, s[44:47], 0 offen
buffer_load_dwordx4 v[26:29], v7, s[44:47], 0 offen offset:896
global_load_dwordx4 v[30:33], v7, s[12:13]
global_load_dwordx4 v[34:37], v7, s[12:13] offset:896
global_load_dwordx4 v[46:49], v8, s[14:15]
global_load_dwordx4 v[50:53], v8, s[14:15] offset:16
global_load_dwordx4 v[54:57], v8, s[14:15] offset:32
global_load_dwordx4 v[58:61], v8, s[14:15] offset:48
global_load_dwordx4 v[38:41], v7, s[8:9]
global_load_dwordx4 v[42:45], v7, s[8:9] offset:896
v_and_b32 v1, 63, v0
v_lshrrev_b32 v5, 6, v0
s_mov_b32 s70, 0x05040100
s_mov_b32 s71, 0x07060302
v_readfirstlane_b32 s3, v5
s_mov_b32 s72, 0xffff0000
s_mov_b32 s73, 0x3f803f80
s_lshr_b32 s37, s2, 3""")
A(f"""s_lshr_b32 s66, s2, 1
s_mul_i32 s66, s66, {16*896}
s_and_b32 s67, s2, 1
s_mul_i32 s67, s67, 448
s_add_u32 s66, s66, s67
s_mov_b32 s67, 2341
v_mul_lo_u32 v110, v0, s67
v_lshrrev_b32 v110, 16, v110
v_mul_u32_u24 v111, 28, v110
v_sub_u32 v111, v0, v111
v_mul_u32_u24 v110, 896, v110
v_lshl_add_u32 v110, v111, 4, v110
v_add_u32 v110, s66, v110
v_add_u32 v112, 256, v0
v_mul_lo_u32 v113, v112, s67
v_lshrrev_b32 v113, 16, v113
v_mul_u32_u24 v111, 28, v113
v_sub_u32 v111, v112, v111
v_mul_u32_u24 v113, 896, v113
v_lshl_add_u32 v113, v111, 4, v113
v_add_u32 v113, s66, v113
s_lshl_b32 s66, s37, 10
s_min_u32 s66, s66, L_CODE_END-{KN}-1024
v_lshl_add_u32 v114, v1, 4, s66
s_lshl_b32 s69, s3, 10
s_add_u32 m0, s69, {L_W1}
s_nop 0
global_load_lds_dwordx4 v110, s[26:27]""")
l3 = A.label("x3"); lx = A.label("xd")
A(f"""s_cmp_eq_u32 s3, 3
s_cbranch_scc1 {l3}
s_add_u32 m0, m0, 4096
s_nop 0
global_load_lds_dwordx4 v113, s[26:27]
s_branch {lx}
{l3}:
s_sub_u32 s88, s88, L_PC-{KN}
s_subb_u32 s89, s89, 0
global_load_dwordx4 v[116:119], v114, s[88:89]
{lx}:""")
lns = A.label("nost")
A(f"""s_mov_b32 s76, 0
s_cmp_lt_u32 s3, 2
s_cbranch_scc1 {lns}""")
srd(48, 16, D*S*2)
A(f"""v_lshlrev_b32 v115, 4, v1
s_sub_u32 s66, s3, 2
s_lshl_b32 s67, s2, 1
s_add_u32 s67, s67, s66
s_lshl_b32 s67, s67, 12
s_load_dword s77, s[16:17], s67
s_mul_i32 s66, s66, 8320
s_add_u32 m0, s66, {L_KA}
s_add_u32 s79, s66, {L_KA + 4160 - 4}""")
for j in range(4):
    A(f"s_nop 0\nbuffer_load_dwordx4 v115, s[48:51], s67 offen lds\ns_add_u32 m0, m0, 1024\ns_add_u32 s67, s67, 1024")
A(f"s_add_u32 m0, m0, {4160-4096}\ns_sub_u32 s67, s67, {4096-2}")
for j in range(4):
    A(f"s_nop 0\nbuffer_load_dwordx4 v115, s[48:51], s67 offen lds\ns_add_u32 m0, m0, 1024\ns_add_u32 s67, s67, 1024")
A(f"""s_cmp_lt_u32 s42, 4
s_cbranch_scc0 {lns}
s_mov_b32 s76, 1
s_lshl_b32 s66, s43, 6
s_lshl_b32 s67, s42, 4
s_add_u32 s66, s66, s67
s_sub_u32 s67, s3, 2
s_lshl_b32 s67, s67, 3
s_add_u32 s66, s66, s67
v_lshrrev_b32 v120, 3, v1
v_add_u32 v120, s66, v120
v_mul_u32_u24 v121, 896, v120
v_and_b32 v122, 7, v1
v_lshl_add_u32 v121, v122, 4, v121""")
for i in range(7):
    A(f"global_load_dwordx4 v[{64+4*i}:{67+4*i}], v121, s[8:9] offset:{128*i}")
A(f"{lns}:")
ws_base(52, WS_UR); ws_base(54, WS_X2); ws_base(56, WS_H2); ws_base(58, WS_ST); ws_base(60, WS_HF); ws_base(62, WS_W2F)
stamp(0)
rstamp(30)
rstamp(31, True)
if STAMPS:
    for (i, r) in ((28, 78), (29, 96)):
        l = A.label("rt0")
        A(f"""s_cmp_lg_u32 s3, 0
        s_cbranch_scc1 {l}
        s_lshl_b32 s94, s2, 8
        s_add_u32 s94, s94, {WS_STAMP + 4*i}
        v_mov_b32 v250, s94
        v_mov_b32 v251, s{r}
        s_mov_b64 s[90:91], exec
        s_mov_b64 exec, 1
        global_store_dword v250, v251, s[34:35]
        s_mov_b64 exec, s[90:91]
        {l}:""")
A(f"""v_sub_u32 v96, 31, v2
v_lshrrev_b32 v97, 2, v96
v_xor_b32 v97, v97, v3
v_lshlrev_b32 v97, 4, v97
v_and_b32 v96, 3, v96
v_lshl_add_u32 v97, v96, 2, v97
v_lshl_add_u32 v95, v3, 10, v97
v_add_u32 v95, {L_UT}, v95
v_lshrrev_b32 v96, 1, v2
v_xor_b32 v96, v96, v3
v_lshlrev_b32 v96, 4, v96
v_and_b32 v97, 1, v2
v_lshl_add_u32 v96, v97, 3, v96
v_lshl_add_u32 v96, v3, 10, v96
v_add_u32 v96, {L_XT}, v96
v_lshrrev_b32 v98, 6, v0
v_xor_b32 v99, v3, v98
v_lshlrev_b32 v99, 4, v99
v_lshl_add_u32 v100, v2, 7, v99
v_add_u32 v100, {L_UT}, v100
s_lshl_b32 s66, s42, 18
s_sub_u32 s67, 31, s43
s_lshl_b32 s67, s67, 7
s_add_u32 s66, s66, s67
v_lshlrev_b32 v102, 12, v2
v_lshl_add_u32 v102, v3, 4, v102
v_add_u32 v102, s66, v102
v_and_b32 v104, 15, v0
v_lshrrev_b32 v105, 4, v0
v_xor_b32 v106, v104, v98
v_lshlrev_b32 v106, 4, v106
v_lshl_add_u32 v106, v105, 8, v106
v_add_u32 v106, {L_XT}, v106
s_lshl_b32 s66, s42, 18
s_lshl_b32 s67, s43, 8
s_add_u32 s66, s66, s67
v_lshlrev_b32 v108, 13, v105
v_lshl_add_u32 v108, v104, 4, v108
v_add_u32 v108, s66, v108
v_mov_b32 v101, {L_CNT}
v_mov_b32 v103, 0
ds_write2_b32 v101, v103, v103 offset1:1""")
A(f"""v_lshrrev_b32 v123, 5, v1
v_bfe_u32 v124, v1, 2, 2
v_lshl_add_u32 v123, v123, 2, v124
v_mul_u32_u24 v123, 448, v123
v_bfe_u32 v124, v1, 4, 1
v_lshl_add_u32 v123, v124, 5, v123
v_and_b32 v124, 3, v1
v_lshl_add_u32 v123, v124, 3, v123
s_lshl_b32 s66, s3, 6
s_add_u32 s66, s66, {L_W1}
v_add_u32 v123, s66, v123
s_and_b32 s66, s2, 1
s_mul_i32 s66, s66, 7
s_add_u32 s66, s66, s3
s_mul_i32 s66, s66, 112
s_lshr_b32 s67, s2, 1
s_add_u32 s66, s66, s67
s_lshl_b32 s66, s66, 10
v_lshl_add_u32 v124, v1, 4, s66""")
def p0wait(base):
    l1 = A.label("wa"); l2 = A.label("wb"); l3_ = A.label("wc")
    A(f"""s_cmp_ge_u32 s3, 2
    s_cbranch_scc1 {l3_}
    s_waitcnt vmcnt({base})
    s_branch {l2}
    {l3_}:
    s_cmp_eq_u32 s76, 0
    s_cbranch_scc1 {l1}
    s_waitcnt vmcnt({base+15})
    s_branch {l2}
    {l1}:
    s_waitcnt vmcnt({base+8})
    {l2}:""")
A(f"""s_and_b32 s36, s2, 7
s_mul_i32 s66, s37, 37
s_lshr_b32 s66, s66, 8
s_mul_i32 s67, s66, 7
s_sub_u32 s41, s37, s67
s_lshl_b32 s40, s36, 2
s_add_u32 s40, s40, s66
s_lshr_b32 s80, s40, 1
s_lshr_b32 s38, s36, 1
s_lshl_b32 s38, s38, 2
s_add_u32 s38, s38, s66
s_and_b32 s39, s36, 1
s_mul_i32 s39, s39, 7
s_add_u32 s39, s39, s41""")
p0wait(4)
stamp(26)
rstamp(39)
K = lambda j, p: f"v{10 + 4*j + p}"
T = 126
for p in range(4):
    seq = []
    for half in range(2):
        i = 2*p + half
        sel = "s70" if half == 0 else "s71"
        t = T + 8*half
        seq.append([
            f"v_perm_b32 v{t}, {K(2,p)}, {K(3,p)}, {sel}",
            f"v_perm_b32 v{t+1}, {K(0,p)}, {K(1,p)}, {sel}",
            f"v_perm_b32 v{t+2}, {K(3,p)}, {K(4,p)}, {sel}",
            f"v_perm_b32 v{t+3}, {K(1,p)}, {K(2,p)}, {sel}",
            f"v_dot2_f32_bf16 v{t+4}, v{t}, v{46+2*i}, 0",
            f"v_dot2_f32_bf16 v{t+5}, v{t+2}, v{46+2*i}, 0",
            f"v_dot2_f32_bf16 v{t+4}, v{t+1}, v{47+2*i}, v{t+4}",
            f"v_dot2_f32_bf16 v{t+5}, v{t+3}, v{47+2*i}, v{t+5}",
            (f"v_lshlrev_b32 v{t+6}, 16, v{30+p}" if half == 0 else f"v_and_b32 v{t+6}, s72, v{30+p}"),
            (f"v_lshlrev_b32 v{t+7}, 16, v{34+p}" if half == 0 else f"v_and_b32 v{t+7}, s72, v{34+p}"),
            f"v_mul_f32 v{t+4}, v{t+4}, v{t+6}",
            f"v_mul_f32 v{t+5}, v{t+5}, v{t+7}",
            f"v_cvt_pk_bf16_f32 v{t+4}, v{t+5}, v{t+4}",
            f"ds_write_b32 v95, v{t+4} offset:{128*i}",
        ])
    for k in range(len(seq[0])):
        A(seq[0][k]); A(seq[1][k])
stamp(27)
rstamp(40)
p0wait(0)
rstamp(41)
for p in range(4):
    A(f"ds_write2_b32 v96, v{38+p}, v{42+p} offset0:{64*p} offset1:{64*p+1}")
A("""s_waitcnt lgkmcnt(0)
s_barrier""")
ldmaw = A.label("dmaw"); laddr = A.label("w1addr"); ljoin = A.label("w1join")
A(f"s_cmp_ge_u32 s3, 2\ns_cbranch_scc1 {ldmaw}")
A("v_mov_b32 v248, 0\nglobal_load_dword v249, v248, s[32:33] sc1")
for q in range(4):
    if q == 0: A("ds_read_b128 v[10:13], v100")
    else: A(f"v_xor_b32 v110, {32*q}, v100\nds_read_b128 v[{10+4*q}:{13+4*q}], v110 offset:{2048*q}")
for q in range(4):
    if q == 0: A("ds_read_b128 v[26:29], v106")
    else: A(f"v_xor_b32 v111, {32*q}, v106\nds_read_b128 v[{26+4*q}:{29+4*q}], v111 offset:{2048*q}")
for q in range(4):
    A(f"s_waitcnt lgkmcnt({7-q})\nglobal_store_dwordx4 v102, v[{10+4*q}:{13+4*q}], s[52:53] sc1")
    if q < 3: A("v_add_u32 v102, 65536, v102")
for j in range(4):
    A(f"ds_read_b64_tr_b16 v[{42+4*j}:{43+4*j}], v123 offset:{128*j}\nds_read_b64_tr_b16 v[{44+4*j}:{45+4*j}], v123 offset:{128*j+3584}")
A("s_waitcnt lgkmcnt(8)")
for q in range(4):
    A(f"global_store_dwordx4 v108, v[{26+4*q}:{29+4*q}], s[54:55] sc1")
    if q < 3: A("v_add_u32 v108, 65536, v108")
A("s_waitcnt lgkmcnt(0)")
lsk = A.label("w2s"); lsk2 = A.label("w2t")
for j in range(3):
    A(f"global_store_dwordx4 v124, v[{42+4*j}:{45+4*j}], s[62:63] sc1")
    A(f"v_add_u32 v124, {2*112*1024}, v124")
A(f"""s_cmp_eq_u32 s3, 1
s_cbranch_scc1 {lsk}
global_store_dwordx4 v124, v[54:57], s[62:63] sc1
s_branch {lsk2}
{lsk}:
v_subrev_u32 v124, {2*112*1024}, v124
s_nop 0
global_store_dwordx4 v124, v[50:53], s[62:63] sc1
{lsk2}:
s_barrier""")
stamp(1)
def lds_count_signal(off, last, build_addr):
    ln = A.label("nl")
    A(f"""v_mov_b32 v110, 1
    s_mov_b64 s[64:65], exec
    s_mov_b64 exec, 1
    ds_add_rtn_u32 v111, v101, v110 offset:{off}
    s_waitcnt lgkmcnt(0)
    v_readfirstlane_b32 s66, v111
    s_mov_b64 exec, s[64:65]
    s_cmp_eq_u32 s66, {last}
    s_cbranch_scc0 {ln}""")
    lio = A.label("initok")
    A(f"v_cmp_ne_u32 vcc, 1, v249\ns_cbranch_vccz {lio}")
    emit_poll("v248", 1, base="s[32:33]")
    A(f"v_mov_b32 v249, 1\n{lio}:")
    A(build_addr)
    emit_signal("s66")
    A(f"{ln}:")
A("s_waitcnt vmcnt(8)")
lds_count_signal(0, 1, "s_mov_b32 s66, s42")
stamp(2)
rstamp(32)
A("s_waitcnt vmcnt(0)")
lds_count_signal(4, 3, f"s_add_u32 s66, s36, {CL_AUX}")
A(f"""v_lshrrev_b32 v10, 5, v1
v_mul_u32_u24 v10, 4608, v10
v_and_b32 v11, 31, v1
v_lshl_add_u32 v10, v11, 4, v10
v_add_u32 v10, {L_UR + 4096}, v10
v_mov_b32 v12, 0
v_mov_b32 v13, 0
v_mov_b32 v14, 0
v_mov_b32 v15, 0
ds_write_b128 v10, v[12:15]
s_branch {laddr}""")
A(f"{ldmaw}:")
srd(44, 22, D*F*2)
A(f"""v_lshrrev_b32 v11, 4, v1
v_lshlrev_b32 v12, 2, v11
v_and_b32 v13, 15, v1
v_xor_b32 v12, v12, v13
v_lshlrev_b32 v12, 4, v12
v_mul_u32_u24 v11, 3584, v11
v_add_u32 v11, v11, v12
s_lshl_b32 s66, s39, 8
v_add_u32 v11, s66, v11
v_mov_b32 v13, s79
s_lshl_b32 s77, s77, 16
v_mov_b32 v12, s77
ds_write_b32 v13, v12
v_mov_b32 v248, 0
global_load_dword v249, v248, s[32:33] sc1
s_barrier""")
lns = A.label("nost2")
A(f"s_cmp_eq_u32 s76, 0\ns_cbranch_scc1 {lns}")
b = 64
A("s_waitcnt vmcnt(1)")
A(f"v_dot2_f32_bf16 v16, v{b}, s73, 0\nv_dot2_f32_bf16 v17, v{b}, v{b}, 0\nv_dot2_f32_bf16 v18, v{b+1}, s73, 0\nv_dot2_f32_bf16 v19, v{b+1}, v{b+1}, 0")
for i in range(2, 28, 2):
    A(f"v_dot2_f32_bf16 v16, v{b+i}, s73, v16\nv_dot2_f32_bf16 v17, v{b+i}, v{b+i}, v17\nv_dot2_f32_bf16 v18, v{b+i+1}, s73, v18\nv_dot2_f32_bf16 v19, v{b+i+1}, v{b+i+1}, v19")
A("""s_nop 2
v_add_f32 v16, v16, v18
v_add_f32 v17, v17, v19
s_nop 1
v_add_f32_dpp v16, v16, v16 quad_perm:[1,0,3,2] row_mask:0xf bank_mask:0xf
v_add_f32_dpp v17, v17, v17 quad_perm:[1,0,3,2] row_mask:0xf bank_mask:0xf
s_nop 1
v_add_f32_dpp v16, v16, v16 quad_perm:[2,3,0,1] row_mask:0xf bank_mask:0xf
v_add_f32_dpp v17, v17, v17 quad_perm:[2,3,0,1] row_mask:0xf bank_mask:0xf
s_nop 1
v_add_f32_dpp v16, v16, v16 row_half_mirror row_mask:0xf bank_mask:0xf
v_add_f32_dpp v17, v17, v17 row_half_mirror row_mask:0xf bank_mask:0xf
s_mov_b32 s66, 0x3b124925
v_mul_f32 v16, s66, v16
v_mul_f32 v17, s66, v17
v_fma_f32 v17, -v16, v16, v17
v_add_f32 v17, 0x3727c5ac, v17
v_rsq_f32 v17, v17
v_lshlrev_b32 v120, 2, v120
v_cmp_eq_u32 vcc, 0, v122
v_mul_f32 v18, -v16, v17
v_add_u32 v121, 8192, v120
s_and_saveexec_b64 s[64:65], vcc
global_store_dword v120, v17, s[58:59] sc1
global_store_dword v121, v18, s[58:59] sc1
s_mov_b64 exec, s[64:65]""")
A(f"{lns}:\ns_waitcnt vmcnt(0)")
lds_count_signal(4, 3, f"s_add_u32 s66, s36, {CL_AUX}")
lg = A.label("gate")
A(f"""{lg}:
ds_read_b64 v[12:13], v101
s_waitcnt lgkmcnt(0)
v_add_u32 v12, v12, v13
s_nop 0
v_readfirstlane_b32 s66, v12
s_nop 0
s_cmp_lt_u32 s66, 6
s_cbranch_scc1 {lg}
s_sub_u32 s66, s3, 2
s_mul_i32 s66, s66, 56
s_mul_i32 s67, s66, 14336
s_lshl_b32 s66, s66, 10
s_add_u32 m0, s66, {L_W1}
s_mov_b32 s69, 14""")
lp = A.label("w1l")
A(f"{lp}:")
for j in range(4):
    if E("NOW1", 0): continue
    A(f"s_nop 0\nbuffer_load_dwordx4 v11, s[44:47], s67 offen lds\ns_add_u32 m0, m0, 1024\ns_add_u32 s67, s67, 14336")
A(f"""s_sub_u32 s69, s69, 1
s_cmp_lg_u32 s69, 0
s_cbranch_scc1 {lp}""")
stamp(24, 3)
if E("FLOODWAIT", 0):
    A("s_waitcnt vmcnt(0)")
    stamp(25, 3)
A(f"{laddr}:")
XV, STV = 170, 178
A(f"""s_lshl_b32 s66, s2, 2
s_load_dword s74, s[18:19], s66
v_and_b32 v194, 15, v1
v_lshrrev_b32 v195, 4, v1
v_lshlrev_b32 v196, 4, v194
v_lshl_add_u32 v196, v195, 2, v196
s_lshl_b32 s66, s3, 9
v_add_u32 v196, s66, v196
v_lshlrev_b32 v197, 2, v196
v_mov_b32 v198, v197
s_lshl_b32 s66, s2, 13
v_add_u32 v197, s66, v197
s_lshr_b32 s66, s3, 1
s_and_b32 s67, s3, 1
s_mul_i32 s68, s66, 8320
s_lshl_b32 s69, s67, 8
s_sub_u32 s68, s68, s69
s_add_u32 s68, s68, {L_KA - 32}
v_add_u32 v199, 1, v194
v_lshrrev_b32 v199, 1, v199
v_lshl_add_u32 v199, v195, 2, v199
v_lshlrev_b32 v199, 2, v199
v_and_b32 v200, 1, v194
v_cmp_eq_u32 vcc, 0, v200
v_mov_b32 v201, 4160
v_add_u32 v199, s68, v199
v_cndmask_b32 v201, 0, v201, vcc
v_add_u32 v199, v199, v201
v_add_u32 v200, 1024, v199
v_add_u32 v201, 2048, v199
v_add_u32 v202, 3072, v199
s_mul_i32 s68, s66, 4608
s_sub_u32 s68, s68, s69
s_add_u32 s68, s68, {L_UR + 736}
v_lshlrev_b32 v203, 5, v194
v_sub_u32 v203, s68, v203
v_lshl_add_u32 v203, v195, 4, v203
s_cmp_eq_u32 s67, 0
s_cselect_b32 s68, 64, 0
v_lshl_add_u32 v204, v195, 3, v194
v_add_u32 v204, s68, v204
s_mov_b32 s75, 0xffff""")
for k in range(4):
    A(f"""v_cmp_le_u32 vcc, {15-2*k}, v204
    v_mov_b32 v205, s75
    s_nop 0
    v_cndmask_b32 v{206+k}, 0, v205, vcc
    v_cmp_le_u32 vcc, {14-2*k}, v204
    v_mov_b32 v205, s72
    s_nop 0
    v_cndmask_b32 v205, 0, v205, vcc
    v_or_b32 v{206+k}, v{206+k}, v205""")
A(f"""v_lshlrev_b32 v211, 4, v1
s_lshl_b32 s66, s3, 13
v_add_u32 v212, s66, v211
v_add_u32 v212, {L_X}, v212
s_lshl_b32 s66, s3, 11
v_add_u32 v213, s66, v211
v_add_u32 v213, {L_X}, v213
s_lshl_b32 s66, s3, 10
s_sub_u32 s66, {L_UR + 4088 - 512}, s66
v_lshlrev_b32 v210, 5, v194
v_lshl_add_u32 v210, v195, 3, v210
v_sub_u32 v210, s66, v210
v_and_b32 v214, 7, v1
v_add_u32 v214, {CL_AUX}, v214
v_lshlrev_b32 v214, 7, v214
s_mul_i32 s66, s41, {2*112*1024}
s_mul_i32 s67, s3, {28*1024}
s_add_u32 s81, s66, s67
s_and_b32 s67, s3, 1
s_mul_i32 s67, s67, {112*1024}
s_add_u32 s95, s81, {112*1024}
s_sub_u32 s95, s95, s67
s_add_u32 s81, s81, s67""")
srd(84, 62, F*D*2)
ACC = 138
for j in range(32): A(f"v_mov_b32 v{ACC+j}, 0")
lnw0 = A.label("w1n0")
A(f"s_cmp_lg_u32 s3, 0\ns_cbranch_scc1 {lnw0}")
A(f"s_lshl_b32 s66, s42, 7\nv_mov_b32 v16, s66")
emit_poll("v16", "32")
stamp(3)
A(f"""v_lshlrev_b32 v10, 4, v1
s_lshl_b32 s66, s2, 13
v_add_u32 v10, s66, v10
s_mov_b32 m0, {L_UR}""")
for c in range(2):
    for j in range(4):
        A(f"s_nop 0\nglobal_load_lds_dwordx4 v10, s[52:53] sc1\nv_add_u32 v10, 1024, v10\ns_add_u32 m0, m0, {1024 if j < 3 else 4608-3072}")
A(f"""s_waitcnt vmcnt(0) lgkmcnt(0)
s_branch {ljoin}
{lnw0}:
s_waitcnt lgkmcnt(0)
s_cmp_eq_u32 s3, 1
s_cbranch_scc1 {ljoin}
s_waitcnt vmcnt({0 if E("NOW1", 0) else 56}) lgkmcnt(0)
{ljoin}:
s_barrier""")
stamp(4)
rstamp(33)

AB = [10, 42]; UB = [74, 106]
def conv_loads(s, buf):
    L = []
    for m in range(8):
        L.append(f"ds_read_b128 v[{UB[buf]+4*m}:{UB[buf]+4*m+3}], v203 offset:{64*(59-8*m-s)}")
    for n in range(8):
        base = 199 + (n >> 1)
        o = (n & 1)*128 + 16*(7-s)
        L.append(f"ds_read2_b32 v[{AB[buf]+4*n}:{AB[buf]+4*n+1}], v{base} offset0:{o} offset1:{o+1}")
        L.append(f"ds_read2_b32 v[{AB[buf]+4*n+2}:{AB[buf]+4*n+3}], v{base} offset0:{o+2} offset1:{o+3}")
    return L
def w2f_load(dd, kk):
    L = []
    if kk % 4 == 0:
        L += [f"s_add_u32 s82, {'s81' if dd == 0 else 's95'}, {4096*(kk>>2)}"]
    a = 4*(dd*28 + kk)
    L += [f"buffer_load_dwordx4 a[{a}:{a+3}], v211, s[84:87], s82 offen offset:{1024*(kk&3)} sc1"]
    return L
L0 = conv_loads(0, 0)
L0 = [L0[0]] + L0[8:] + L0[1:8]
for l in L0: A(l)
A(f"""global_load_dword v215, v214, s[34:35] sc1""")
stamp(19)
nw = 0
npf = 0
for s in range(4):
    buf = s & 1
    nxt = conv_loads(s+1, buf ^ 1) if s < 3 else []
    if s == 3:
        for k in range(4): A(f"v_and_b32 v{AB[buf]+k}, v{206+k}, v{AB[buf]+k}")
        A("s_nop 1")
    if s == E('AUXS', 1):
        lok = A.label("auxok"); lp = A.label("auxp")
        A(f"""s_cmp_lg_u32 s3, 0
        s_cbranch_scc1 {lok}
        s_waitcnt vmcnt(0)
        v_cmp_ne_u32 vcc, 28, v215
        s_cbranch_vccz {lok}""")
        emit_poll("v214", "28")
        A(f"""{lok}:
        s_barrier
        v_add_u32 v216, 8192, v198
        global_load_dwordx4 v[{XV}:{XV+3}], v197, s[54:55] sc1
        global_load_dwordx4 v[{XV+4}:{XV+7}], v197, s[54:55] offset:1024 sc1
        global_load_dwordx4 v[{STV}:{STV+3}], v198, s[58:59] sc1
        global_load_dwordx4 v[{STV+4}:{STV+7}], v216, s[58:59] sc1
        global_load_dwordx4 v[{STV+8}:{STV+11}], v198, s[58:59] offset:1024 sc1
        global_load_dwordx4 v[{STV+12}:{STV+15}], v216, s[58:59] offset:1024 sc1""")
    pairs = [(m, n) for m in range(8) for n in range(8 - m)]
    for idx, (m, n) in enumerate(pairs):
        j = m + n
        if s == 0 and m == 0:
            A(f"s_waitcnt lgkmcnt({min(15, 24 - 3 - 2*n)})")
        if s == 0 and n == 0 and 1 <= m <= 2:
            A(f"s_waitcnt lgkmcnt({(7 - m) if m == 1 else 0})")
        A(f"v_mfma_f32_16x16x32_bf16 v[{ACC+4*j}:{ACC+4*j+3}], v[{AB[buf]+4*n}:{AB[buf]+4*n+3}], v[{UB[buf]+4*m}:{UB[buf]+4*m+3}], v[{ACC+4*j}:{ACC+4*j+3}]")
        if s == 0:
            if idx >= 15:
                k0 = (idx - 15) * 24 // 21; k1 = (idx - 14) * 24 // 21
                for q in nxt[k0:k1]: A(q)
        elif idx < len(nxt): A(nxt[idx])
        if s >= E('AUXS', 1) and idx % (4 if E('AUXS', 1) == 1 else 2) == 1 and nw < 28 and not E("NOW2A", 0):
            for l in w2f_load(0, nw): A(l)
            nw += 1

    if s < 3: A("s_waitcnt lgkmcnt(0)")
while nw < 28 and not E("NOW2A", 0):
    for l in w2f_load(0, nw): A(l)
    nw += 1
stamp(5)
A("s_barrier")
for j in range(8):
    A(f"ds_write_b128 v212, v[{ACC+4*j}:{ACC+4*j+3}] offset:{1024*j}")
A("s_waitcnt lgkmcnt(0)\ns_barrier")
PB = 10
for jj in range(2):
    for w_ in range(4):
        A(f"ds_read_b128 v[{PB+16*jj+4*w_}:{PB+16*jj+4*w_+3}], v213 offset:{8192*w_+1024*jj}")
for jj in range(2):
    for c in range(2):
        A(f"ds_read_b64 v[{42+4*jj+2*c}:{43+4*jj+2*c}], v210 offset:{(512 if jj == 0 else 0) + 4608*c}")
A(f"""s_and_b32 s75, s74, s72
s_lshl_b32 s74, s74, 16
s_waitcnt vmcnt({0 if E("NOW2A", 0) else 28})""")
P2 = lambda r: f"v[{r}:{r+1}]"
for jj in range(2):
    P = PB + 16*jj
    X = XV + 4*jj; SA = STV + 8*jj; SB = SA + 4
    t = 50
    for c in range(2):
        q = t + 8*c
        for i in range(4):
            A(f"v_lshlrev_b32 v{q+i}, 16, v{X+i}" if c == 0 else f"v_and_b32 v{q+i}, s72, v{X+i}")
        for i in (0, 2):
            A(f"v_pk_fma_f32 {P2(q+4+i)}, {P2(q+i)}, {P2(SA+i)}, {P2(SB+i)}")
    A(f"s_waitcnt lgkmcnt({8 if jj == 0 else 0})")
    if jj == 0: A("s_waitcnt lgkmcnt(2)")
    for i in (0, 2):
        A(f"v_pk_add_f32 {P2(P+i)}, {P2(P+i)}, {P2(P+4+i)}\nv_pk_add_f32 {P2(P+8+i)}, {P2(P+8+i)}, {P2(P+12+i)}")
    for c in range(2):
        U = 42 + 4*jj + 2*c
        Y = P + 8*c
        u = 66 + 4*c
        A(f"v_and_b32 v{u}, s72, v{U+1}\nv_lshlrev_b32 v{u+1}, 16, v{U+1}\nv_and_b32 v{u+2}, s72, v{U}\nv_lshlrev_b32 v{u+3}, 16, v{U}")
        sel = "op_sel:[0,0,0] op_sel_hi:[1,0,1]" if c == 0 else "op_sel:[0,1,0] op_sel_hi:[1,1,1]"
        for i in (0, 2):
            A(f"v_pk_fma_f32 {P2(Y+i)}, {P2(u+i)}, s[74:75], {P2(Y+i)} {sel}")
        q = t + 8*c
        for i in (0, 2):
            A(f"v_pk_fma_f32 {P2(Y+i)}, {P2(q+4+i)}, {P2(Y+i)}, {P2(q+i)}")
    for i in range(4):
        A(f"v_cvt_pk_bf16_f32 v{74+4*jj+i}, v{P+i}, v{P+8+i}")
    A(f"global_store_dwordx4 v197, v[{74+4*jj}:{77+4*jj}], s[56:57] offset:{1024*jj} sc1")
stamp(6)
A("s_waitcnt vmcnt(0)\ns_barrier")
lw = A.label("s2w0")
wave0_only(lw)
A(f"s_add_u32 s66, s36, {CL_S2}")
emit_signal("s66")
A(f"{lw}:")
stamp(7)
rstamp(34)

A(f"""v_lshrrev_b32 v10, 5, v1
v_bfe_u32 v11, v1, 2, 2
v_lshl_add_u32 v10, v10, 3, v11
v_lshlrev_b32 v10, 8, v10
v_bfe_u32 v12, v1, 4, 1
v_bfe_u32 v13, v1, 1, 1
v_lshl_add_u32 v12, v12, 1, v13
v_lshlrev_b32 v12, 4, v12
v_add_u32 v10, v10, v12
v_and_b32 v12, 1, v1
v_lshl_add_u32 v10, v12, 3, v10
s_lshl_b32 s66, s3, 12
v_add_u32 v10, s66, v10
v_lshlrev_b32 v11, 6, v11""")
for ft in range(4):
    A(f"v_xor_b32 v{2+ft}, {64*ft}, v11\nv_add_u32 v{2+ft}, v{2+ft}, v10\nv_add_u32 v{6+ft}, 65536, v{2+ft}")
A(f"""v_lshlrev_b32 v12, 4, v1
v_add_u32 v12, s66, v12
v_add_u32 v13, 65536, v12
s_lshl_b32 s66, s39, 7
s_lshl_b32 s67, s3, 5
s_add_u32 s66, s66, s67
v_and_b32 v14, 31, v1
v_add_u32 v14, s66, v14
v_lshlrev_b32 v14, 1, v14
global_load_ushort v15, v14, s[24:25]""")
CB = 16
def cv_reads(i):
    L = []
    for ft in range(4):
        base, off = (2+ft, 16384*i) if i < 4 else (6+ft, 16384*(i-4))
        r = CB + 16*i + 4*ft
        L += [f"ds_read_b64_tr_b16 v[{r}:{r+1}], v{base} offset:{off}", f"ds_read_b64_tr_b16 v[{r+2}:{r+3}], v{base} offset:{off+1024}"]
    return L
def cv_writes(i):
    base, off = (12, 16384*i) if i < 4 else (13, 16384*(i-4))
    return [f"ds_write_b128 v{base}, v[{CB+16*i+4*ft}:{CB+16*i+4*ft+3}] offset:{off+1024*ft}" for ft in range(4)]
for l in cv_reads(0): A(l)
for i in range(7):
    if i < 6:
        for l in cv_reads(i+1): A(l)
        A("s_waitcnt lgkmcnt(8)")
    else:
        A("s_waitcnt lgkmcnt(0)")
    for l in cv_writes(i): A(l)
    for kk in range(4*i, 4*i+4):
        for l in w2f_load(1, kk): A(l)
A("s_waitcnt lgkmcnt(0)\ns_barrier")
A(f"""s_lshl_b32 s66, s3, 10
v_lshl_add_u32 v6, v1, 4, s66
v_add_u32 v7, 57344, v6""")
for half in range(2):
    base = "v6" if half == 0 else "v7"
    for k in range(14):
        A(f"ds_read_b128 v[{64+56*half+4*k}:{67+56*half+4*k}], {base} offset:{4096*k}")
    if half == 1: pass
for half in range(2):
    for k in range(14):
        idx = 14*half + k
        A(f"s_waitcnt lgkmcnt({min(15, 27-idx)})")
        for r in range(4):
            reg = 64+56*half+4*k+r
            if idx == 0:
                A(f"v_dot2_f32_bf16 v{42+r}, v{reg}, s73, 0")
            else:
                A(f"v_dot2_f32_bf16 v{42+r}, v{reg}, s73, v{42+r}")
A(f"""s_nop 2
v_add_f32 v42, v42, v43
v_add_f32 v44, v44, v45
s_nop 0
v_add_f32 v42, v42, v44
v_mov_b32 v43, v42
s_nop 1
v_permlane32_swap_b32 v42, v43
s_nop 1
v_add_f32 v42, v42, v43
v_cvt_pk_bf16_f32 v43, -v42, -v42
v_and_b32 v44, s72, v43
v_add_f32 v44, v42, v44
v_cvt_pk_bf16_f32 v44, -v44, -v44
s_waitcnt vmcnt(28)
v_perm_b32 v46, v44, v43, s70
v_perm_b32 v47, v15, v43, s70
v_mov_b32 v48, v15
v_mov_b32 v49, 0
v_cmp_gt_u32 vcc, 32, v1
v_lshlrev_b32 v50, 4, v1
s_lshl_b32 s66, s3, 10
s_add_u32 s66, s66, {L_AUG}
v_cndmask_b32 v46, 0, v46, vcc
v_cndmask_b32 v47, 0, v47, vcc
v_cndmask_b32 v48, 0, v48, vcc
v_add_u32 v50, s66, v50
ds_write_b128 v50, v[46:49]
v_lshrrev_b32 v10, 5, v1
v_lshlrev_b32 v2, 13, v10
v_and_b32 v11, 31, v1
v_lshl_add_u32 v2, v11, 4, v2
s_lshl_b32 s66, s38, 9
s_lshl_b32 s67, s3, 15
s_add_u32 s66, s66, s67
v_add_u32 v2, s66, v2
v_add_u32 v3, 15360, v2
v_lshlrev_b32 v4, 11, v10
v_lshl_add_u32 v4, v11, 2, v4
s_lshl_b32 s66, s3, 7
s_add_u32 s66, s66, {L_X}
v_add_u32 v4, s66, v4""")
srd(48, 56, S*D*2)
A(f"""v_lshlrev_b32 v6, 4, v1
v_add_u32 v7, 57344, v6
v_add_u32 v5, {L_AUG}, v6
s_mov_b32 s77, {'s39' if not E('NOROT2',0) else '0'}
s_lshl_b32 s78, s3, 11
s_add_u32 s78, s78, {L_X}
s_waitcnt lgkmcnt(0)""")
stamp(8)
lw = A.label("s2p")
wave0_only(lw)
A(f"v_and_b32 v16, 7, v1\nv_add_u32 v16, {CL_S2}, v16\nv_lshlrev_b32 v16, 7, v16\nv_mov_b32 v17, 28")
emit_poll("v16", "v17")
A(f"{lw}:\ns_barrier")
stamp(9)
rstamp(35)

BF = 16
TL = [128, 144, 160, 176]
AF = 192
NSLOT = 6; PDC = E('PDC', 5)
def dmaH(c, part=None):
    L = [[f"s_add_u32 m0, s78, {8192*(c % NSLOT)}", f"s_mov_b32 s76, {c << 17}", "buffer_load_dwordx4 v2, s[48:51], s76 offen sc1 lds"],
         ["buffer_load_dwordx4 v3, s[48:51], s76 offen offset:1024 sc1 lds"]]
    for p in ((0, 1) if part is None else (part,)):
        for x in L[p]: A(x)
for c in range(PDC): dmaH(c)
for t in range(4):
    A(f"ds_read_b128 a[{224+4*t}:{227+4*t}], v5 offset:{1024*t}")
def afrag_addr(ks, ft):
    return ("v6", 4096*ks + 1024*ft) if ks < 14 else ("v7", 4096*(ks-14) + 1024*ft)
def ldA(ks, ft):
    b, o = afrag_addr(ks, ft)
    r = AF + 16*(ks & 1) + 4*ft
    A(f"ds_read_b128 v[{r}:{r+3}], {b} offset:{o}")
def M(ks, t):
    b = BF + 4*ks
    r = AF + 16*(ks & 1) + 4*t
    cc = "0" if ks == 0 else f"v[{TL[t]}:{TL[t]+15}]"
    A(f"v_mfma_f32_32x32x16_bf16 v[{TL[t]}:{TL[t]+15}], v[{r}:{r+3}], v[{b}:{b+3}], {cc}")
def rdB(c, ksl):
    so = 32*(c % NSLOT)
    b = BF + 4*(2*c + ksl)
    A(f"ds_read2st64_b32 v[{b}:{b+1}], v4 offset0:{so+16*ksl} offset1:{so+16*ksl+2}")
    A(f"ds_read2st64_b32 v[{b+2}:{b+3}], v4 offset0:{so+16*ksl+4} offset1:{so+16*ksl+6}")
if SENT:
    A(f"""s_lshl_b32 s66, s38, 2
    s_add_u32 s66, s66, s3
    s_mul_i32 s66, s66, 56
    s_lshl_b32 s67, s39, 2
    s_add_u32 s66, s66, s67
    s_lshl_b32 s66, s66, 11
    v_lshl_add_u32 v240, v1, 4, s66
    v_add_u32 v241, 4096, v240
    v_mov_b32 v236, -1
    v_mov_b32 v237, -1
    v_mov_b32 v238, -1
    v_mov_b32 v239, -1""")
npf = 0
def prefill():
    global npf
    if SENT and npf < 8:
        A(f"global_store_dwordx4 v{240 + (npf >> 2)}, v[236:239], s[60:61] offset:{1024*(npf & 3)} sc1")
        npf += 1
for t in range(4): ldA(0, t)
for c in range(15):
    if c < 14:
        A(f"s_waitcnt vmcnt({2*(min(c+PDC-1, 13) - c) + npf}) lgkmcnt(0)")
    else:
        A("s_waitcnt lgkmcnt(0)")
    if c == 0:
        A("s_barrier")
        stamp(20)
        rdB(0, 0); rdB(0, 1); dmaH(PDC)
        continue
    k0, k1, k2 = 2*c-2, 2*c-1, 2*c
    M(k0, 0); ldA(k1, 0); ldA(k1, 1)
    M(k0, 1); ldA(k1, 2); ldA(k1, 3)
    if c < 14: A("s_barrier")
    if c in (4, 8, 12): stamp(20 + c//4)
    M(k0, 2)
    if c < 14: rdB(c, 0)
    M(k0, 3)
    if c < 14: rdB(c, 1)
    A(f"s_waitcnt lgkmcnt({4 if c < 14 else 0})")
    M(k1, 0)
    if c < 14: ldA(k2, 0); ldA(k2, 1)
    M(k1, 1)
    if c < 14: ldA(k2, 2); ldA(k2, 3)
    M(k1, 2)
    if c + PDC <= 13: dmaH(c + PDC, 0)
    else: prefill()
    M(k1, 3)
    if c + PDC <= 13: dmaH(c + PDC, 1)
    else: prefill()
stamp(10)
ST0 = 232
for ks in range(28):
    b = BF + 4*ks
    for r in range(4):
        if E("NODOT", 0): continue
        if ks == 0 and r < 2:
            A(f"v_dot2_f32_bf16 v{ST0+(r&1)}, v{b+r}, s73, 0")
            A(f"v_dot2_f32_bf16 v{ST0+2+(r&1)}, v{b+r}, v{b+r}, 0")
        else:
            A(f"v_dot2_f32_bf16 v{ST0+(r&1)}, v{b+r}, s73, v{ST0+(r&1)}")
            A(f"v_dot2_f32_bf16 v{ST0+2+(r&1)}, v{b+r}, v{b+r}, v{ST0+2+(r&1)}")
if SENT:
    assert npf == 8, npf
    A("s_waitcnt vmcnt(0)\ns_barrier")
    lw = A.label("s3w0")
    wave0_only(lw)
    A(f"s_add_u32 s66, s38, {CL_S3}")
    emit_signal("s66")
    A(f"{lw}:")
A(f"""s_nop 1
v_add_f32 v232, v232, v233
v_add_f32 v234, v234, v235
v_mov_b32 v233, v232
v_mov_b32 v235, v234
v_lshlrev_b32 v9, 4, v1
s_nop 0
v_permlane32_swap_b32 v232, v233
v_permlane32_swap_b32 v234, v235
s_mov_b32 s66, 0x3b124925
s_nop 0
v_add_f32 v232, v232, v233
v_add_f32 v234, v234, v235
v_mul_f32 v232, s66, v232
v_mul_f32 v234, s66, v234
v_fma_f32 v234, -v232, v232, v234
v_add_f32 v234, 0x3727c5ac, v234
v_rsq_f32 v235, v234
v_sqrt_f32 v230, v234
s_mov_b32 s66, 0xc0135761
s_mov_b32 s67, 0xbdd2d3e8
v_mul_f32 v229, s66, v235
v_mul_f32 v228, v235, v235
v_mul_f32 v228, v228, v235
v_mul_f32 v228, s67, v228
v_cvt_pk_bf16_f32 v233, v232, v232
v_and_b32 v231, s72, v233
v_sub_f32 v231, v232, v231
v_cvt_pk_bf16_f32 v236, v230, v230
v_and_b32 v237, s72, v236
v_sub_f32 v237, v230, v237
v_and_b32 v225, s72, v236
v_cvt_pk_bf16_f32 v231, v231, v231
v_and_b32 v231, 0xffff, v231
v_or_b32 v225, v225, v231
v_cvt_pk_bf16_f32 v226, v237, 0
v_mov_b32 v224, v233
v_mov_b32 v227, 0
v_cmp_gt_u32 vcc, 32, v1
s_lshl_b32 s66, s38, 2
s_add_u32 s66, s66, s3
v_cndmask_b32 v224, 0, v224, vcc
v_cndmask_b32 v225, 0, v225, vcc
v_cndmask_b32 v226, 0, v226, vcc
s_mul_i32 s66, s66, 56
s_lshl_b32 s67, s39, 2""")
for t in range(4):
    A(f"v_mfma_f32_32x32x16_bf16 v[{TL[t]}:{TL[t]+15}], a[{224+4*t}:{227+4*t}], v[224:227], v[{TL[t]}:{TL[t]+15}]")
A(f"""s_add_u32 s66, s66, s67
s_lshl_b32 s66, s66, 11
v_lshl_add_u32 v8, v1, 4, s66
v_add_u32 v11, 4096, v8""")
GT = 236
def gelu_pk(tile, grp):
    L = []
    w = [TL[tile] + 8*grp + 2*e for e in range(4)]
    t = [GT + 2*e for e in range(4)]
    P = lambda r: f"v[{r}:{r+1}]"
    L += [f"v_pk_mul_f32 {P(t[e])}, {P(w[e])}, {P(w[e])}" for e in range(4)]
    L += [f"v_pk_fma_f32 {P(t[e])}, {P(t[e])}, v[228:229], v[228:229] op_sel:[0,0,1] op_sel_hi:[1,0,1]" for e in range(4)]
    L += [f"v_pk_mul_f32 {P(t[e])}, {P(t[e])}, {P(w[e])}" for e in range(4)]
    L += [f"v_exp_f32 v{t[e]+k}, v{t[e]+k}" for e in range(4) for k in range(2)]
    L += [f"v_pk_fma_f32 {P(t[e])}, {P(t[e])}, v[230:231], v[230:231] op_sel_hi:[1,0,0]" for e in range(4)]
    L += [f"v_rcp_f32 v{t[e]+k}, v{t[e]+k}" for e in range(4) for k in range(2)]
    L += [f"v_pk_mul_f32 {P(w[e])}, {P(w[e])}, {P(t[e])}" for e in range(4)]
    return L
def cvts(tile):
    o = AF + 8*(tile & 1)
    return [f"v_cvt_pk_bf16_f32 v{o+k}, v{TL[tile]+2*k}, v{TL[tile]+2*k+1}" for k in range(8)]
def h_store(tile):
    o = AF + 8*(tile & 1)
    base, off = ("v8", 2048*tile) if tile < 2 else ("v11", 2048*(tile-2))
    return [f"global_store_dwordx4 {base}, v[{o}:{o+3}], s[60:61] offset:{off} sc1", f"global_store_dwordx4 {base}, v[{o+4}:{o+7}], s[60:61] offset:{off+1024} sc1"]
def w2f_loadB(kk):
    return [l.replace("v211", "v9") for l in w2f_load(1, kk)]
stamp(11)
A("s_nop 7")
for t in range(4):
    if SENT and t == 2:
        A(f"s_add_u32 s66, s80, {CL_S3}\ns_lshl_b32 s66, s66, 7\nv_mov_b32 v248, s66\nglobal_load_dword v249, v248, s[34:35] sc1")
    for grp in range(2):
        for x in gelu_pk(t, grp): A(x)
    for x in cvts(t) + h_store(t): A(x)
stamp(12)
ACC3 = 32; RING = 96; NS = 16
def p3_haddr():
    A(f"""s_lshl_b32 s66, s40, 1
    s_mul_i32 s66, s66, {112*1024}
    s_mul_i32 s67, s3, {28*1024}
    s_add_u32 s81, s66, s67
    s_lshr_b32 s67, s3, 1
    s_mul_i32 s67, s67, {112*1024}
    v_lshlrev_b32 v4, 4, v1
    v_add_u32 v2, s67, v4
    s_sub_u32 s67, {112*1024}, s67
    v_add_u32 v3, s67, v4""")
    srd(44, 60, S*F*2)
def p3_resid():
    A(f"""s_lshr_b32 s66, s3, 1
    s_and_b32 s67, s3, 1
    s_lshl_b32 s68, s40, 1
    s_add_u32 s68, s68, s66
    s_lshl_b32 s68, s68, 7
    s_lshl_b32 s69, s41, 1
    s_add_u32 s69, s69, s67
    s_lshl_b32 s76, s69, 17
    s_add_u32 s68, s68, s76
    v_lshrrev_b32 v12, 5, v1
    v_lshlrev_b32 v13, 14, v12
    v_and_b32 v14, 31, v1
    v_lshl_add_u32 v13, v14, 2, v13
    v_add_u32 v13, s68, v13""")
    for j in range(4):
        A(f"buffer_load_dword v{16+2*j}, v13, s[48:51], 0 offen sc1")
        A(f"v_add_u32 v14, 8192, v13")
        A(f"buffer_load_dword v{17+2*j}, v14, s[48:51], 0 offen sc1")
        if j < 3: A("v_add_u32 v13, 32768, v13")
    A(f"""s_lshl_b32 s69, s69, 6
    v_lshl_add_u32 v12, v12, 3, s69""")
    for j in range(4):
        A(f"global_load_dwordx2 v[{24+2*j}:{25+2*j}], v12, s[28:29] offset:{16*j}")
def p3_addrs():
    for sl in (1, 2, 3):
        A(f"""s_xor_b32 s66, s3, {sl}
        s_lshl_b32 s67, s66, 2
        s_add_u32 s67, s67, s3
        s_lshl_b32 s67, s67, 12
        v_add_u32 v{224+sl}, s67, v4
        s_lshl_b32 s67, s3, 2
        s_add_u32 s67, s67, s66
        s_lshl_b32 s67, s67, 12
        v_add_u32 v{228+sl}, s67, v4""")
    A(f"""s_lshr_b32 s66, s3, 1
    s_and_b32 s67, s3, 1
    s_lshl_b32 s68, s40, 1
    s_add_u32 s68, s68, s66
    s_lshl_b32 s68, s68, 5
    v_and_b32 v6, 31, v1
    v_add_u32 v6, s68, v6
    v_mul_u32_u24 v6, 896, v6
    s_lshl_b32 s69, s41, 1
    s_add_u32 s69, s69, s67
    s_lshl_b32 s69, s69, 6
    v_lshrrev_b32 v7, 5, v1
    v_lshl_add_u32 v6, v7, 4, v6
    v_add_u32 v6, s69, v6""")
def ldH(kk):
    slot = kk % NS
    if kk % 4 == 0:
        A(f"s_add_u32 s82, s81, {4096*(kk>>2)}")
    for tj in range(2):
        r = RING + 8*slot + 4*tj
        if E("NOLD3", 0): continue
        A(f"buffer_load_dwordx4 v[{r}:{r+3}], v{2+tj}, s[44:47], s82 offen offset:{1024*(kk&3)} sc1")
slow = []
if not SENT:
    A("s_waitcnt vmcnt(0)\ns_barrier")
    lw = A.label("s3w0")
    wave0_only(lw)
    A(f"s_add_u32 s66, s38, {CL_S3}")
    emit_signal("s66")
    A(f"{lw}:")
    p3_resid()
    stamp(13); rstamp(36)
    p3_haddr(); p3_addrs()
    lw = A.label("s3p")
    wave0_only(lw)
    A(f"s_add_u32 s66, s80, {CL_S3}\ns_lshl_b32 s66, s66, 7\nv_mov_b32 v10, s66")
    emit_poll("v10", "14")
    A(f"{lw}:\ns_barrier")
    stamp(14); rstamp(37)
    for kk in range(PD3): ldH(kk)
else:
    p3_haddr()
    lok = A.label("pfok")
    A(f"s_waitcnt vmcnt(4)\nv_cmp_ne_u32 vcc, 14, v249\ns_cbranch_vccz {lok}")
    emit_poll("v248", "14")
    A(f"{lok}:")
    stamp(13); rstamp(36)
    regs = [RING + 8*(kk % NS) + 4*tj for kk in range(PD3) for tj in range(2)]
    def chk0():
        A(f"v_max_u32 v10, v{regs[0]}, v{regs[1]}")
        for i in range(2, len(regs), 2):
            A(f"v_max3_u32 v10, v10, v{regs[i]}, v{regs[i+1]}")
        A("v_cmp_eq_u32 vcc, -1, v10")
    if E("RESFIRST", 1):
        p3_resid(); p3_addrs()
        for kk in range(PD3): ldH(kk)
    else:
        for kk in range(PD3): ldH(kk)
        p3_addrs(); p3_resid()
    stamp(14); rstamp(37)
    lp0 = A.label("h0"); ld0 = A.label("h0d")
    A(f"s_waitcnt vmcnt({0 if E('RESFIRST', 1) else 12})")
    chk0()
    A(f"s_cbranch_vccz {ld0}\ns_mov_b32 s68, {SPIN}\n{lp0}:")
    for kk in range(PD3): ldH(kk)
    A("s_waitcnt vmcnt(0)")
    chk0()
    A(f"""s_cbranch_vccz {ld0}
    s_sub_u32 s68, s68, 1
    s_cmp_lg_u32 s68, 0
    s_cbranch_scc1 {lp0}
    {ld0}:""")
    stamp(18)
for kk in range(28):
    A(f"s_waitcnt vmcnt({2*(min(kk+PD3-1, 27) - kk)})")
    slot = kk % NS
    if SENT and kk >= PD3:
        r0 = RING + 8*slot
        A(f"""v_max_u32 v10, v{r0}, v{r0+4}
        v_cmp_eq_u32 vcc, -1, v10
        s_cbranch_vccnz L_SLOW_{kk}
        L_BACK_{kk}:""")
        slow.append(kk)
    ms = []
    for tj in range(2):
        for dd in range(2):
            T_ = ACC3 + 16*(2*tj + dd)
            a = 4*(dd*28 + kk)
            r = RING + 8*slot + 4*tj
            c = "0" if kk == 0 else f"v[{T_}:{T_+15}]"
            ms.append(f"v_mfma_f32_32x32x16_bf16 v[{T_}:{T_+15}], a[{a}:{a+3}], v[{r}:{r+3}], {c}")
    A(ms[0]); A(ms[1])
    if kk + PD3 < 28: ldH(kk + PD3)
    A(ms[2]); A(ms[3])
    if SENT and kk == 2: A("s_waitcnt vmcnt(6)")
    if 2 <= kk < 10:
        p = kk - 2; j = p >> 1; c_ = p & 1; k = 4*j + 2*c_
        A(f"""v_lshlrev_b32 v{232+k}, 16, v{16+2*j+c_}
        v_and_b32 v{233+k}, s72, v{16+2*j+c_}
        v_lshlrev_b32 v8, 16, v{24+2*j+c_}
        v_and_b32 v9, s72, v{24+2*j+c_}
        v_add_f32 v{232+k}, v{232+k}, v8
        v_add_f32 v{233+k}, v{233+k}, v9""")
stamp(15)
A("s_nop 10")
for sl in (1, 2, 3):
    for q in range(4):
        r = ACC3 + 16*sl + 4*q
        A(f"ds_write_b128 v{224+sl}, v[{r}:{r+3}] offset:{1024*q}")
for k in range(0, 16, 2): A(f"v_pk_add_f32 {P2(ACC3+k)}, {P2(ACC3+k)}, {P2(232+k)}")
A("s_waitcnt lgkmcnt(0)\ns_barrier")
RB = 96
for sl in (1, 2, 3):
    for q in range(4):
        r = RB + 16*(sl-1) + 4*q
        A(f"ds_read_b128 v[{r}:{r+3}], v{228+sl} offset:{1024*q}")
for sl in (1, 2, 3):
    A(f"s_waitcnt lgkmcnt({4*(3-sl)})")
    for k in range(0, 16, 2): A(f"v_pk_add_f32 {P2(ACC3+k)}, {P2(ACC3+k)}, {P2(RB+16*(sl-1)+k)}")
for k in range(8): A(f"v_cvt_pk_bf16_f32 v{192+k}, v{ACC3+2*k}, v{ACC3+2*k+1}")
A("""s_nop 1
v_permlane32_swap_b32 v192, v194
v_permlane32_swap_b32 v193, v195
v_permlane32_swap_b32 v196, v198
v_permlane32_swap_b32 v197, v199
s_nop 1
""")
OF = "sc1" if E("OUTSC1", 0) else ("nt" if E("OUTNT", 0) else "")
A(f"""global_store_dwordx4 v6, v[192:195], s[30:31] {OF}
global_store_dwordx4 v6, v[196:199], s[30:31] offset:32 {OF}""")
stamp(16)
rstamp(38)
A("s_branch L_END")
for kk in slow:
    r0 = RING + 8*(kk % NS)
    A(f"""L_SLOW_{kk}:
    s_mov_b32 s68, {SPIN}
    s_add_u32 s83, s81, {4096*(kk>>2)}
    L_SLOWL_{kk}:
    buffer_load_dwordx4 v[{r0}:{r0+3}], v2, s[44:47], s83 offen offset:{1024*(kk&3)} sc1
    buffer_load_dwordx4 v[{r0+4}:{r0+7}], v3, s[44:47], s83 offen offset:{1024*(kk&3)} sc1
    s_waitcnt vmcnt(0)
    v_max_u32 v10, v{r0}, v{r0+4}
    v_cmp_eq_u32 vcc, -1, v10
    s_cbranch_vccz L_BACK_{kk}
    s_sub_u32 s68, s68, 1
    s_cmp_lg_u32 s68, 0
    s_cbranch_scc1 L_SLOWL_{kk}
    s_branch L_BACK_{kk}""")

A(f"""L_OTHER:
s_cmp_ge_u32 s2, {NWG}
s_cbranch_scc1 L_END
v_and_b32 v1, 63, v0
v_lshrrev_b32 v2, 6, v0
s_nop 0
v_readfirstlane_b32 s3, v2
s_waitcnt lgkmcnt(0)
s_cmp_lg_u32 s2, {NMAIN}
s_cbranch_scc1 L_PREF
v_mov_b32 v4, 0
v_mov_b32 v5, 0
v_mov_b32 v6, 0
v_mov_b32 v7, 0
v_lshlrev_b32 v2, 4, v0
global_store_dwordx4 v2, v[4:7], s[34:35] sc1
v_add_u32 v3, 4096, v2
global_store_dwordx4 v3, v[4:7], s[34:35] sc1
s_waitcnt vmcnt(0)
s_barrier
s_cmp_lg_u32 s3, 0
s_cbranch_scc1 L_END
v_mov_b32 v2, 0
v_mov_b32 v3, 1
s_mov_b64 exec, 1
global_store_dword v2, v3, s[32:33] sc1""")
A(f"""s_branch L_END
L_PREF:""")
A(f"""v_min_u32 v2, 8, v1
v_lshlrev_b32 v2, 21, v2
v_add_u32 v2, {0x100000}, v2
global_load_dword v8, v2, s[34:35]
v_mov_b32 v3, 0
global_load_dword v9, v3, s[30:31]
global_load_dword v10, v3, s[22:23]
global_load_dword v11, v3, s[26:27]
global_load_dword v12, v3, s[16:17]
global_load_dword v13, v3, s[24:25]
global_load_dword v14, v3, s[28:29]
global_load_dword v15, v3, s[18:19]
global_load_dword v16, v3, s[34:35]""")
if E("HW1", 0):
    A(f"""s_sub_u32 s66, s2, {NMAIN+1}
    s_mul_i32 s66, s66, {52*1024}
    s_lshl_b32 s67, s3, 10
    s_add_u32 s66, s66, s67
    v_lshl_add_u32 v2, v1, 4, s66""")
    srd(44, 22, D*F*2)
    A("s_mov_b32 s69, 0")
    for j in range(13):
        A(f"buffer_load_dwordx4 v[{20+4*j}:{23+4*j}], v2, s[44:47], s69 offen\ns_add_u32 s69, s69, 4096")
A("s_waitcnt vmcnt(0)")
A("""L_END:
s_endpgm
L_CODE_END:""")

errs = check_hazards(A.lines)
for e in errs: print("HAZARD:", e, file=sys.stderr)
hdr = open(f"cdna_kernels/{NAME}.s.ref").read().split(".amdgcn_target")[0]
hdr = "\n".join(l for l in hdr.splitlines() if not l.startswith("; @launch"))
out = [hdr.rstrip(), f"; @launch grid=({NWG},1,1) block=(256,1,1) lds={LDS_BYTES}",
 '.amdgcn_target "amdgcn-amd-amdhsa--gfx950"', ".text", f".globl {KN}", ".p2align 8", f".type {KN},@function", f"{KN}:",
 A.text(), '.section .rodata,"a"', ".p2align 6", f".amdhsa_kernel {KN}",
 "  .amdhsa_next_free_vgpr 512", "  .amdhsa_next_free_sgpr 100", "  .amdhsa_accum_offset 256", "  .amdhsa_group_segment_fixed_size 0",
 "  .amdhsa_kernarg_size 112", "  .amdhsa_user_sgpr_count 2", "  .amdhsa_user_sgpr_kernarg_segment_ptr 1", "  .amdhsa_system_sgpr_workgroup_id_x 1",
 "  .amdhsa_float_denorm_mode_32 3", ".end_amdhsa_kernel", ""]
dst = os.environ.get("OUT", f"cdna_kernels/{NAME}.s")
open(dst, "w").write("\n".join(out))
print("wrote", dst, "instructions:", sum(1 for l in A.lines if not l.endswith(':')), "hazards:", len(errs))
```

```python
import sys, os
sys.path.insert(0, os.path.dirname(os.path.abspath(__file__)))
from asmlib import *

NAME = "sequential_preLN__ssm_conv_h3__dense_activation_gelu__prompt"
E = lambda k, d: int(os.environ.get(k, str(d)))
STAMPS = E("STAMPS", 0)
SENT = E("SENT", 1)
PD2 = E("PD2", 11)
PD3 = E("PD3", 5)
W1THR = E("W1THR", 0)
NMAIN = 224
NHELP = E("NHELP", 8)
NWG = NMAIN + 1 + NHELP
S, D, F = 2048, 448, 1792
WS_STAMP = 0x80000
WS_UR = 0x100000
WS_X2 = 0x300000
WS_H2 = 0x500000
WS_ST = 0x700000
WS_W2F = 0x800000
WS_HF = 0xA00000
CL_S1 = 0; CL_AUX = 8; CL_S2 = 16; CL_S3 = 32
L_W1 = 0
L_X = 0x1C000
L_UT = L_X + 0x0000
L_XT = L_X + 0x2000
L_KA = L_X + 0x4000 + 64
L_UR = L_X + 0x8100
L_AUG = L_X + 0xA500
L_CNT = L_X + 0xB600
LDS_BYTES = 163840
SPIN = 2000000
KN = NAME + "_kernel"

A = Asm()

def stamp(i, wave=0):
    if not STAMPS: return
    l = A.label("st")
    A(f"""s_cmp_lg_u32 s3, {wave}
    s_cbranch_scc1 {l}
    s_memtime s[92:93]
    s_waitcnt lgkmcnt(0)
    s_lshl_b32 s94, s2, 8
    s_add_u32 s94, s94, {WS_STAMP + 4*i}
    v_mov_b32 v250, s94
    v_mov_b32 v251, s92
    s_mov_b64 s[90:91], exec
    s_mov_b64 exec, 1
    global_store_dword v250, v251, s[34:35]
    s_mov_b64 exec, s[90:91]
    {l}:""")

def rstamp(i, xcc=False):
    if not STAMPS: return
    l = A.label("rt")
    A(f"""s_cmp_lg_u32 s3, 0
    s_cbranch_scc1 {l}
    {"s_getreg_b32 s92, hwreg(HW_REG_XCC_ID)" if xcc else "s_memrealtime s[92:93]"}
    s_waitcnt lgkmcnt(0)
    s_lshl_b32 s94, s2, 8
    s_add_u32 s94, s94, {WS_STAMP + 4*i}
    v_mov_b32 v250, s94
    v_mov_b32 v251, s92
    s_mov_b64 s[90:91], exec
    s_mov_b64 exec, 1
    global_store_dword v250, v251, s[34:35]
    s_mov_b64 exec, s[90:91]
    {l}:""")

def wave0_only(label):
    A(f"s_cmp_lg_u32 s3, 0\ns_cbranch_scc1 {label}")

def emit_signal(line_sreg):
    A(f"""s_lshl_b32 s67, {line_sreg}, 7
    v_mov_b32 v245, s67
    v_mov_b32 v246, 1
    s_mov_b64 s[64:65], exec
    s_mov_b64 exec, 1
    global_atomic_add v245, v246, s[34:35] sc1
    s_mov_b64 exec, s[64:65]""")

def emit_poll(addr_v, target, base="s[34:35]", tmp="v247"):
    lp = A.label("poll"); done = A.label("polld")
    A(f"""s_mov_b32 s68, {SPIN}
    {lp}:
    global_load_dword {tmp}, {addr_v}, {base} sc1
    s_waitcnt vmcnt(0)
    v_cmp_ne_u32 vcc, {target}, {tmp}
    s_cbranch_vccz {done}
    {"s_sleep %d" % E("PSLEEP", 0) if E("PSLEEP", 0) else ""}
    s_sub_u32 s68, s68, 1
    s_cmp_lg_u32 s68, 0
    s_cbranch_scc1 {lp}
    {done}:""")

def ws_base(sreg, off):
    A(f"s_add_u32 s{sreg}, s34, {off}\ns_addc_u32 s{sreg+1}, s35, 0")

def srd(base, ptr, size):
    A(f"s_mov_b32 s{base}, s{ptr}\ns_mov_b32 s{base+1}, s{ptr+1}\ns_mov_b32 s{base+2}, {size}\ns_mov_b32 s{base+3}, 0x20000")

if STAMPS: A("s_memrealtime s[78:79]")
A(f"""s_load_dwordx16 s[8:23], s[0:1], 0""")
A("s_getpc_b64 s[88:89]\nL_PC:")
if E("PF0", 0):
    A(f"""v_lshlrev_b32 v6, 4, v0
    global_load_dwordx4 v[116:119], v6, s[88:89] offset:{E("PFOFF", 128)}""")
A(f"""s_load_dwordx8 s[24:31], s[0:1], 64
s_load_dwordx4 s[32:35], s[0:1], 96
s_cmp_ge_u32 s2, {NMAIN}
s_cbranch_scc1 L_OTHER
s_lshr_b32 s42, s2, 5
s_and_b32 s43, s2, 31
v_lshrrev_b32 v2, 3, v0
v_and_b32 v3, 7, v0
s_mul_i32 s66, s43, {64*896}
s_lshl_b32 s67, s42, 7
s_add_u32 s66, s66, s67
v_mul_u32_u24 v4, 1792, v2
v_lshl_add_u32 v4, v3, 4, v4
v_add_u32 v7, s66, v4
v_subrev_u32 v92, 2688, v7
v_subrev_u32 v93, 1792, v7
v_subrev_u32 v94, 896, v7
s_lshl_b32 s67, s42, 9
v_lshl_add_u32 v8, v3, 6, s67
s_mov_b32 s46, {S*D*2}
s_mov_b32 s47, 0x20000
s_waitcnt lgkmcnt(0)""")
if STAMPS: A("s_memrealtime s[96:97]")
A(f"""s_mov_b32 s44, s10
s_mov_b32 s45, s11
buffer_load_dwordx4 v[10:13], v92, s[44:47], 0 offen
buffer_load_dwordx4 v[14:17], v93, s[44:47], 0 offen
buffer_load_dwordx4 v[18:21], v94, s[44:47], 0 offen
buffer_load_dwordx4 v[22:25], v7, s[44:47], 0 offen
buffer_load_dwordx4 v[26:29], v7, s[44:47], 0 offen offset:896
global_load_dwordx4 v[30:33], v7, s[12:13]
global_load_dwordx4 v[34:37], v7, s[12:13] offset:896
global_load_dwordx4 v[46:49], v8, s[14:15]
global_load_dwordx4 v[50:53], v8, s[14:15] offset:16
global_load_dwordx4 v[54:57], v8, s[14:15] offset:32
global_load_dwordx4 v[58:61], v8, s[14:15] offset:48
global_load_dwordx4 v[38:41], v7, s[8:9]
global_load_dwordx4 v[42:45], v7, s[8:9] offset:896
v_and_b32 v1, 63, v0
v_lshrrev_b32 v5, 6, v0
s_mov_b32 s70, 0x05040100
s_mov_b32 s71, 0x07060302
v_readfirstlane_b32 s3, v5
s_mov_b32 s72, 0xffff0000
s_mov_b32 s73, 0x3f803f80
s_lshr_b32 s37, s2, 3""")
A(f"""s_lshr_b32 s66, s2, 1
s_mul_i32 s66, s66, {16*896}
s_and_b32 s67, s2, 1
s_mul_i32 s67, s67, 448
s_add_u32 s66, s66, s67
s_mov_b32 s67, 2341
v_mul_lo_u32 v110, v0, s67
v_lshrrev_b32 v110, 16, v110
v_mul_u32_u24 v111, 28, v110
v_sub_u32 v111, v0, v111
v_mul_u32_u24 v110, 896, v110
v_lshl_add_u32 v110, v111, 4, v110
v_add_u32 v110, s66, v110
v_add_u32 v112, 256, v0
v_mul_lo_u32 v113, v112, s67
v_lshrrev_b32 v113, 16, v113
v_mul_u32_u24 v111, 28, v113
v_sub_u32 v111, v112, v111
v_mul_u32_u24 v113, 896, v113
v_lshl_add_u32 v113, v111, 4, v113
v_add_u32 v113, s66, v113
s_lshl_b32 s66, s37, 10
s_min_u32 s66, s66, L_CODE_END-{KN}-1024
v_lshl_add_u32 v114, v1, 4, s66
s_lshl_b32 s69, s3, 10
s_add_u32 m0, s69, {L_W1}
s_nop 0
global_load_lds_dwordx4 v110, s[26:27]""")
l3 = A.label("x3"); lx = A.label("xd")
A(f"""s_cmp_eq_u32 s3, 3
s_cbranch_scc1 {l3}
s_add_u32 m0, m0, 4096
s_nop 0
global_load_lds_dwordx4 v113, s[26:27]
s_branch {lx}
{l3}:
s_sub_u32 s88, s88, L_PC-{KN}
s_subb_u32 s89, s89, 0
global_load_dwordx4 v[116:119], v114, s[88:89]
{lx}:""")
lns = A.label("nost")
A(f"""s_mov_b32 s76, 0
s_cmp_lt_u32 s3, 2
s_cbranch_scc1 {lns}""")
srd(48, 16, D*S*2)
A(f"""v_lshlrev_b32 v115, 4, v1
s_sub_u32 s66, s3, 2
s_lshl_b32 s67, s2, 1
s_add_u32 s67, s67, s66
s_lshl_b32 s67, s67, 12
s_load_dword s77, s[16:17], s67
s_mul_i32 s66, s66, 8320
s_add_u32 m0, s66, {L_KA}
s_add_u32 s79, s66, {L_KA + 4160 - 4}""")
for j in range(4):
    A(f"s_nop 0\nbuffer_load_dwordx4 v115, s[48:51], s67 offen lds\ns_add_u32 m0, m0, 1024\ns_add_u32 s67, s67, 1024")
A(f"s_add_u32 m0, m0, {4160-4096}\ns_sub_u32 s67, s67, {4096-2}")
for j in range(4):
    A(f"s_nop 0\nbuffer_load_dwordx4 v115, s[48:51], s67 offen lds\ns_add_u32 m0, m0, 1024\ns_add_u32 s67, s67, 1024")
A(f"""s_cmp_lt_u32 s42, 4
s_cbranch_scc0 {lns}
s_mov_b32 s76, 1
s_lshl_b32 s66, s43, 6
s_lshl_b32 s67, s42, 4
s_add_u32 s66, s66, s67
s_sub_u32 s67, s3, 2
s_lshl_b32 s67, s67, 3
s_add_u32 s66, s66, s67
v_lshrrev_b32 v120, 3, v1
v_add_u32 v120, s66, v120
v_mul_u32_u24 v121, 896, v120
v_and_b32 v122, 7, v1
v_lshl_add_u32 v121, v122, 4, v121""")
for i in range(7):
    A(f"global_load_dwordx4 v[{64+4*i}:{67+4*i}], v121, s[8:9] offset:{128*i}")
A(f"{lns}:")
ws_base(52, WS_UR); ws_base(54, WS_X2); ws_base(56, WS_H2); ws_base(58, WS_ST); ws_base(60, WS_HF); ws_base(62, WS_W2F)
stamp(0)
rstamp(30)
rstamp(31, True)
if STAMPS:
    for (i, r) in ((28, 78), (29, 96)):
        l = A.label("rt0")
        A(f"""s_cmp_lg_u32 s3, 0
        s_cbranch_scc1 {l}
        s_lshl_b32 s94, s2, 8
        s_add_u32 s94, s94, {WS_STAMP + 4*i}
        v_mov_b32 v250, s94
        v_mov_b32 v251, s{r}
        s_mov_b64 s[90:91], exec
        s_mov_b64 exec, 1
        global_store_dword v250, v251, s[34:35]
        s_mov_b64 exec, s[90:91]
        {l}:""")
A(f"""v_sub_u32 v96, 31, v2
v_lshrrev_b32 v97, 2, v96
v_xor_b32 v97, v97, v3
v_lshlrev_b32 v97, 4, v97
v_and_b32 v96, 3, v96
v_lshl_add_u32 v97, v96, 2, v97
v_lshl_add_u32 v95, v3, 10, v97
v_add_u32 v95, {L_UT}, v95
v_lshrrev_b32 v96, 1, v2
v_xor_b32 v96, v96, v3
v_lshlrev_b32 v96, 4, v96
v_and_b32 v97, 1, v2
v_lshl_add_u32 v96, v97, 3, v96
v_lshl_add_u32 v96, v3, 10, v96
v_add_u32 v96, {L_XT}, v96
v_lshrrev_b32 v98, 6, v0
v_xor_b32 v99, v3, v98
v_lshlrev_b32 v99, 4, v99
v_lshl_add_u32 v100, v2, 7, v99
v_add_u32 v100, {L_UT}, v100
s_lshl_b32 s66, s42, 18
s_sub_u32 s67, 31, s43
s_lshl_b32 s67, s67, 7
s_add_u32 s66, s66, s67
v_lshlrev_b32 v102, 12, v2
v_lshl_add_u32 v102, v3, 4, v102
v_add_u32 v102, s66, v102
v_and_b32 v104, 15, v0
v_lshrrev_b32 v105, 4, v0
v_xor_b32 v106, v104, v98
v_lshlrev_b32 v106, 4, v106
v_lshl_add_u32 v106, v105, 8, v106
v_add_u32 v106, {L_XT}, v106
s_lshl_b32 s66, s42, 18
s_lshl_b32 s67, s43, 8
s_add_u32 s66, s66, s67
v_lshlrev_b32 v108, 13, v105
v_lshl_add_u32 v108, v104, 4, v108
v_add_u32 v108, s66, v108
v_mov_b32 v101, {L_CNT}
v_mov_b32 v103, 0
ds_write2_b32 v101, v103, v103 offset1:1""")
A(f"""v_lshrrev_b32 v123, 5, v1
v_bfe_u32 v124, v1, 2, 2
v_lshl_add_u32 v123, v123, 2, v124
v_mul_u32_u24 v123, 448, v123
v_bfe_u32 v124, v1, 4, 1
v_lshl_add_u32 v123, v124, 5, v123
v_and_b32 v124, 3, v1
v_lshl_add_u32 v123, v124, 3, v123
s_lshl_b32 s66, s3, 6
s_add_u32 s66, s66, {L_W1}
v_add_u32 v123, s66, v123
s_and_b32 s66, s2, 1
s_mul_i32 s66, s66, 7
s_add_u32 s66, s66, s3
s_mul_i32 s66, s66, 112
s_lshr_b32 s67, s2, 1
s_add_u32 s66, s66, s67
s_lshl_b32 s66, s66, 10
v_lshl_add_u32 v124, v1, 4, s66""")
def p0wait(base):
    l1 = A.label("wa"); l2 = A.label("wb"); l3_ = A.label("wc")
    A(f"""s_cmp_ge_u32 s3, 2
    s_cbranch_scc1 {l3_}
    s_waitcnt vmcnt({base})
    s_branch {l2}
    {l3_}:
    s_cmp_eq_u32 s76, 0
    s_cbranch_scc1 {l1}
    s_waitcnt vmcnt({base+15})
    s_branch {l2}
    {l1}:
    s_waitcnt vmcnt({base+8})
    {l2}:""")
A(f"""s_and_b32 s36, s2, 7
s_mul_i32 s66, s37, 37
s_lshr_b32 s66, s66, 8
s_mul_i32 s67, s66, 7
s_sub_u32 s41, s37, s67
s_lshl_b32 s40, s36, 2
s_add_u32 s40, s40, s66
s_lshr_b32 s80, s40, 1
s_lshr_b32 s38, s36, 1
s_lshl_b32 s38, s38, 2
s_add_u32 s38, s38, s66
s_and_b32 s39, s36, 1
s_mul_i32 s39, s39, 7
s_add_u32 s39, s39, s41""")
p0wait(4)
stamp(26)
rstamp(39)
K = lambda j, p: f"v{10 + 4*j + p}"
T = 126
for p in range(4):
    seq = []
    for half in range(2):
        i = 2*p + half
        sel = "s70" if half == 0 else "s71"
        t = T + 8*half
        seq.append([
            f"v_perm_b32 v{t}, {K(2,p)}, {K(3,p)}, {sel}",
            f"v_perm_b32 v{t+1}, {K(0,p)}, {K(1,p)}, {sel}",
            f"v_perm_b32 v{t+2}, {K(3,p)}, {K(4,p)}, {sel}",
            f"v_perm_b32 v{t+3}, {K(1,p)}, {K(2,p)}, {sel}",
            f"v_dot2_f32_bf16 v{t+4}, v{t}, v{46+2*i}, 0",
            f"v_dot2_f32_bf16 v{t+5}, v{t+2}, v{46+2*i}, 0",
            f"v_dot2_f32_bf16 v{t+4}, v{t+1}, v{47+2*i}, v{t+4}",
            f"v_dot2_f32_bf16 v{t+5}, v{t+3}, v{47+2*i}, v{t+5}",
            (f"v_lshlrev_b32 v{t+6}, 16, v{30+p}" if half == 0 else f"v_and_b32 v{t+6}, s72, v{30+p}"),
            (f"v_lshlrev_b32 v{t+7}, 16, v{34+p}" if half == 0 else f"v_and_b32 v{t+7}, s72, v{34+p}"),
            f"v_mul_f32 v{t+4}, v{t+4}, v{t+6}",
            f"v_mul_f32 v{t+5}, v{t+5}, v{t+7}",
            f"v_cvt_pk_bf16_f32 v{t+4}, v{t+5}, v{t+4}",
            f"ds_write_b32 v95, v{t+4} offset:{128*i}",
        ])
    for k in range(len(seq[0])):
        A(seq[0][k]); A(seq[1][k])
stamp(27)
rstamp(40)
p0wait(0)
rstamp(41)
for p in range(4):
    A(f"ds_write2_b32 v96, v{38+p}, v{42+p} offset0:{64*p} offset1:{64*p+1}")
A("""s_waitcnt lgkmcnt(0)
s_barrier""")
ldmaw = A.label("dmaw"); laddr = A.label("w1addr"); ljoin = A.label("w1join")
A(f"s_cmp_ge_u32 s3, 2\ns_cbranch_scc1 {ldmaw}")
A("v_mov_b32 v248, 0\nglobal_load_dword v249, v248, s[32:33] sc1")
for q in range(4):
    if q == 0: A("ds_read_b128 v[10:13], v100")
    else: A(f"v_xor_b32 v110, {32*q}, v100\nds_read_b128 v[{10+4*q}:{13+4*q}], v110 offset:{2048*q}")
for q in range(4):
    if q == 0: A("ds_read_b128 v[26:29], v106")
    else: A(f"v_xor_b32 v111, {32*q}, v106\nds_read_b128 v[{26+4*q}:{29+4*q}], v111 offset:{2048*q}")
for q in range(4):
    A(f"s_waitcnt lgkmcnt({7-q})\nglobal_store_dwordx4 v102, v[{10+4*q}:{13+4*q}], s[52:53] sc1")
    if q < 3: A("v_add_u32 v102, 65536, v102")
for j in range(4):
    A(f"ds_read_b64_tr_b16 v[{42+4*j}:{43+4*j}], v123 offset:{128*j}\nds_read_b64_tr_b16 v[{44+4*j}:{45+4*j}], v123 offset:{128*j+3584}")
A("s_waitcnt lgkmcnt(8)")
for q in range(4):
    A(f"global_store_dwordx4 v108, v[{26+4*q}:{29+4*q}], s[54:55] sc1")
    if q < 3: A("v_add_u32 v108, 65536, v108")
A("s_waitcnt lgkmcnt(0)")
lsk = A.label("w2s"); lsk2 = A.label("w2t")
for j in range(3):
    A(f"global_store_dwordx4 v124, v[{42+4*j}:{45+4*j}], s[62:63] sc1")
    A(f"v_add_u32 v124, {2*112*1024}, v124")
A(f"""s_cmp_eq_u32 s3, 1
s_cbranch_scc1 {lsk}
global_store_dwordx4 v124, v[54:57], s[62:63] sc1
s_branch {lsk2}
{lsk}:
v_subrev_u32 v124, {2*112*1024}, v124
s_nop 0
global_store_dwordx4 v124, v[50:53], s[62:63] sc1
{lsk2}:
s_barrier""")
stamp(1)
def lds_count_signal(off, last, build_addr):
    ln = A.label("nl")
    A(f"""v_mov_b32 v110, 1
    s_mov_b64 s[64:65], exec
    s_mov_b64 exec, 1
    ds_add_rtn_u32 v111, v101, v110 offset:{off}
    s_waitcnt lgkmcnt(0)
    v_readfirstlane_b32 s66, v111
    s_mov_b64 exec, s[64:65]
    s_cmp_eq_u32 s66, {last}
    s_cbranch_scc0 {ln}""")
    lio = A.label("initok")
    A(f"v_cmp_ne_u32 vcc, 1, v249\ns_cbranch_vccz {lio}")
    emit_poll("v248", 1, base="s[32:33]")
    A(f"v_mov_b32 v249, 1\n{lio}:")
    A(build_addr)
    emit_signal("s66")
    A(f"{ln}:")
A("s_waitcnt vmcnt(8)")
lds_count_signal(0, 1, "s_mov_b32 s66, s42")
stamp(2)
rstamp(32)
A("s_waitcnt vmcnt(0)")
lds_count_signal(4, 3, f"s_add_u32 s66, s36, {CL_AUX}")
A(f"""v_lshrrev_b32 v10, 5, v1
v_mul_u32_u24 v10, 4608, v10
v_and_b32 v11, 31, v1
v_lshl_add_u32 v10, v11, 4, v10
v_add_u32 v10, {L_UR + 4096}, v10
v_mov_b32 v12, 0
v_mov_b32 v13, 0
v_mov_b32 v14, 0
v_mov_b32 v15, 0
ds_write_b128 v10, v[12:15]
s_branch {laddr}""")
A(f"{ldmaw}:")
srd(44, 22, D*F*2)
A(f"""v_lshrrev_b32 v11, 4, v1
v_lshlrev_b32 v12, 2, v11
v_and_b32 v13, 15, v1
v_xor_b32 v12, v12, v13
v_lshlrev_b32 v12, 4, v12
v_mul_u32_u24 v11, 3584, v11
v_add_u32 v11, v11, v12
s_lshl_b32 s66, s39, 8
v_add_u32 v11, s66, v11
v_mov_b32 v13, s79
s_lshl_b32 s77, s77, 16
v_mov_b32 v12, s77
ds_write_b32 v13, v12
v_mov_b32 v248, 0
global_load_dword v249, v248, s[32:33] sc1
s_barrier""")
lns = A.label("nost2")
A(f"s_cmp_eq_u32 s76, 0\ns_cbranch_scc1 {lns}")
b = 64
A("s_waitcnt vmcnt(1)")
A(f"v_dot2_f32_bf16 v16, v{b}, s73, 0\nv_dot2_f32_bf16 v17, v{b}, v{b}, 0\nv_dot2_f32_bf16 v18, v{b+1}, s73, 0\nv_dot2_f32_bf16 v19, v{b+1}, v{b+1}, 0")
for i in range(2, 28, 2):
    A(f"v_dot2_f32_bf16 v16, v{b+i}, s73, v16\nv_dot2_f32_bf16 v17, v{b+i}, v{b+i}, v17\nv_dot2_f32_bf16 v18, v{b+i+1}, s73, v18\nv_dot2_f32_bf16 v19, v{b+i+1}, v{b+i+1}, v19")
A("""s_nop 2
v_add_f32 v16, v16, v18
v_add_f32 v17, v17, v19
s_nop 1
v_add_f32_dpp v16, v16, v16 quad_perm:[1,0,3,2] row_mask:0xf bank_mask:0xf
v_add_f32_dpp v17, v17, v17 quad_perm:[1,0,3,2] row_mask:0xf bank_mask:0xf
s_nop 1
v_add_f32_dpp v16, v16, v16 quad_perm:[2,3,0,1] row_mask:0xf bank_mask:0xf
v_add_f32_dpp v17, v17, v17 quad_perm:[2,3,0,1] row_mask:0xf bank_mask:0xf
s_nop 1
v_add_f32_dpp v16, v16, v16 row_half_mirror row_mask:0xf bank_mask:0xf
v_add_f32_dpp v17, v17, v17 row_half_mirror row_mask:0xf bank_mask:0xf
s_mov_b32 s66, 0x3b124925
v_mul_f32 v16, s66, v16
v_mul_f32 v17, s66, v17
v_fma_f32 v17, -v16, v16, v17
v_add_f32 v17, 0x3727c5ac, v17
v_rsq_f32 v17, v17
v_lshlrev_b32 v120, 2, v120
v_cmp_eq_u32 vcc, 0, v122
v_mul_f32 v18, -v16, v17
v_add_u32 v121, 8192, v120
s_and_saveexec_b64 s[64:65], vcc
global_store_dword v120, v17, s[58:59] sc1
global_store_dword v121, v18, s[58:59] sc1
s_mov_b64 exec, s[64:65]""")
A(f"{lns}:\ns_waitcnt vmcnt(0)")
lds_count_signal(4, 3, f"s_add_u32 s66, s36, {CL_AUX}")
lg = A.label("gate")
A(f"""{lg}:
ds_read_b64 v[12:13], v101
s_waitcnt lgkmcnt(0)
v_add_u32 v12, v12, v13
s_nop 0
v_readfirstlane_b32 s66, v12
s_nop 0
s_cmp_lt_u32 s66, 6
s_cbranch_scc1 {lg}
s_sub_u32 s66, s3, 2
s_mul_i32 s66, s66, 56
s_mul_i32 s67, s66, 14336
s_lshl_b32 s66, s66, 10
s_add_u32 m0, s66, {L_W1}
s_mov_b32 s69, 14""")
lp = A.label("w1l")
A(f"{lp}:")
for j in range(4):
    if E("NOW1", 0): continue
    A(f"s_nop 0\nbuffer_load_dwordx4 v11, s[44:47], s67 offen lds\ns_add_u32 m0, m0, 1024\ns_add_u32 s67, s67, 14336")
A(f"""s_sub_u32 s69, s69, 1
s_cmp_lg_u32 s69, 0
s_cbranch_scc1 {lp}""")
stamp(24, 3)
if E("FLOODWAIT", 0):
    A("s_waitcnt vmcnt(0)")
    stamp(25, 3)
A(f"{laddr}:")
XV, STV = 170, 178
A(f"""s_lshl_b32 s66, s2, 2
s_load_dword s74, s[18:19], s66
v_and_b32 v194, 15, v1
v_lshrrev_b32 v195, 4, v1
v_lshlrev_b32 v196, 4, v194
v_lshl_add_u32 v196, v195, 2, v196
s_lshl_b32 s66, s3, 9
v_add_u32 v196, s66, v196
v_lshlrev_b32 v197, 2, v196
v_mov_b32 v198, v197
s_lshl_b32 s66, s2, 13
v_add_u32 v197, s66, v197
s_lshr_b32 s66, s3, 1
s_and_b32 s67, s3, 1
s_mul_i32 s68, s66, 8320
s_lshl_b32 s69, s67, 8
s_sub_u32 s68, s68, s69
s_add_u32 s68, s68, {L_KA - 32}
v_add_u32 v199, 1, v194
v_lshrrev_b32 v199, 1, v199
v_lshl_add_u32 v199, v195, 2, v199
v_lshlrev_b32 v199, 2, v199
v_and_b32 v200, 1, v194
v_cmp_eq_u32 vcc, 0, v200
v_mov_b32 v201, 4160
v_add_u32 v199, s68, v199
v_cndmask_b32 v201, 0, v201, vcc
v_add_u32 v199, v199, v201
v_add_u32 v200, 1024, v199
v_add_u32 v201, 2048, v199
v_add_u32 v202, 3072, v199
s_mul_i32 s68, s66, 4608
s_sub_u32 s68, s68, s69
s_add_u32 s68, s68, {L_UR + 736}
v_lshlrev_b32 v203, 5, v194
v_sub_u32 v203, s68, v203
v_lshl_add_u32 v203, v195, 4, v203
s_cmp_eq_u32 s67, 0
s_cselect_b32 s68, 64, 0
v_lshl_add_u32 v204, v195, 3, v194
v_add_u32 v204, s68, v204
s_mov_b32 s75, 0xffff""")
for k in range(4):
    A(f"""v_cmp_le_u32 vcc, {15-2*k}, v204
    v_mov_b32 v205, s75
    s_nop 0
    v_cndmask_b32 v{206+k}, 0, v205, vcc
    v_cmp_le_u32 vcc, {14-2*k}, v204
    v_mov_b32 v205, s72
    s_nop 0
    v_cndmask_b32 v205, 0, v205, vcc
    v_or_b32 v{206+k}, v{206+k}, v205""")
A(f"""v_lshlrev_b32 v211, 4, v1
s_lshl_b32 s66, s3, 13
v_add_u32 v212, s66, v211
v_add_u32 v212, {L_X}, v212
s_lshl_b32 s66, s3, 11
v_add_u32 v213, s66, v211
v_add_u32 v213, {L_X}, v213
s_lshl_b32 s66, s3, 10
s_sub_u32 s66, {L_UR + 4088 - 512}, s66
v_lshlrev_b32 v210, 5, v194
v_lshl_add_u32 v210, v195, 3, v210
v_sub_u32 v210, s66, v210
v_and_b32 v214, 7, v1
v_add_u32 v214, {CL_AUX}, v214
v_lshlrev_b32 v214, 7, v214
s_mul_i32 s66, s41, {2*112*1024}
s_mul_i32 s67, s3, {28*1024}
s_add_u32 s81, s66, s67
s_and_b32 s67, s3, 1
s_mul_i32 s67, s67, {112*1024}
s_add_u32 s95, s81, {112*1024}
s_sub_u32 s95, s95, s67
s_add_u32 s81, s81, s67""")
srd(84, 62, F*D*2)
ACC = 138
for j in range(32): A(f"v_mov_b32 v{ACC+j}, 0")
lnw0 = A.label("w1n0")
A(f"s_cmp_lg_u32 s3, 0\ns_cbranch_scc1 {lnw0}")
A(f"s_lshl_b32 s66, s42, 7\nv_mov_b32 v16, s66")
emit_poll("v16", "32")
stamp(3)
A(f"""v_lshlrev_b32 v10, 4, v1
s_lshl_b32 s66, s2, 13
v_add_u32 v10, s66, v10
s_mov_b32 m0, {L_UR}""")
for c in range(2):
    for j in range(4):
        A(f"s_nop 0\nglobal_load_lds_dwordx4 v10, s[52:53] sc1\nv_add_u32 v10, 1024, v10\ns_add_u32 m0, m0, {1024 if j < 3 else 4608-3072}")
A(f"""s_waitcnt vmcnt(0) lgkmcnt(0)
s_branch {ljoin}
{lnw0}:
s_waitcnt lgkmcnt(0)
s_cmp_eq_u32 s3, 1
s_cbranch_scc1 {ljoin}
s_waitcnt vmcnt({0 if E("NOW1", 0) else 56}) lgkmcnt(0)
{ljoin}:
s_barrier""")
stamp(4)
rstamp(33)

AB = [10, 42]; UB = [74, 106]
def conv_loads(s, buf):
    L = []
    for m in range(8):
        L.append(f"ds_read_b128 v[{UB[buf]+4*m}:{UB[buf]+4*m+3}], v203 offset:{64*(59-8*m-s)}")
    for n in range(8):
        base = 199 + (n >> 1)
        o = (n & 1)*128 + 16*(7-s)
        L.append(f"ds_read2_b32 v[{AB[buf]+4*n}:{AB[buf]+4*n+1}], v{base} offset0:{o} offset1:{o+1}")
        L.append(f"ds_read2_b32 v[{AB[buf]+4*n+2}:{AB[buf]+4*n+3}], v{base} offset0:{o+2} offset1:{o+3}")
    return L
def w2f_load(dd, kk):
    L = []
    if kk % 4 == 0:
        L += [f"s_add_u32 s82, {'s81' if dd == 0 else 's95'}, {4096*(kk>>2)}"]
    a = 4*(dd*28 + kk)
    L += [f"buffer_load_dwordx4 a[{a}:{a+3}], v211, s[84:87], s82 offen offset:{1024*(kk&3)} sc1"]
    return L
L0 = conv_loads(0, 0)
L0 = [L0[0]] + L0[8:] + L0[1:8]
for l in L0: A(l)
A(f"""global_load_dword v215, v214, s[34:35] sc1""")
stamp(19)
nw = 0
npf = 0
for s in range(4):
    buf = s & 1
    nxt = conv_loads(s+1, buf ^ 1) if s < 3 else []
    if s == 3:
        for k in range(4): A(f"v_and_b32 v{AB[buf]+k}, v{206+k}, v{AB[buf]+k}")
        A("s_nop 1")
    if s == E('AUXS', 1):
        lok = A.label("auxok"); lp = A.label("auxp")
        A(f"""s_cmp_lg_u32 s3, 0
        s_cbranch_scc1 {lok}
        s_waitcnt vmcnt(0)
        v_cmp_ne_u32 vcc, 28, v215
        s_cbranch_vccz {lok}""")
        emit_poll("v214", "28")
        A(f"""{lok}:
        s_barrier
        v_add_u32 v216, 8192, v198
        global_load_dwordx4 v[{XV}:{XV+3}], v197, s[54:55] sc1
        global_load_dwordx4 v[{XV+4}:{XV+7}], v197, s[54:55] offset:1024 sc1
        global_load_dwordx4 v[{STV}:{STV+3}], v198, s[58:59] sc1
        global_load_dwordx4 v[{STV+4}:{STV+7}], v216, s[58:59] sc1
        global_load_dwordx4 v[{STV+8}:{STV+11}], v198, s[58:59] offset:1024 sc1
        global_load_dwordx4 v[{STV+12}:{STV+15}], v216, s[58:59] offset:1024 sc1""")
    pairs = [(m, n) for m in range(8) for n in range(8 - m)]
    for idx, (m, n) in enumerate(pairs):
        j = m + n
        if s == 0 and m == 0:
            A(f"s_waitcnt lgkmcnt({min(15, 24 - 3 - 2*n)})")
        if s == 0 and n == 0 and 1 <= m <= 2:
            A(f"s_waitcnt lgkmcnt({(7 - m) if m == 1 else 0})")
        A(f"v_mfma_f32_16x16x32_bf16 v[{ACC+4*j}:{ACC+4*j+3}], v[{AB[buf]+4*n}:{AB[buf]+4*n+3}], v[{UB[buf]+4*m}:{UB[buf]+4*m+3}], v[{ACC+4*j}:{ACC+4*j+3}]")
        if s == 0:
            if idx >= 15:
                k0 = (idx - 15) * 24 // 21; k1 = (idx - 14) * 24 // 21
                for q in nxt[k0:k1]: A(q)
        elif idx < len(nxt): A(nxt[idx])
        if s >= 1 and idx % E("W2SP", 5) == 1 and nw < 28:
            for l in w2f_load(0, nw): A(l)
            nw += 1

    if s < 3: A("s_waitcnt lgkmcnt(0)")

stamp(5)
A("s_barrier")
for j in range(8):
    A(f"ds_write_b128 v212, v[{ACC+4*j}:{ACC+4*j+3}] offset:{1024*j}")
    if nw < 28:
        for l in w2f_load(0, nw): A(l)
        nw += 1
while nw < 28:
    for l in w2f_load(0, nw): A(l)
    nw += 1
A("s_waitcnt lgkmcnt(0)\ns_barrier")
PB = 10
for jj in range(2):
    for w_ in range(4):
        A(f"ds_read_b128 v[{PB+16*jj+4*w_}:{PB+16*jj+4*w_+3}], v213 offset:{8192*w_+1024*jj}")
for jj in range(2):
    for c in range(2):
        A(f"ds_read_b64 v[{42+4*jj+2*c}:{43+4*jj+2*c}], v210 offset:{(512 if jj == 0 else 0) + 4608*c}")
A(f"""s_and_b32 s75, s74, s72
s_lshl_b32 s74, s74, 16
s_waitcnt vmcnt({0 if E("NOW2A", 0) else 28})""")
P2 = lambda r: f"v[{r}:{r+1}]"
for jj in range(2):
    P = PB + 16*jj
    X = XV + 4*jj; SA = STV + 8*jj; SB = SA + 4
    t = 50
    for c in range(2):
        q = t + 8*c
        for i in range(4):
            A(f"v_lshlrev_b32 v{q+i}, 16, v{X+i}" if c == 0 else f"v_and_b32 v{q+i}, s72, v{X+i}")
        for i in (0, 2):
            A(f"v_pk_fma_f32 {P2(q+4+i)}, {P2(q+i)}, {P2(SA+i)}, {P2(SB+i)}")
    A(f"s_waitcnt lgkmcnt({8 if jj == 0 else 0})")
    if jj == 0: A("s_waitcnt lgkmcnt(2)")
    for i in (0, 2):
        A(f"v_pk_add_f32 {P2(P+i)}, {P2(P+i)}, {P2(P+4+i)}\nv_pk_add_f32 {P2(P+8+i)}, {P2(P+8+i)}, {P2(P+12+i)}")
    for c in range(2):
        U = 42 + 4*jj + 2*c
        Y = P + 8*c
        u = 66 + 4*c
        A(f"v_and_b32 v{u}, s72, v{U+1}\nv_lshlrev_b32 v{u+1}, 16, v{U+1}\nv_and_b32 v{u+2}, s72, v{U}\nv_lshlrev_b32 v{u+3}, 16, v{U}")
        sel = "op_sel:[0,0,0] op_sel_hi:[1,0,1]" if c == 0 else "op_sel:[0,1,0] op_sel_hi:[1,1,1]"
        for i in (0, 2):
            A(f"v_pk_fma_f32 {P2(Y+i)}, {P2(u+i)}, s[74:75], {P2(Y+i)} {sel}")
        q = t + 8*c
        for i in (0, 2):
            A(f"v_pk_fma_f32 {P2(Y+i)}, {P2(q+4+i)}, {P2(Y+i)}, {P2(q+i)}")
    for i in range(4):
        A(f"v_cvt_pk_bf16_f32 v{74+4*jj+i}, v{P+i}, v{P+8+i}")
    A(f"global_store_dwordx4 v197, v[{74+4*jj}:{77+4*jj}], s[56:57] offset:{1024*jj} sc1")
stamp(6)
A("s_waitcnt vmcnt(0)\ns_barrier")
lw = A.label("s2w0")
wave0_only(lw)
A(f"s_add_u32 s66, s36, {CL_S2}")
emit_signal("s66")
A(f"{lw}:")
stamp(7)
rstamp(34)

A(f"""v_lshrrev_b32 v10, 5, v1
v_bfe_u32 v11, v1, 2, 2
v_lshl_add_u32 v10, v10, 3, v11
v_lshlrev_b32 v10, 8, v10
v_bfe_u32 v12, v1, 4, 1
v_bfe_u32 v13, v1, 1, 1
v_lshl_add_u32 v12, v12, 1, v13
v_lshlrev_b32 v12, 4, v12
v_add_u32 v10, v10, v12
v_and_b32 v12, 1, v1
v_lshl_add_u32 v10, v12, 3, v10
s_lshl_b32 s66, s3, 12
v_add_u32 v10, s66, v10
v_lshlrev_b32 v11, 6, v11""")
for ft in range(4):
    A(f"v_xor_b32 v{2+ft}, {64*ft}, v11\nv_add_u32 v{2+ft}, v{2+ft}, v10\nv_add_u32 v{6+ft}, 65536, v{2+ft}")
A(f"""v_lshlrev_b32 v12, 4, v1
v_add_u32 v12, s66, v12
v_add_u32 v13, 65536, v12
s_lshl_b32 s66, s39, 7
s_lshl_b32 s67, s3, 5
s_add_u32 s66, s66, s67
v_and_b32 v14, 31, v1
v_add_u32 v14, s66, v14
v_lshlrev_b32 v14, 1, v14
global_load_ushort v15, v14, s[24:25]""")
CB = 16
def cv_reads(i):
    L = []
    for ft in range(4):
        base, off = (2+ft, 16384*i) if i < 4 else (6+ft, 16384*(i-4))
        r = CB + 16*i + 4*ft
        L += [f"ds_read_b64_tr_b16 v[{r}:{r+1}], v{base} offset:{off}", f"ds_read_b64_tr_b16 v[{r+2}:{r+3}], v{base} offset:{off+1024}"]
    return L
def cv_writes(i):
    base, off = (12, 16384*i) if i < 4 else (13, 16384*(i-4))
    return [f"ds_write_b128 v{base}, v[{CB+16*i+4*ft}:{CB+16*i+4*ft+3}] offset:{off+1024*ft}" for ft in range(4)]
for l in cv_reads(0): A(l)
for i in range(7):
    if i < 6:
        for l in cv_reads(i+1): A(l)
        A("s_waitcnt lgkmcnt(8)")
    else:
        A("s_waitcnt lgkmcnt(0)")
    for l in cv_writes(i): A(l)
    for kk in range(4*i, 4*i+4):
        for l in w2f_load(1, kk): A(l)
A("s_waitcnt lgkmcnt(0)\ns_barrier")
A(f"""s_lshl_b32 s66, s3, 10
v_lshl_add_u32 v6, v1, 4, s66
v_add_u32 v7, 57344, v6""")
for half in range(2):
    base = "v6" if half == 0 else "v7"
    for k in range(14):
        A(f"ds_read_b128 v[{64+56*half+4*k}:{67+56*half+4*k}], {base} offset:{4096*k}")
    if half == 1: pass
for half in range(2):
    for k in range(14):
        idx = 14*half + k
        A(f"s_waitcnt lgkmcnt({min(15, 27-idx)})")
        for r in range(4):
            reg = 64+56*half+4*k+r
            if idx == 0:
                A(f"v_dot2_f32_bf16 v{42+r}, v{reg}, s73, 0")
            else:
                A(f"v_dot2_f32_bf16 v{42+r}, v{reg}, s73, v{42+r}")
A(f"""s_nop 2
v_add_f32 v42, v42, v43
v_add_f32 v44, v44, v45
s_nop 0
v_add_f32 v42, v42, v44
v_mov_b32 v43, v42
s_nop 1
v_permlane32_swap_b32 v42, v43
s_nop 1
v_add_f32 v42, v42, v43
v_cvt_pk_bf16_f32 v43, -v42, -v42
v_and_b32 v44, s72, v43
v_add_f32 v44, v42, v44
v_cvt_pk_bf16_f32 v44, -v44, -v44
s_waitcnt vmcnt(28)
v_perm_b32 v46, v44, v43, s70
v_perm_b32 v47, v15, v43, s70
v_mov_b32 v48, v15
v_mov_b32 v49, 0
v_cmp_gt_u32 vcc, 32, v1
v_lshlrev_b32 v50, 4, v1
s_lshl_b32 s66, s3, 10
s_add_u32 s66, s66, {L_AUG}
v_cndmask_b32 v46, 0, v46, vcc
v_cndmask_b32 v47, 0, v47, vcc
v_cndmask_b32 v48, 0, v48, vcc
v_add_u32 v50, s66, v50
ds_write_b128 v50, v[46:49]
v_lshrrev_b32 v10, 5, v1
v_lshlrev_b32 v2, 13, v10
v_and_b32 v11, 31, v1
v_lshl_add_u32 v2, v11, 4, v2
s_lshl_b32 s66, s38, 9
s_lshl_b32 s67, s3, 15
s_add_u32 s66, s66, s67
v_add_u32 v2, s66, v2
v_add_u32 v3, 15360, v2
v_lshlrev_b32 v4, 11, v10
v_lshl_add_u32 v4, v11, 2, v4
s_lshl_b32 s66, s3, 7
s_add_u32 s66, s66, {L_X}
v_add_u32 v4, s66, v4""")
srd(48, 56, S*D*2)
A(f"""v_lshlrev_b32 v6, 4, v1
v_add_u32 v7, 57344, v6
v_add_u32 v5, {L_AUG}, v6
s_mov_b32 s77, {'s39' if not E('NOROT2',0) else '0'}
s_lshl_b32 s78, s3, 11
s_add_u32 s78, s78, {L_X}
s_waitcnt lgkmcnt(0)""")
stamp(8)
lw = A.label("s2p")
wave0_only(lw)
A(f"v_and_b32 v16, 7, v1\nv_add_u32 v16, {CL_S2}, v16\nv_lshlrev_b32 v16, 7, v16\nv_mov_b32 v17, 28")
emit_poll("v16", "v17")
A(f"{lw}:\ns_barrier")
stamp(9)
rstamp(35)

BF = 16
TL = [128, 144, 160, 176]
AF = 192
NSLOT = 6; PDC = E('PDC', 5)
def dmaH(c, part=None):
    L = [[f"s_add_u32 m0, s78, {8192*(c % NSLOT)}", f"s_mov_b32 s76, {c << 17}", "buffer_load_dwordx4 v2, s[48:51], s76 offen sc1 lds"],
         ["buffer_load_dwordx4 v3, s[48:51], s76 offen offset:1024 sc1 lds"]]
    for p in ((0, 1) if part is None else (part,)):
        for x in L[p]: A(x)
for c in range(PDC): dmaH(c)
for t in range(4):
    A(f"ds_read_b128 a[{224+4*t}:{227+4*t}], v5 offset:{1024*t}")
def afrag_addr(ks, ft):
    return ("v6", 4096*ks + 1024*ft) if ks < 14 else ("v7", 4096*(ks-14) + 1024*ft)
def ldA(ks, ft):
    b, o = afrag_addr(ks, ft)
    r = AF + 16*(ks & 1) + 4*ft
    A(f"ds_read_b128 v[{r}:{r+3}], {b} offset:{o}")
def M(ks, t):
    b = BF + 4*ks
    r = AF + 16*(ks & 1) + 4*t
    cc = "0" if ks == 0 else f"v[{TL[t]}:{TL[t]+15}]"
    A(f"v_mfma_f32_32x32x16_bf16 v[{TL[t]}:{TL[t]+15}], v[{r}:{r+3}], v[{b}:{b+3}], {cc}")
def rdB(c, ksl):
    so = 32*(c % NSLOT)
    b = BF + 4*(2*c + ksl)
    A(f"ds_read2st64_b32 v[{b}:{b+1}], v4 offset0:{so+16*ksl} offset1:{so+16*ksl+2}")
    A(f"ds_read2st64_b32 v[{b+2}:{b+3}], v4 offset0:{so+16*ksl+4} offset1:{so+16*ksl+6}")
if SENT:
    A(f"""s_lshl_b32 s66, s38, 2
    s_add_u32 s66, s66, s3
    s_mul_i32 s66, s66, 56
    s_lshl_b32 s67, s39, 2
    s_add_u32 s66, s66, s67
    s_lshl_b32 s66, s66, 11
    v_lshl_add_u32 v240, v1, 4, s66
    v_add_u32 v241, 4096, v240
    v_mov_b32 v236, -1
    v_mov_b32 v237, -1
    v_mov_b32 v238, -1
    v_mov_b32 v239, -1""")
INLOOP = E("INLOOP", 0)
ST0 = 232
def stats(ks):
    b = BF + 4*ks
    for r in range(4):
        if ks == 0 and r < 2:
            A(f"v_dot2_f32_bf16 v{ST0+(r&1)}, v{b+r}, s73, 0")
            A(f"v_dot2_f32_bf16 v{ST0+2+(r&1)}, v{b+r}, v{b+r}, 0")
        else:
            A(f"v_dot2_f32_bf16 v{ST0+(r&1)}, v{b+r}, s73, v{ST0+(r&1)}")
            A(f"v_dot2_f32_bf16 v{ST0+2+(r&1)}, v{b+r}, v{b+r}, v{ST0+2+(r&1)}")
npf = 0
def prefill():
    global npf
    if SENT and npf < 8:
        A(f"global_store_dwordx4 v{240 + (npf >> 2)}, v[236:239], s[60:61] offset:{1024*(npf & 3)} sc1")
        npf += 1
for t in range(4): ldA(0, t)
for c in range(15):
    if c < 14:
        A(f"s_waitcnt vmcnt({2*(min(c+PDC-1, 13) - c) + npf}) lgkmcnt(0)")
    else:
        A("s_waitcnt lgkmcnt(0)")
    if c == 0:
        A("s_barrier")
        stamp(20)
        rdB(0, 0); rdB(0, 1); dmaH(PDC)
        continue
    k0, k1, k2 = 2*c-2, 2*c-1, 2*c
    M(k0, 0); ldA(k1, 0); ldA(k1, 1)
    M(k0, 1); ldA(k1, 2); ldA(k1, 3)
    if c < 14: A("s_barrier")
    if c in (4, 8, 12): stamp(20 + c//4)
    M(k0, 2)
    if c < 14: rdB(c, 0)
    M(k0, 3)
    if c < 14: rdB(c, 1)
    A(f"s_waitcnt lgkmcnt({4 if c < 14 else 0})")
    M(k1, 0)
    if c < 14: ldA(k2, 0); ldA(k2, 1)
    M(k1, 1)
    if c < 14: ldA(k2, 2); ldA(k2, 3)
    M(k1, 2)
    if c + PDC <= 13: dmaH(c + PDC, 0)
    else:
        prefill(); prefill()
    M(k1, 3)
    if c + PDC <= 13: dmaH(c + PDC, 1)
    else:
        prefill(); prefill()
    if INLOOP:
        stats(k0); stats(k1)
stamp(10)
if not INLOOP:
    for ks in range(28): stats(ks)
if SENT:
    assert npf == 8, npf
    A("s_waitcnt vmcnt(0)\ns_barrier")
    lw = A.label("s3w0")
    wave0_only(lw)
    A(f"s_add_u32 s66, s38, {CL_S3}")
    emit_signal("s66")
    A(f"{lw}:")
A(f"""s_nop 1
v_add_f32 v232, v232, v233
v_add_f32 v234, v234, v235
v_mov_b32 v233, v232
v_mov_b32 v235, v234
v_lshlrev_b32 v9, 4, v1
s_nop 0
v_permlane32_swap_b32 v232, v233
v_permlane32_swap_b32 v234, v235
s_mov_b32 s66, 0x3b124925
s_nop 0
v_add_f32 v232, v232, v233
v_add_f32 v234, v234, v235
v_mul_f32 v232, s66, v232
v_mul_f32 v234, s66, v234
v_fma_f32 v234, -v232, v232, v234
v_add_f32 v234, 0x3727c5ac, v234
v_rsq_f32 v235, v234
v_sqrt_f32 v230, v234
s_mov_b32 s66, 0xc0135761
s_mov_b32 s67, 0xbdd2d3e8
v_mul_f32 v229, s66, v235
v_mul_f32 v228, v235, v235
v_mul_f32 v228, v228, v235
v_mul_f32 v228, s67, v228
v_cvt_pk_bf16_f32 v233, v232, v232
v_and_b32 v231, s72, v233
v_sub_f32 v231, v232, v231
v_cvt_pk_bf16_f32 v236, v230, v230
v_and_b32 v237, s72, v236
v_sub_f32 v237, v230, v237
v_and_b32 v225, s72, v236
v_cvt_pk_bf16_f32 v231, v231, v231
v_and_b32 v231, 0xffff, v231
v_or_b32 v225, v225, v231
v_cvt_pk_bf16_f32 v226, v237, 0
v_mov_b32 v224, v233
v_mov_b32 v227, 0
v_cmp_gt_u32 vcc, 32, v1
s_lshl_b32 s66, s38, 2
s_add_u32 s66, s66, s3
v_cndmask_b32 v224, 0, v224, vcc
v_cndmask_b32 v225, 0, v225, vcc
v_cndmask_b32 v226, 0, v226, vcc
s_mul_i32 s66, s66, 56
s_lshl_b32 s67, s39, 2""")
for t in range(4):
    A(f"v_mfma_f32_32x32x16_bf16 v[{TL[t]}:{TL[t]+15}], a[{224+4*t}:{227+4*t}], v[224:227], v[{TL[t]}:{TL[t]+15}]")
A(f"""s_add_u32 s66, s66, s67
s_lshl_b32 s66, s66, 11
v_lshl_add_u32 v8, v1, 4, s66
v_add_u32 v11, 4096, v8""")
GT = 236
def gelu_pk(tile, grp):
    L = []
    w = [TL[tile] + 8*grp + 2*e for e in range(4)]
    t = [GT + 2*e for e in range(4)]
    P = lambda r: f"v[{r}:{r+1}]"
    L += [f"v_pk_mul_f32 {P(t[e])}, {P(w[e])}, {P(w[e])}" for e in range(4)]
    L += [f"v_pk_fma_f32 {P(t[e])}, {P(t[e])}, v[228:229], v[228:229] op_sel:[0,0,1] op_sel_hi:[1,0,1]" for e in range(4)]
    L += [f"v_pk_mul_f32 {P(t[e])}, {P(t[e])}, {P(w[e])}" for e in range(4)]
    L += [f"v_exp_f32 v{t[e]+k}, v{t[e]+k}" for e in range(4) for k in range(2)]
    L += [f"v_pk_fma_f32 {P(t[e])}, {P(t[e])}, v[230:231], v[230:231] op_sel_hi:[1,0,0]" for e in range(4)]
    L += [f"v_rcp_f32 v{t[e]+k}, v{t[e]+k}" for e in range(4) for k in range(2)]
    L += [f"v_pk_mul_f32 {P(w[e])}, {P(w[e])}, {P(t[e])}" for e in range(4)]
    return L
def cvts(tile):
    o = AF + 8*(tile & 1)
    return [f"v_cvt_pk_bf16_f32 v{o+k}, v{TL[tile]+2*k}, v{TL[tile]+2*k+1}" for k in range(8)]
def h_store(tile):
    o = AF + 8*(tile & 1)
    base, off = ("v8", 2048*tile) if tile < 2 else ("v11", 2048*(tile-2))
    return [f"global_store_dwordx4 {base}, v[{o}:{o+3}], s[60:61] offset:{off} sc1", f"global_store_dwordx4 {base}, v[{o+4}:{o+7}], s[60:61] offset:{off+1024} sc1"]
def w2f_loadB(kk):
    return [l.replace("v211", "v9") for l in w2f_load(1, kk)]
stamp(11)
A("s_nop 7")
for t in range(4):
    if SENT and t == 2:
        A(f"s_add_u32 s66, s80, {CL_S3}\ns_lshl_b32 s66, s66, 7\nv_mov_b32 v248, s66\nglobal_load_dword v249, v248, s[34:35] sc1")
    for grp in range(2):
        for x in gelu_pk(t, grp): A(x)
    for x in cvts(t) + h_store(t): A(x)
stamp(12)
ACC3 = 32; RING = 96; NS = 16
def p3_haddr():
    A(f"""s_lshl_b32 s66, s40, 1
    s_mul_i32 s66, s66, {112*1024}
    s_mul_i32 s67, s3, {28*1024}
    s_add_u32 s81, s66, s67
    s_lshr_b32 s67, s3, 1
    s_mul_i32 s67, s67, {112*1024}
    v_lshlrev_b32 v4, 4, v1
    v_add_u32 v2, s67, v4
    s_sub_u32 s67, {112*1024}, s67
    v_add_u32 v3, s67, v4""")
    srd(44, 60, S*F*2)
def p3_resid():
    A(f"""s_lshr_b32 s66, s3, 1
    s_and_b32 s67, s3, 1
    s_lshl_b32 s68, s40, 1
    s_add_u32 s68, s68, s66
    s_lshl_b32 s68, s68, 7
    s_lshl_b32 s69, s41, 1
    s_add_u32 s69, s69, s67
    s_lshl_b32 s76, s69, 17
    s_add_u32 s68, s68, s76
    v_lshrrev_b32 v12, 5, v1
    v_lshlrev_b32 v13, 14, v12
    v_and_b32 v14, 31, v1
    v_lshl_add_u32 v13, v14, 2, v13
    v_add_u32 v13, s68, v13""")
    for j in range(4):
        A(f"buffer_load_dword v{16+2*j}, v13, s[48:51], 0 offen sc1")
        A(f"v_add_u32 v14, 8192, v13")
        A(f"buffer_load_dword v{17+2*j}, v14, s[48:51], 0 offen sc1")
        if j < 3: A("v_add_u32 v13, 32768, v13")
    A(f"""s_lshl_b32 s69, s69, 6
    v_lshl_add_u32 v12, v12, 3, s69""")
    for j in range(4):
        A(f"global_load_dwordx2 v[{24+2*j}:{25+2*j}], v12, s[28:29] offset:{16*j}")
def p3_addrs():
    for sl in (1, 2, 3):
        A(f"""s_xor_b32 s66, s3, {sl}
        s_lshl_b32 s67, s66, 2
        s_add_u32 s67, s67, s3
        s_lshl_b32 s67, s67, 12
        v_add_u32 v{224+sl}, s67, v4
        s_lshl_b32 s67, s3, 2
        s_add_u32 s67, s67, s66
        s_lshl_b32 s67, s67, 12
        v_add_u32 v{228+sl}, s67, v4""")
    A(f"""s_lshr_b32 s66, s3, 1
    s_and_b32 s67, s3, 1
    s_lshl_b32 s68, s40, 1
    s_add_u32 s68, s68, s66
    s_lshl_b32 s68, s68, 5
    v_and_b32 v6, 31, v1
    v_add_u32 v6, s68, v6
    v_mul_u32_u24 v6, 896, v6
    s_lshl_b32 s69, s41, 1
    s_add_u32 s69, s69, s67
    s_lshl_b32 s69, s69, 6
    v_lshrrev_b32 v7, 5, v1
    v_lshl_add_u32 v6, v7, 4, v6
    v_add_u32 v6, s69, v6""")
def ldH(kk):
    slot = kk % NS
    if kk % 4 == 0:
        A(f"s_add_u32 s82, s81, {4096*(kk>>2)}")
    for tj in range(2):
        r = RING + 8*slot + 4*tj
        if E("NOLD3", 0): continue
        A(f"buffer_load_dwordx4 v[{r}:{r+3}], v{2+tj}, s[44:47], s82 offen offset:{1024*(kk&3)} sc1")
slow = []
if not SENT:
    A("s_waitcnt vmcnt(0)\ns_barrier")
    lw = A.label("s3w0")
    wave0_only(lw)
    A(f"s_add_u32 s66, s38, {CL_S3}")
    emit_signal("s66")
    A(f"{lw}:")
    p3_resid()
    stamp(13); rstamp(36)
    p3_haddr(); p3_addrs()
    lw = A.label("s3p")
    wave0_only(lw)
    A(f"s_add_u32 s66, s80, {CL_S3}\ns_lshl_b32 s66, s66, 7\nv_mov_b32 v10, s66")
    emit_poll("v10", "14")
    A(f"{lw}:\ns_barrier")
    stamp(14); rstamp(37)
    for kk in range(PD3): ldH(kk)
else:
    p3_haddr()
    lok = A.label("pfok")
    A(f"s_waitcnt vmcnt(4)\nv_cmp_ne_u32 vcc, 14, v249\ns_cbranch_vccz {lok}")
    emit_poll("v248", "14")
    A(f"{lok}:")
    stamp(13); rstamp(36)
    regs = [RING + 8*(kk % NS) + 4*tj for kk in range(PD3) for tj in range(2)]
    def chk0():
        A(f"v_max_u32 v10, v{regs[0]}, v{regs[1]}")
        for i in range(2, len(regs), 2):
            A(f"v_max3_u32 v10, v10, v{regs[i]}, v{regs[i+1]}")
        A("v_cmp_eq_u32 vcc, -1, v10")
    if E("RESFIRST", 1):
        p3_resid(); p3_addrs()
        for kk in range(PD3): ldH(kk)
    else:
        for kk in range(PD3): ldH(kk)
        p3_addrs(); p3_resid()
    stamp(14); rstamp(37)
    lp0 = A.label("h0"); ld0 = A.label("h0d")
    A(f"s_waitcnt vmcnt({0 if E('RESFIRST', 1) else 12})")
    chk0()
    A(f"s_cbranch_vccz {ld0}\ns_mov_b32 s68, {SPIN}\n{lp0}:")
    for kk in range(PD3): ldH(kk)
    A("s_waitcnt vmcnt(0)")
    chk0()
    A(f"""s_cbranch_vccz {ld0}
    s_sub_u32 s68, s68, 1
    s_cmp_lg_u32 s68, 0
    s_cbranch_scc1 {lp0}
    {ld0}:""")
    stamp(18)
for kk in range(28):
    A(f"s_waitcnt vmcnt({2*(min(kk+PD3-1, 27) - kk)})")
    slot = kk % NS
    if SENT and kk >= PD3:
        r0 = RING + 8*slot
        A(f"""v_max_u32 v10, v{r0}, v{r0+4}
        v_cmp_eq_u32 vcc, -1, v10
        s_cbranch_vccnz L_SLOW_{kk}
        L_BACK_{kk}:""")
        slow.append(kk)
    ms = []
    for tj in range(2):
        for dd in range(2):
            T_ = ACC3 + 16*(2*tj + dd)
            a = 4*(dd*28 + kk)
            r = RING + 8*slot + 4*tj
            c = "0" if kk == 0 else f"v[{T_}:{T_+15}]"
            ms.append(f"v_mfma_f32_32x32x16_bf16 v[{T_}:{T_+15}], a[{a}:{a+3}], v[{r}:{r+3}], {c}")
    A(ms[0]); A(ms[1])
    if kk + PD3 < 28: ldH(kk + PD3)
    A(ms[2]); A(ms[3])
    if SENT and kk == 2: A("s_waitcnt vmcnt(6)")
    if 2 <= kk < 10:
        p = kk - 2; j = p >> 1; c_ = p & 1; k = 4*j + 2*c_
        A(f"""v_lshlrev_b32 v{232+k}, 16, v{16+2*j+c_}
        v_and_b32 v{233+k}, s72, v{16+2*j+c_}
        v_lshlrev_b32 v8, 16, v{24+2*j+c_}
        v_and_b32 v9, s72, v{24+2*j+c_}
        v_add_f32 v{232+k}, v{232+k}, v8
        v_add_f32 v{233+k}, v{233+k}, v9""")
stamp(15)
A("s_nop 10")
for sl in (1, 2, 3):
    for q in range(4):
        r = ACC3 + 16*sl + 4*q
        A(f"ds_write_b128 v{224+sl}, v[{r}:{r+3}] offset:{1024*q}")
for k in range(0, 16, 2): A(f"v_pk_add_f32 {P2(ACC3+k)}, {P2(ACC3+k)}, {P2(232+k)}")
A("s_waitcnt lgkmcnt(0)\ns_barrier")
RB = 96
for sl in (1, 2, 3):
    for q in range(4):
        r = RB + 16*(sl-1) + 4*q
        A(f"ds_read_b128 v[{r}:{r+3}], v{228+sl} offset:{1024*q}")
for sl in (1, 2, 3):
    A(f"s_waitcnt lgkmcnt({4*(3-sl)})")
    for k in range(0, 16, 2): A(f"v_pk_add_f32 {P2(ACC3+k)}, {P2(ACC3+k)}, {P2(RB+16*(sl-1)+k)}")
for k in range(8): A(f"v_cvt_pk_bf16_f32 v{192+k}, v{ACC3+2*k}, v{ACC3+2*k+1}")
A("""s_nop 1
v_permlane32_swap_b32 v192, v194
v_permlane32_swap_b32 v193, v195
v_permlane32_swap_b32 v196, v198
v_permlane32_swap_b32 v197, v199
s_nop 1
""")
OF = "sc1" if E("OUTSC1", 0) else ("nt" if E("OUTNT", 0) else "")
A(f"""global_store_dwordx4 v6, v[192:195], s[30:31] {OF}
global_store_dwordx4 v6, v[196:199], s[30:31] offset:32 {OF}""")
stamp(16)
rstamp(38)
A("s_branch L_END")
for kk in slow:
    r0 = RING + 8*(kk % NS)
    A(f"""L_SLOW_{kk}:
    s_mov_b32 s68, {SPIN}
    s_add_u32 s83, s81, {4096*(kk>>2)}
    L_SLOWL_{kk}:
    buffer_load_dwordx4 v[{r0}:{r0+3}], v2, s[44:47], s83 offen offset:{1024*(kk&3)} sc1
    buffer_load_dwordx4 v[{r0+4}:{r0+7}], v3, s[44:47], s83 offen offset:{1024*(kk&3)} sc1
    s_waitcnt vmcnt(0)
    v_max_u32 v10, v{r0}, v{r0+4}
    v_cmp_eq_u32 vcc, -1, v10
    s_cbranch_vccz L_BACK_{kk}
    s_sub_u32 s68, s68, 1
    s_cmp_lg_u32 s68, 0
    s_cbranch_scc1 L_SLOWL_{kk}
    s_branch L_BACK_{kk}""")

A(f"""L_OTHER:
s_cmp_ge_u32 s2, {NWG}
s_cbranch_scc1 L_END
v_and_b32 v1, 63, v0
v_lshrrev_b32 v2, 6, v0
s_nop 0
v_readfirstlane_b32 s3, v2
s_waitcnt lgkmcnt(0)
s_cmp_lg_u32 s2, {NMAIN}
s_cbranch_scc1 L_PREF
v_mov_b32 v4, 0
v_mov_b32 v5, 0
v_mov_b32 v6, 0
v_mov_b32 v7, 0
v_lshlrev_b32 v2, 4, v0
global_store_dwordx4 v2, v[4:7], s[34:35] sc1
v_add_u32 v3, 4096, v2
global_store_dwordx4 v3, v[4:7], s[34:35] sc1
s_waitcnt vmcnt(0)
s_barrier
s_cmp_lg_u32 s3, 0
s_cbranch_scc1 L_END
v_mov_b32 v2, 0
v_mov_b32 v3, 1
s_mov_b64 exec, 1
global_store_dword v2, v3, s[32:33] sc1""")
A(f"""s_branch L_END
L_PREF:""")
A(f"""v_min_u32 v2, 8, v1
v_lshlrev_b32 v2, 21, v2
v_add_u32 v2, {0x100000}, v2
global_load_dword v8, v2, s[34:35]
v_mov_b32 v3, 0
global_load_dword v9, v3, s[30:31]
global_load_dword v10, v3, s[22:23]
global_load_dword v11, v3, s[26:27]
global_load_dword v12, v3, s[16:17]
global_load_dword v13, v3, s[24:25]
global_load_dword v14, v3, s[28:29]
global_load_dword v15, v3, s[18:19]
global_load_dword v16, v3, s[34:35]""")
if E("HW1", 0):
    A(f"""s_sub_u32 s66, s2, {NMAIN+1}
    s_mul_i32 s66, s66, {52*1024}
    s_lshl_b32 s67, s3, 10
    s_add_u32 s66, s66, s67
    v_lshl_add_u32 v2, v1, 4, s66""")
    srd(44, 22, D*F*2)
    A("s_mov_b32 s69, 0")
    for j in range(13):
        A(f"buffer_load_dwordx4 v[{20+4*j}:{23+4*j}], v2, s[44:47], s69 offen\ns_add_u32 s69, s69, 4096")
A("s_waitcnt vmcnt(0)")
A("""L_END:
s_endpgm
L_CODE_END:""")

errs = check_hazards(A.lines)
for e in errs: print("HAZARD:", e, file=sys.stderr)
hdr = open(f"cdna_kernels/{NAME}.s.ref").read().split(".amdgcn_target")[0]
hdr = "\n".join(l for l in hdr.splitlines() if not l.startswith("; @launch"))
out = [hdr.rstrip(), f"; @launch grid=({NWG},1,1) block=(256,1,1) lds={LDS_BYTES}",
 '.amdgcn_target "amdgcn-amd-amdhsa--gfx950"', ".text", f".globl {KN}", ".p2align 8", f".type {KN},@function", f"{KN}:",
 A.text(), '.section .rodata,"a"', ".p2align 6", f".amdhsa_kernel {KN}",
 "  .amdhsa_next_free_vgpr 512", "  .amdhsa_next_free_sgpr 100", "  .amdhsa_accum_offset 256", "  .amdhsa_group_segment_fixed_size 0",
 "  .amdhsa_kernarg_size 112", "  .amdhsa_user_sgpr_count 2", "  .amdhsa_user_sgpr_kernarg_segment_ptr 1", "  .amdhsa_system_sgpr_workgroup_id_x 1",
 "  .amdhsa_float_denorm_mode_32 3", ".end_amdhsa_kernel", ""]
dst = os.environ.get("OUT", f"cdna_kernels/{NAME}.s")
open(dst, "w").write("\n".join(out))
print("wrote", dst, "instructions:", sum(1 for l in A.lines if not l.endswith(':')), "hazards:", len(errs))
```

```python
import sys, os
sys.path.insert(0, os.path.dirname(os.path.abspath(__file__)))
from asmlib import *

NAME = "sequential_preLN__ssm_conv_h3__dense_activation_gelu__prompt"
E = lambda k, d: int(os.environ.get(k, str(d)))
STAMPS = E("STAMPS", 0)
SENT = E("SENT", 1)
PD2 = E("PD2", 11)
PD3 = E("PD3", 5)
W1THR = E("W1THR", 0)
NMAIN = 224
NHELP = E("NHELP", 8)
NWG = NMAIN + 1 + NHELP
S, D, F = 2048, 448, 1792
WS_STAMP = 0x80000
WS_UR = 0x100000
WS_X2 = 0x300000
WS_H2 = 0x500000
WS_ST = 0x700000
WS_W2F = 0x800000
WS_HF = 0xA00000
CL_S1 = 0; CL_AUX = 8; CL_S2 = 16; CL_S3 = 32
L_W1 = 0
L_X = 0x1C000
L_UT = L_X + 0x0000
L_XT = L_X + 0x2000
L_KA = L_X + 0x4000 + 64
L_UR = L_X + 0x8100
L_AUG = L_X + 0xA500
L_CNT = L_X + 0xB600
LDS_BYTES = 163840
SPIN = 2000000
KN = NAME + "_kernel"

A = Asm()

def stamp(i, wave=0):
    if not STAMPS: return
    l = A.label("st")
    A(f"""s_cmp_lg_u32 s3, {wave}
    s_cbranch_scc1 {l}
    s_memtime s[92:93]
    s_waitcnt lgkmcnt(0)
    s_lshl_b32 s94, s2, 8
    s_add_u32 s94, s94, {WS_STAMP + 4*i}
    v_mov_b32 v250, s94
    v_mov_b32 v251, s92
    s_mov_b64 s[90:91], exec
    s_mov_b64 exec, 1
    global_store_dword v250, v251, s[34:35]
    s_mov_b64 exec, s[90:91]
    {l}:""")

def rstamp(i, xcc=False):
    if not STAMPS: return
    l = A.label("rt")
    A(f"""s_cmp_lg_u32 s3, 0
    s_cbranch_scc1 {l}
    {"s_getreg_b32 s92, hwreg(HW_REG_XCC_ID)" if xcc else "s_memrealtime s[92:93]"}
    s_waitcnt lgkmcnt(0)
    s_lshl_b32 s94, s2, 8
    s_add_u32 s94, s94, {WS_STAMP + 4*i}
    v_mov_b32 v250, s94
    v_mov_b32 v251, s92
    s_mov_b64 s[90:91], exec
    s_mov_b64 exec, 1
    global_store_dword v250, v251, s[34:35]
    s_mov_b64 exec, s[90:91]
    {l}:""")

def wave0_only(label):
    A(f"s_cmp_lg_u32 s3, 0\ns_cbranch_scc1 {label}")

def emit_signal(line_sreg):
    A(f"""s_lshl_b32 s67, {line_sreg}, 7
    v_mov_b32 v245, s67
    v_mov_b32 v246, 1
    s_mov_b64 s[64:65], exec
    s_mov_b64 exec, 1
    global_atomic_add v245, v246, s[34:35] sc1
    s_mov_b64 exec, s[64:65]""")

def emit_poll(addr_v, target, base="s[34:35]", tmp="v247"):
    lp = A.label("poll"); done = A.label("polld")
    A(f"""s_mov_b32 s68, {SPIN}
    {lp}:
    global_load_dword {tmp}, {addr_v}, {base} sc1
    s_waitcnt vmcnt(0)
    v_cmp_ne_u32 vcc, {target}, {tmp}
    s_cbranch_vccz {done}
    {"s_sleep %d" % E("PSLEEP", 0) if E("PSLEEP", 0) else ""}
    s_sub_u32 s68, s68, 1
    s_cmp_lg_u32 s68, 0
    s_cbranch_scc1 {lp}
    {done}:""")

def ws_base(sreg, off):
    A(f"s_add_u32 s{sreg}, s34, {off}\ns_addc_u32 s{sreg+1}, s35, 0")

def srd(base, ptr, size):
    A(f"s_mov_b32 s{base}, s{ptr}\ns_mov_b32 s{base+1}, s{ptr+1}\ns_mov_b32 s{base+2}, {size}\ns_mov_b32 s{base+3}, 0x20000")

if STAMPS: A("s_memrealtime s[78:79]")
A(f"""s_load_dwordx16 s[8:23], s[0:1], 0""")
A("s_getpc_b64 s[88:89]\nL_PC:")
if E("PF0", 0):
    A(f"""v_lshlrev_b32 v6, 4, v0
    global_load_dwordx4 v[116:119], v6, s[88:89] offset:{E("PFOFF", 128)}""")
A(f"""s_load_dwordx8 s[24:31], s[0:1], 64
s_load_dwordx4 s[32:35], s[0:1], 96
s_cmp_ge_u32 s2, {NMAIN}
s_cbranch_scc1 L_OTHER
s_lshr_b32 s42, s2, 5
s_and_b32 s43, s2, 31
v_lshrrev_b32 v2, 3, v0
v_and_b32 v3, 7, v0
s_mul_i32 s66, s43, {64*896}
s_lshl_b32 s67, s42, 7
s_add_u32 s66, s66, s67
v_mul_u32_u24 v4, 1792, v2
v_lshl_add_u32 v4, v3, 4, v4
v_add_u32 v7, s66, v4
v_subrev_u32 v92, 2688, v7
v_subrev_u32 v93, 1792, v7
v_subrev_u32 v94, 896, v7
s_lshl_b32 s67, s42, 9
v_lshl_add_u32 v8, v3, 6, s67
s_mov_b32 s46, {S*D*2}
s_mov_b32 s47, 0x20000
s_waitcnt lgkmcnt(0)""")
if STAMPS: A("s_memrealtime s[96:97]")
A(f"""s_mov_b32 s44, s10
s_mov_b32 s45, s11
buffer_load_dwordx4 v[10:13], v92, s[44:47], 0 offen
buffer_load_dwordx4 v[14:17], v93, s[44:47], 0 offen
buffer_load_dwordx4 v[18:21], v94, s[44:47], 0 offen
buffer_load_dwordx4 v[22:25], v7, s[44:47], 0 offen
buffer_load_dwordx4 v[26:29], v7, s[44:47], 0 offen offset:896
global_load_dwordx4 v[30:33], v7, s[12:13]
global_load_dwordx4 v[34:37], v7, s[12:13] offset:896
global_load_dwordx4 v[46:49], v8, s[14:15]
global_load_dwordx4 v[50:53], v8, s[14:15] offset:16
global_load_dwordx4 v[54:57], v8, s[14:15] offset:32
global_load_dwordx4 v[58:61], v8, s[14:15] offset:48
global_load_dwordx4 v[38:41], v7, s[8:9]
global_load_dwordx4 v[42:45], v7, s[8:9] offset:896
v_and_b32 v1, 63, v0
v_lshrrev_b32 v5, 6, v0
s_mov_b32 s70, 0x05040100
s_mov_b32 s71, 0x07060302
v_readfirstlane_b32 s3, v5
s_mov_b32 s72, 0xffff0000
s_mov_b32 s73, 0x3f803f80
s_lshr_b32 s37, s2, 3""")
A(f"""s_lshr_b32 s66, s2, 1
s_mul_i32 s66, s66, {16*896}
s_and_b32 s67, s2, 1
s_mul_i32 s67, s67, 448
s_add_u32 s66, s66, s67
s_mov_b32 s67, 2341
v_mul_lo_u32 v110, v0, s67
v_lshrrev_b32 v110, 16, v110
v_mul_u32_u24 v111, 28, v110
v_sub_u32 v111, v0, v111
v_mul_u32_u24 v110, 896, v110
v_lshl_add_u32 v110, v111, 4, v110
v_add_u32 v110, s66, v110
v_add_u32 v112, 256, v0
v_mul_lo_u32 v113, v112, s67
v_lshrrev_b32 v113, 16, v113
v_mul_u32_u24 v111, 28, v113
v_sub_u32 v111, v112, v111
v_mul_u32_u24 v113, 896, v113
v_lshl_add_u32 v113, v111, 4, v113
v_add_u32 v113, s66, v113
s_lshl_b32 s66, s37, 10
s_min_u32 s66, s66, L_CODE_END-{KN}-1024
v_lshl_add_u32 v114, v1, 4, s66
s_lshl_b32 s69, s3, 10
s_add_u32 m0, s69, {L_W1}
s_nop 0
global_load_lds_dwordx4 v110, s[26:27]""")
l3 = A.label("x3"); lx = A.label("xd")
A(f"""s_cmp_eq_u32 s3, 3
s_cbranch_scc1 {l3}
s_add_u32 m0, m0, 4096
s_nop 0
global_load_lds_dwordx4 v113, s[26:27]
s_branch {lx}
{l3}:
s_sub_u32 s88, s88, L_PC-{KN}
s_subb_u32 s89, s89, 0
global_load_dwordx4 v[116:119], v114, s[88:89]
{lx}:""")
lns = A.label("nost")
A(f"""s_mov_b32 s76, 0
s_cmp_lt_u32 s3, 2
s_cbranch_scc1 {lns}""")
srd(48, 16, D*S*2)
A(f"""v_lshlrev_b32 v115, 4, v1
s_sub_u32 s66, s3, 2
s_lshl_b32 s67, s2, 1
s_add_u32 s67, s67, s66
s_lshl_b32 s67, s67, 12
s_load_dword s77, s[16:17], s67
s_mul_i32 s66, s66, 8320
s_add_u32 m0, s66, {L_KA}
s_add_u32 s79, s66, {L_KA + 4160 - 4}""")
for j in range(4):
    A(f"s_nop 0\nbuffer_load_dwordx4 v115, s[48:51], s67 offen lds\ns_add_u32 m0, m0, 1024\ns_add_u32 s67, s67, 1024")
A(f"s_add_u32 m0, m0, {4160-4096}\ns_sub_u32 s67, s67, {4096-2}")
for j in range(4):
    A(f"s_nop 0\nbuffer_load_dwordx4 v115, s[48:51], s67 offen lds\ns_add_u32 m0, m0, 1024\ns_add_u32 s67, s67, 1024")
A(f"""s_cmp_lt_u32 s42, 4
s_cbranch_scc0 {lns}
s_mov_b32 s76, 1
s_lshl_b32 s66, s43, 6
s_lshl_b32 s67, s42, 4
s_add_u32 s66, s66, s67
s_sub_u32 s67, s3, 2
s_lshl_b32 s67, s67, 3
s_add_u32 s66, s66, s67
v_lshrrev_b32 v120, 3, v1
v_add_u32 v120, s66, v120
v_mul_u32_u24 v121, 896, v120
v_and_b32 v122, 7, v1
v_lshl_add_u32 v121, v122, 4, v121""")
for i in range(7):
    A(f"global_load_dwordx4 v[{64+4*i}:{67+4*i}], v121, s[8:9] offset:{128*i}")
A(f"{lns}:")
ws_base(52, WS_UR); ws_base(54, WS_X2); ws_base(56, WS_H2); ws_base(58, WS_ST); ws_base(60, WS_HF); ws_base(62, WS_W2F)
stamp(0)
rstamp(30)
rstamp(31, True)
if STAMPS:
    for (i, r) in ((28, 78), (29, 96)):
        l = A.label("rt0")
        A(f"""s_cmp_lg_u32 s3, 0
        s_cbranch_scc1 {l}
        s_lshl_b32 s94, s2, 8
        s_add_u32 s94, s94, {WS_STAMP + 4*i}
        v_mov_b32 v250, s94
        v_mov_b32 v251, s{r}
        s_mov_b64 s[90:91], exec
        s_mov_b64 exec, 1
        global_store_dword v250, v251, s[34:35]
        s_mov_b64 exec, s[90:91]
        {l}:""")
A(f"""v_sub_u32 v96, 31, v2
v_lshrrev_b32 v97, 2, v96
v_xor_b32 v97, v97, v3
v_lshlrev_b32 v97, 4, v97
v_and_b32 v96, 3, v96
v_lshl_add_u32 v97, v96, 2, v97
v_lshl_add_u32 v95, v3, 10, v97
v_add_u32 v95, {L_UT}, v95
v_lshrrev_b32 v96, 1, v2
v_xor_b32 v96, v96, v3
v_lshlrev_b32 v96, 4, v96
v_and_b32 v97, 1, v2
v_lshl_add_u32 v96, v97, 3, v96
v_lshl_add_u32 v96, v3, 10, v96
v_add_u32 v96, {L_XT}, v96
v_lshrrev_b32 v98, 6, v0
v_xor_b32 v99, v3, v98
v_lshlrev_b32 v99, 4, v99
v_lshl_add_u32 v100, v2, 7, v99
v_add_u32 v100, {L_UT}, v100
s_lshl_b32 s66, s42, 18
s_sub_u32 s67, 31, s43
s_lshl_b32 s67, s67, 7
s_add_u32 s66, s66, s67
v_lshlrev_b32 v102, 12, v2
v_lshl_add_u32 v102, v3, 4, v102
v_add_u32 v102, s66, v102
v_and_b32 v104, 15, v0
v_lshrrev_b32 v105, 4, v0
v_xor_b32 v106, v104, v98
v_lshlrev_b32 v106, 4, v106
v_lshl_add_u32 v106, v105, 8, v106
v_add_u32 v106, {L_XT}, v106
s_lshl_b32 s66, s42, 18
s_lshl_b32 s67, s43, 8
s_add_u32 s66, s66, s67
v_lshlrev_b32 v108, 13, v105
v_lshl_add_u32 v108, v104, 4, v108
v_add_u32 v108, s66, v108
v_mov_b32 v101, {L_CNT}
v_mov_b32 v103, 0
ds_write2_b32 v101, v103, v103 offset1:1""")
A(f"""v_lshrrev_b32 v123, 5, v1
v_bfe_u32 v124, v1, 2, 2
v_lshl_add_u32 v123, v123, 2, v124
v_mul_u32_u24 v123, 448, v123
v_bfe_u32 v124, v1, 4, 1
v_lshl_add_u32 v123, v124, 5, v123
v_and_b32 v124, 3, v1
v_lshl_add_u32 v123, v124, 3, v123
s_lshl_b32 s66, s3, 6
s_add_u32 s66, s66, {L_W1}
v_add_u32 v123, s66, v123
s_and_b32 s66, s2, 1
s_mul_i32 s66, s66, 7
s_add_u32 s66, s66, s3
s_mul_i32 s66, s66, 112
s_lshr_b32 s67, s2, 1
s_add_u32 s66, s66, s67
s_lshl_b32 s66, s66, 10
v_lshl_add_u32 v124, v1, 4, s66""")
def p0wait(base):
    l1 = A.label("wa"); l2 = A.label("wb"); l3_ = A.label("wc")
    A(f"""s_cmp_ge_u32 s3, 2
    s_cbranch_scc1 {l3_}
    s_waitcnt vmcnt({base})
    s_branch {l2}
    {l3_}:
    s_cmp_eq_u32 s76, 0
    s_cbranch_scc1 {l1}
    s_waitcnt vmcnt({base+15})
    s_branch {l2}
    {l1}:
    s_waitcnt vmcnt({base+8})
    {l2}:""")
A(f"""s_and_b32 s36, s2, 7
s_mul_i32 s66, s37, 37
s_lshr_b32 s66, s66, 8
s_mul_i32 s67, s66, 7
s_sub_u32 s41, s37, s67
s_lshl_b32 s40, s36, 2
s_add_u32 s40, s40, s66
s_lshr_b32 s80, s40, 1
s_lshr_b32 s38, s36, 1
s_lshl_b32 s38, s38, 2
s_add_u32 s38, s38, s66
s_and_b32 s39, s36, 1
s_mul_i32 s39, s39, 7
s_add_u32 s39, s39, s41""")
p0wait(4)
stamp(26)
rstamp(39)
K = lambda j, p: f"v{10 + 4*j + p}"
T = 126
for p in range(4):
    seq = []
    for half in range(2):
        i = 2*p + half
        sel = "s70" if half == 0 else "s71"
        t = T + 8*half
        seq.append([
            f"v_perm_b32 v{t}, {K(2,p)}, {K(3,p)}, {sel}",
            f"v_perm_b32 v{t+1}, {K(0,p)}, {K(1,p)}, {sel}",
            f"v_perm_b32 v{t+2}, {K(3,p)}, {K(4,p)}, {sel}",
            f"v_perm_b32 v{t+3}, {K(1,p)}, {K(2,p)}, {sel}",
            f"v_dot2_f32_bf16 v{t+4}, v{t}, v{46+2*i}, 0",
            f"v_dot2_f32_bf16 v{t+5}, v{t+2}, v{46+2*i}, 0",
            f"v_dot2_f32_bf16 v{t+4}, v{t+1}, v{47+2*i}, v{t+4}",
            f"v_dot2_f32_bf16 v{t+5}, v{t+3}, v{47+2*i}, v{t+5}",
            (f"v_lshlrev_b32 v{t+6}, 16, v{30+p}" if half == 0 else f"v_and_b32 v{t+6}, s72, v{30+p}"),
            (f"v_lshlrev_b32 v{t+7}, 16, v{34+p}" if half == 0 else f"v_and_b32 v{t+7}, s72, v{34+p}"),
            f"v_mul_f32 v{t+4}, v{t+4}, v{t+6}",
            f"v_mul_f32 v{t+5}, v{t+5}, v{t+7}",
            f"v_cvt_pk_bf16_f32 v{t+4}, v{t+5}, v{t+4}",
            f"ds_write_b32 v95, v{t+4} offset:{128*i}",
        ])
    for k in range(len(seq[0])):
        A(seq[0][k]); A(seq[1][k])
stamp(27)
rstamp(40)
p0wait(0)
rstamp(41)
for p in range(4):
    A(f"ds_write2_b32 v96, v{38+p}, v{42+p} offset0:{64*p} offset1:{64*p+1}")
A("""s_waitcnt lgkmcnt(0)
s_barrier""")
ldmaw = A.label("dmaw"); laddr = A.label("w1addr"); ljoin = A.label("w1join")
A(f"s_cmp_ge_u32 s3, 2\ns_cbranch_scc1 {ldmaw}")
A("v_mov_b32 v248, 0\nglobal_load_dword v249, v248, s[32:33] sc1")
for q in range(4):
    if q == 0: A("ds_read_b128 v[10:13], v100")
    else: A(f"v_xor_b32 v110, {32*q}, v100\nds_read_b128 v[{10+4*q}:{13+4*q}], v110 offset:{2048*q}")
for q in range(4):
    if q == 0: A("ds_read_b128 v[26:29], v106")
    else: A(f"v_xor_b32 v111, {32*q}, v106\nds_read_b128 v[{26+4*q}:{29+4*q}], v111 offset:{2048*q}")
for q in range(4):
    A(f"s_waitcnt lgkmcnt({7-q})\nglobal_store_dwordx4 v102, v[{10+4*q}:{13+4*q}], s[52:53] sc1")
    if q < 3: A("v_add_u32 v102, 65536, v102")
for j in range(4):
    A(f"ds_read_b64_tr_b16 v[{42+4*j}:{43+4*j}], v123 offset:{128*j}\nds_read_b64_tr_b16 v[{44+4*j}:{45+4*j}], v123 offset:{128*j+3584}")
A("s_waitcnt lgkmcnt(8)")
for q in range(4):
    A(f"global_store_dwordx4 v108, v[{26+4*q}:{29+4*q}], s[54:55] sc1")
    if q < 3: A("v_add_u32 v108, 65536, v108")
A("s_waitcnt lgkmcnt(0)")
lsk = A.label("w2s"); lsk2 = A.label("w2t")
for j in range(3):
    A(f"global_store_dwordx4 v124, v[{42+4*j}:{45+4*j}], s[62:63] sc1")
    A(f"v_add_u32 v124, {2*112*1024}, v124")
A(f"""s_cmp_eq_u32 s3, 1
s_cbranch_scc1 {lsk}
global_store_dwordx4 v124, v[54:57], s[62:63] sc1
s_branch {lsk2}
{lsk}:
v_subrev_u32 v124, {2*112*1024}, v124
s_nop 0
global_store_dwordx4 v124, v[50:53], s[62:63] sc1
{lsk2}:
s_barrier""")
stamp(1)
def lds_count_signal(off, last, build_addr):
    ln = A.label("nl")
    A(f"""v_mov_b32 v110, 1
    s_mov_b64 s[64:65], exec
    s_mov_b64 exec, 1
    ds_add_rtn_u32 v111, v101, v110 offset:{off}
    s_waitcnt lgkmcnt(0)
    v_readfirstlane_b32 s66, v111
    s_mov_b64 exec, s[64:65]
    s_cmp_eq_u32 s66, {last}
    s_cbranch_scc0 {ln}""")
    lio = A.label("initok")
    A(f"v_cmp_ne_u32 vcc, 1, v249\ns_cbranch_vccz {lio}")
    emit_poll("v248", 1, base="s[32:33]")
    A(f"v_mov_b32 v249, 1\n{lio}:")
    A(build_addr)
    emit_signal("s66")
    A(f"{ln}:")
A("s_waitcnt vmcnt(8)")
lds_count_signal(0, 1, "s_mov_b32 s66, s42")
stamp(2)
rstamp(32)
A("s_waitcnt vmcnt(0)")
lds_count_signal(4, 3, f"s_add_u32 s66, s36, {CL_AUX}")
A(f"""v_lshrrev_b32 v10, 5, v1
v_mul_u32_u24 v10, 4608, v10
v_and_b32 v11, 31, v1
v_lshl_add_u32 v10, v11, 4, v10
v_add_u32 v10, {L_UR + 4096}, v10
v_mov_b32 v12, 0
v_mov_b32 v13, 0
v_mov_b32 v14, 0
v_mov_b32 v15, 0
ds_write_b128 v10, v[12:15]
s_branch {laddr}""")
A(f"{ldmaw}:")
srd(44, 22, D*F*2)
A(f"""v_lshrrev_b32 v11, 4, v1
v_lshlrev_b32 v12, 2, v11
v_and_b32 v13, 15, v1
v_xor_b32 v12, v12, v13
v_lshlrev_b32 v12, 4, v12
v_mul_u32_u24 v11, 3584, v11
v_add_u32 v11, v11, v12
s_lshl_b32 s66, s39, 8
v_add_u32 v11, s66, v11
v_mov_b32 v13, s79
s_lshl_b32 s77, s77, 16
v_mov_b32 v12, s77
ds_write_b32 v13, v12
v_mov_b32 v248, 0
global_load_dword v249, v248, s[32:33] sc1
s_barrier""")
lns = A.label("nost2")
A(f"s_cmp_eq_u32 s76, 0\ns_cbranch_scc1 {lns}")
b = 64
A("s_waitcnt vmcnt(1)")
A(f"v_dot2_f32_bf16 v16, v{b}, s73, 0\nv_dot2_f32_bf16 v17, v{b}, v{b}, 0\nv_dot2_f32_bf16 v18, v{b+1}, s73, 0\nv_dot2_f32_bf16 v19, v{b+1}, v{b+1}, 0")
for i in range(2, 28, 2):
    A(f"v_dot2_f32_bf16 v16, v{b+i}, s73, v16\nv_dot2_f32_bf16 v17, v{b+i}, v{b+i}, v17\nv_dot2_f32_bf16 v18, v{b+i+1}, s73, v18\nv_dot2_f32_bf16 v19, v{b+i+1}, v{b+i+1}, v19")
A("""s_nop 2
v_add_f32 v16, v16, v18
v_add_f32 v17, v17, v19
s_nop 1
v_add_f32_dpp v16, v16, v16 quad_perm:[1,0,3,2] row_mask:0xf bank_mask:0xf
v_add_f32_dpp v17, v17, v17 quad_perm:[1,0,3,2] row_mask:0xf bank_mask:0xf
s_nop 1
v_add_f32_dpp v16, v16, v16 quad_perm:[2,3,0,1] row_mask:0xf bank_mask:0xf
v_add_f32_dpp v17, v17, v17 quad_perm:[2,3,0,1] row_mask:0xf bank_mask:0xf
s_nop 1
v_add_f32_dpp v16, v16, v16 row_half_mirror row_mask:0xf bank_mask:0xf
v_add_f32_dpp v17, v17, v17 row_half_mirror row_mask:0xf bank_mask:0xf
s_mov_b32 s66, 0x3b124925
v_mul_f32 v16, s66, v16
v_mul_f32 v17, s66, v17
v_fma_f32 v17, -v16, v16, v17
v_add_f32 v17, 0x3727c5ac, v17
v_rsq_f32 v17, v17
v_lshlrev_b32 v120, 2, v120
v_cmp_eq_u32 vcc, 0, v122
v_mul_f32 v18, -v16, v17
v_add_u32 v121, 8192, v120
s_and_saveexec_b64 s[64:65], vcc
global_store_dword v120, v17, s[58:59] sc1
global_store_dword v121, v18, s[58:59] sc1
s_mov_b64 exec, s[64:65]""")
A(f"{lns}:\ns_waitcnt vmcnt(0)")
lds_count_signal(4, 3, f"s_add_u32 s66, s36, {CL_AUX}")
lg = A.label("gate")
A(f"""{lg}:
ds_read_b64 v[12:13], v101
s_waitcnt lgkmcnt(0)
v_add_u32 v12, v12, v13
s_nop 0
v_readfirstlane_b32 s66, v12
s_nop 0
s_cmp_lt_u32 s66, 6
s_cbranch_scc1 {lg}
s_sub_u32 s66, s3, 2
s_mul_i32 s66, s66, 56
s_mul_i32 s67, s66, 14336
s_lshl_b32 s66, s66, 10
s_add_u32 m0, s66, {L_W1}
s_mov_b32 s69, 14""")
lp = A.label("w1l")
A(f"{lp}:")
for j in range(4):
    if E("NOW1", 0): continue
    A(f"s_nop 0\nbuffer_load_dwordx4 v11, s[44:47], s67 offen lds\ns_add_u32 m0, m0, 1024\ns_add_u32 s67, s67, 14336")
A(f"""s_sub_u32 s69, s69, 1
s_cmp_lg_u32 s69, 0
s_cbranch_scc1 {lp}""")
stamp(24, 3)
if E("FLOODWAIT", 0):
    A("s_waitcnt vmcnt(0)")
    stamp(25, 3)
A(f"{laddr}:")
XV, STV = 170, 178
A(f"""s_lshl_b32 s66, s2, 2
s_load_dword s74, s[18:19], s66
v_and_b32 v194, 15, v1
v_lshrrev_b32 v195, 4, v1
v_lshlrev_b32 v196, 4, v194
v_lshl_add_u32 v196, v195, 2, v196
s_lshl_b32 s66, s3, 9
v_add_u32 v196, s66, v196
v_lshlrev_b32 v197, 2, v196
v_mov_b32 v198, v197
s_lshl_b32 s66, s2, 13
v_add_u32 v197, s66, v197
s_lshr_b32 s66, s3, 1
s_and_b32 s67, s3, 1
s_mul_i32 s68, s66, 8320
s_lshl_b32 s69, s67, 8
s_sub_u32 s68, s68, s69
s_add_u32 s68, s68, {L_KA - 32}
v_add_u32 v199, 1, v194
v_lshrrev_b32 v199, 1, v199
v_lshl_add_u32 v199, v195, 2, v199
v_lshlrev_b32 v199, 2, v199
v_and_b32 v200, 1, v194
v_cmp_eq_u32 vcc, 0, v200
v_mov_b32 v201, 4160
v_add_u32 v199, s68, v199
v_cndmask_b32 v201, 0, v201, vcc
v_add_u32 v199, v199, v201
v_add_u32 v200, 1024, v199
v_add_u32 v201, 2048, v199
v_add_u32 v202, 3072, v199
s_mul_i32 s68, s66, 4608
s_sub_u32 s68, s68, s69
s_add_u32 s68, s68, {L_UR + 736}
v_lshlrev_b32 v203, 5, v194
v_sub_u32 v203, s68, v203
v_lshl_add_u32 v203, v195, 4, v203
s_cmp_eq_u32 s67, 0
s_cselect_b32 s68, 64, 0
v_lshl_add_u32 v204, v195, 3, v194
v_add_u32 v204, s68, v204
s_mov_b32 s75, 0xffff""")
for k in range(4):
    A(f"""v_cmp_le_u32 vcc, {15-2*k}, v204
    v_mov_b32 v205, s75
    s_nop 0
    v_cndmask_b32 v{206+k}, 0, v205, vcc
    v_cmp_le_u32 vcc, {14-2*k}, v204
    v_mov_b32 v205, s72
    s_nop 0
    v_cndmask_b32 v205, 0, v205, vcc
    v_or_b32 v{206+k}, v{206+k}, v205""")
A(f"""v_lshlrev_b32 v211, 4, v1
s_lshl_b32 s66, s3, 13
v_add_u32 v212, s66, v211
v_add_u32 v212, {L_X}, v212
s_lshl_b32 s66, s3, 11
v_add_u32 v213, s66, v211
v_add_u32 v213, {L_X}, v213
s_lshl_b32 s66, s3, 10
s_sub_u32 s66, {L_UR + 4088 - 512}, s66
v_lshlrev_b32 v210, 5, v194
v_lshl_add_u32 v210, v195, 3, v210
v_sub_u32 v210, s66, v210
v_and_b32 v214, 7, v1
v_add_u32 v214, {CL_AUX}, v214
v_lshlrev_b32 v214, 7, v214
s_mul_i32 s66, s41, {2*112*1024}
s_mul_i32 s67, s3, {28*1024}
s_add_u32 s81, s66, s67
s_and_b32 s67, s3, 1
s_mul_i32 s67, s67, {112*1024}
s_add_u32 s95, s81, {112*1024}
s_sub_u32 s95, s95, s67
s_add_u32 s81, s81, s67""")
srd(84, 62, F*D*2)
ACC = 138
for j in range(32): A(f"v_mov_b32 v{ACC+j}, 0")
lnw0 = A.label("w1n0")
A(f"s_cmp_lg_u32 s3, 0\ns_cbranch_scc1 {lnw0}")
lio0 = A.label("init0")
A(f"v_cmp_ne_u32 vcc, 1, v249\ns_cbranch_vccz {lio0}")
emit_poll("v248", 1, base="s[32:33]")
A(f"{lio0}:")
A(f"s_lshl_b32 s66, s42, 7\nv_mov_b32 v16, s66")
emit_poll("v16", "32")
stamp(3)
A(f"""v_lshlrev_b32 v10, 4, v1
s_lshl_b32 s66, s2, 13
v_add_u32 v10, s66, v10
s_mov_b32 m0, {L_UR}""")
for c in range(2):
    for j in range(4):
        A(f"s_nop 0\nglobal_load_lds_dwordx4 v10, s[52:53] sc1\nv_add_u32 v10, 1024, v10\ns_add_u32 m0, m0, {1024 if j < 3 else 4608-3072}")
A(f"""s_waitcnt vmcnt(0) lgkmcnt(0)
s_branch {ljoin}
{lnw0}:
s_waitcnt lgkmcnt(0)
s_cmp_eq_u32 s3, 1
s_cbranch_scc1 {ljoin}
s_waitcnt vmcnt({0 if E("NOW1", 0) else 56}) lgkmcnt(0)
{ljoin}:
s_barrier""")
stamp(4)
rstamp(33)

AB = [10, 42]; UB = [74, 106]
def conv_loads(s, buf):
    L = []
    for m in range(8):
        L.append(f"ds_read_b128 v[{UB[buf]+4*m}:{UB[buf]+4*m+3}], v203 offset:{64*(59-8*m-s)}")
    for n in range(8):
        base = 199 + (n >> 1)
        o = (n & 1)*128 + 16*(7-s)
        L.append(f"ds_read2_b32 v[{AB[buf]+4*n}:{AB[buf]+4*n+1}], v{base} offset0:{o} offset1:{o+1}")
        L.append(f"ds_read2_b32 v[{AB[buf]+4*n+2}:{AB[buf]+4*n+3}], v{base} offset0:{o+2} offset1:{o+3}")
    return L
def w2f_load(dd, kk):
    L = []
    if kk % 4 == 0:
        L += [f"s_add_u32 s82, {'s81' if dd == 0 else 's95'}, {4096*(kk>>2)}"]
    a = 4*(dd*28 + kk)
    L += [f"buffer_load_dwordx4 a[{a}:{a+3}], v211, s[84:87], s82 offen offset:{1024*(kk&3)} sc1"]
    return L
L0 = conv_loads(0, 0)
L0 = [L0[0]] + L0[8:] + L0[1:8]
for l in L0: A(l)
A(f"""global_load_dword v215, v214, s[34:35] sc1""")
stamp(19)
nw = 0
npf = 0
for s in range(4):
    buf = s & 1
    nxt = conv_loads(s+1, buf ^ 1) if s < 3 else []
    if s == 3:
        for k in range(4): A(f"v_and_b32 v{AB[buf]+k}, v{206+k}, v{AB[buf]+k}")
        A("s_nop 1")
    if s == E('AUXS', 1):
        lok = A.label("auxok"); lp = A.label("auxp")
        A(f"""s_cmp_lg_u32 s3, 0
        s_cbranch_scc1 {lok}
        s_waitcnt vmcnt(0)
        v_cmp_ne_u32 vcc, 28, v215
        s_cbranch_vccz {lok}""")
        emit_poll("v214", "28")
        A(f"""{lok}:
        s_barrier
        v_add_u32 v216, 8192, v198
        global_load_dwordx4 v[{XV}:{XV+3}], v197, s[54:55] sc1
        global_load_dwordx4 v[{XV+4}:{XV+7}], v197, s[54:55] offset:1024 sc1
        global_load_dwordx4 v[{STV}:{STV+3}], v198, s[58:59] sc1
        global_load_dwordx4 v[{STV+4}:{STV+7}], v216, s[58:59] sc1
        global_load_dwordx4 v[{STV+8}:{STV+11}], v198, s[58:59] offset:1024 sc1
        global_load_dwordx4 v[{STV+12}:{STV+15}], v216, s[58:59] offset:1024 sc1""")
    pairs = [(m, n) for m in range(8) for n in range(8 - m)]
    for idx, (m, n) in enumerate(pairs):
        j = m + n
        if s == 0 and m == 0:
            A(f"s_waitcnt lgkmcnt({min(15, 24 - 3 - 2*n)})")
        if s == 0 and n == 0 and 1 <= m <= 2:
            A(f"s_waitcnt lgkmcnt({(7 - m) if m == 1 else 0})")
        A(f"v_mfma_f32_16x16x32_bf16 v[{ACC+4*j}:{ACC+4*j+3}], v[{AB[buf]+4*n}:{AB[buf]+4*n+3}], v[{UB[buf]+4*m}:{UB[buf]+4*m+3}], v[{ACC+4*j}:{ACC+4*j+3}]")
        if s == 0:
            if idx >= 15:
                k0 = (idx - 15) * 24 // 21; k1 = (idx - 14) * 24 // 21
                for q in nxt[k0:k1]: A(q)
        elif idx < len(nxt): A(nxt[idx])
        if s >= 1 and idx % E("W2SP", 5) == 1 and nw < 28:
            for l in w2f_load(0, nw): A(l)
            nw += 1

    if s < 3: A("s_waitcnt lgkmcnt(0)")

stamp(5)
A("s_barrier")
for j in range(8):
    A(f"ds_write_b128 v212, v[{ACC+4*j}:{ACC+4*j+3}] offset:{1024*j}")
    if nw < 28:
        for l in w2f_load(0, nw): A(l)
        nw += 1
while nw < 28:
    for l in w2f_load(0, nw): A(l)
    nw += 1
A("s_waitcnt lgkmcnt(0)\ns_barrier")
PB = 10
for jj in range(2):
    for w_ in range(4):
        A(f"ds_read_b128 v[{PB+16*jj+4*w_}:{PB+16*jj+4*w_+3}], v213 offset:{8192*w_+1024*jj}")
for jj in range(2):
    for c in range(2):
        A(f"ds_read_b64 v[{42+4*jj+2*c}:{43+4*jj+2*c}], v210 offset:{(512 if jj == 0 else 0) + 4608*c}")
A(f"""s_and_b32 s75, s74, s72
s_lshl_b32 s74, s74, 16
s_waitcnt vmcnt({0 if E("NOW2A", 0) else 28})""")
P2 = lambda r: f"v[{r}:{r+1}]"
for jj in range(2):
    P = PB + 16*jj
    X = XV + 4*jj; SA = STV + 8*jj; SB = SA + 4
    t = 50
    for c in range(2):
        q = t + 8*c
        for i in range(4):
            A(f"v_lshlrev_b32 v{q+i}, 16, v{X+i}" if c == 0 else f"v_and_b32 v{q+i}, s72, v{X+i}")
        for i in (0, 2):
            A(f"v_pk_fma_f32 {P2(q+4+i)}, {P2(q+i)}, {P2(SA+i)}, {P2(SB+i)}")
    A(f"s_waitcnt lgkmcnt({8 if jj == 0 else 0})")
    if jj == 0: A("s_waitcnt lgkmcnt(2)")
    for i in (0, 2):
        A(f"v_pk_add_f32 {P2(P+i)}, {P2(P+i)}, {P2(P+4+i)}\nv_pk_add_f32 {P2(P+8+i)}, {P2(P+8+i)}, {P2(P+12+i)}")
    for c in range(2):
        U = 42 + 4*jj + 2*c
        Y = P + 8*c
        u = 66 + 4*c
        A(f"v_and_b32 v{u}, s72, v{U+1}\nv_lshlrev_b32 v{u+1}, 16, v{U+1}\nv_and_b32 v{u+2}, s72, v{U}\nv_lshlrev_b32 v{u+3}, 16, v{U}")
        sel = "op_sel:[0,0,0] op_sel_hi:[1,0,1]" if c == 0 else "op_sel:[0,1,0] op_sel_hi:[1,1,1]"
        for i in (0, 2):
            A(f"v_pk_fma_f32 {P2(Y+i)}, {P2(u+i)}, s[74:75], {P2(Y+i)} {sel}")
        q = t + 8*c
        for i in (0, 2):
            A(f"v_pk_fma_f32 {P2(Y+i)}, {P2(q+4+i)}, {P2(Y+i)}, {P2(q+i)}")
    for i in range(4):
        A(f"v_cvt_pk_bf16_f32 v{74+4*jj+i}, v{P+i}, v{P+8+i}")
    A(f"global_store_dwordx4 v197, v[{74+4*jj}:{77+4*jj}], s[56:57] offset:{1024*jj} sc1")
stamp(6)
A("s_waitcnt vmcnt(0)\ns_barrier")
lw = A.label("s2w0")
wave0_only(lw)
A(f"s_add_u32 s66, s36, {CL_S2}")
emit_signal("s66")
A(f"{lw}:")
stamp(7)
rstamp(34)

A(f"""v_lshrrev_b32 v10, 5, v1
v_bfe_u32 v11, v1, 2, 2
v_lshl_add_u32 v10, v10, 3, v11
v_lshlrev_b32 v10, 8, v10
v_bfe_u32 v12, v1, 4, 1
v_bfe_u32 v13, v1, 1, 1
v_lshl_add_u32 v12, v12, 1, v13
v_lshlrev_b32 v12, 4, v12
v_add_u32 v10, v10, v12
v_and_b32 v12, 1, v1
v_lshl_add_u32 v10, v12, 3, v10
s_lshl_b32 s66, s3, 12
v_add_u32 v10, s66, v10
v_lshlrev_b32 v11, 6, v11""")
for ft in range(4):
    A(f"v_xor_b32 v{2+ft}, {64*ft}, v11\nv_add_u32 v{2+ft}, v{2+ft}, v10\nv_add_u32 v{6+ft}, 65536, v{2+ft}")
A(f"""v_lshlrev_b32 v12, 4, v1
v_add_u32 v12, s66, v12
v_add_u32 v13, 65536, v12
s_lshl_b32 s66, s39, 7
s_lshl_b32 s67, s3, 5
s_add_u32 s66, s66, s67
v_and_b32 v14, 31, v1
v_add_u32 v14, s66, v14
v_lshlrev_b32 v14, 1, v14
global_load_ushort v15, v14, s[24:25]""")
CB = 16
def cv_reads(i):
    L = []
    for ft in range(4):
        base, off = (2+ft, 16384*i) if i < 4 else (6+ft, 16384*(i-4))
        r = CB + 16*i + 4*ft
        L += [f"ds_read_b64_tr_b16 v[{r}:{r+1}], v{base} offset:{off}", f"ds_read_b64_tr_b16 v[{r+2}:{r+3}], v{base} offset:{off+1024}"]
    return L
def cv_writes(i):
    base, off = (12, 16384*i) if i < 4 else (13, 16384*(i-4))
    return [f"ds_write_b128 v{base}, v[{CB+16*i+4*ft}:{CB+16*i+4*ft+3}] offset:{off+1024*ft}" for ft in range(4)]
for l in cv_reads(0): A(l)
for i in range(7):
    if i < 6:
        for l in cv_reads(i+1): A(l)
        A("s_waitcnt lgkmcnt(8)")
    else:
        A("s_waitcnt lgkmcnt(0)")
    for l in cv_writes(i): A(l)
    for kk in range(4*i, 4*i+4):
        for l in w2f_load(1, kk): A(l)
A("s_waitcnt lgkmcnt(0)\ns_barrier")
A(f"""s_lshl_b32 s66, s3, 10
v_lshl_add_u32 v6, v1, 4, s66
v_add_u32 v7, 57344, v6""")
for half in range(2):
    base = "v6" if half == 0 else "v7"
    for k in range(14):
        A(f"ds_read_b128 v[{64+56*half+4*k}:{67+56*half+4*k}], {base} offset:{4096*k}")
    if half == 1: pass
for half in range(2):
    for k in range(14):
        idx = 14*half + k
        A(f"s_waitcnt lgkmcnt({min(15, 27-idx)})")
        for r in range(4):
            reg = 64+56*half+4*k+r
            if idx == 0:
                A(f"v_dot2_f32_bf16 v{42+r}, v{reg}, s73, 0")
            else:
                A(f"v_dot2_f32_bf16 v{42+r}, v{reg}, s73, v{42+r}")
A(f"""s_nop 2
v_add_f32 v42, v42, v43
v_add_f32 v44, v44, v45
s_nop 0
v_add_f32 v42, v42, v44
v_mov_b32 v43, v42
s_nop 1
v_permlane32_swap_b32 v42, v43
s_nop 1
v_add_f32 v42, v42, v43
v_cvt_pk_bf16_f32 v43, -v42, -v42
v_and_b32 v44, s72, v43
v_add_f32 v44, v42, v44
v_cvt_pk_bf16_f32 v44, -v44, -v44
s_waitcnt vmcnt(28)
v_perm_b32 v46, v44, v43, s70
v_perm_b32 v47, v15, v43, s70
v_mov_b32 v48, v15
v_mov_b32 v49, 0
v_cmp_gt_u32 vcc, 32, v1
v_lshlrev_b32 v50, 4, v1
s_lshl_b32 s66, s3, 10
s_add_u32 s66, s66, {L_AUG}
v_cndmask_b32 v46, 0, v46, vcc
v_cndmask_b32 v47, 0, v47, vcc
v_cndmask_b32 v48, 0, v48, vcc
v_add_u32 v50, s66, v50
ds_write_b128 v50, v[46:49]
v_lshrrev_b32 v10, 5, v1
v_lshlrev_b32 v2, 13, v10
v_and_b32 v11, 31, v1
v_lshl_add_u32 v2, v11, 4, v2
s_lshl_b32 s66, s38, 9
s_lshl_b32 s67, s3, 15
s_add_u32 s66, s66, s67
v_add_u32 v2, s66, v2
v_add_u32 v3, 15360, v2
v_lshlrev_b32 v4, 11, v10
v_lshl_add_u32 v4, v11, 2, v4
s_lshl_b32 s66, s3, 7
s_add_u32 s66, s66, {L_X}
v_add_u32 v4, s66, v4""")
srd(48, 56, S*D*2)
A(f"""v_lshlrev_b32 v6, 4, v1
v_add_u32 v7, 57344, v6
v_add_u32 v5, {L_AUG}, v6
s_mov_b32 s77, {'s39' if not E('NOROT2',0) else '0'}
s_lshl_b32 s78, s3, 11
s_add_u32 s78, s78, {L_X}
s_waitcnt lgkmcnt(0)""")
stamp(8)
lw = A.label("s2p")
wave0_only(lw)
A(f"v_and_b32 v16, 7, v1\nv_add_u32 v16, {CL_S2}, v16\nv_lshlrev_b32 v16, 7, v16\nv_mov_b32 v17, 28")
emit_poll("v16", "v17")
A(f"{lw}:\ns_barrier")
stamp(9)
rstamp(35)

BF = 16
TL = [128, 144, 160, 176]
AF = 192
NSLOT = 6; PDC = E('PDC', 5)
def dmaH(c, part=None):
    L = [[f"s_add_u32 m0, s78, {8192*(c % NSLOT)}", f"s_mov_b32 s76, {c << 17}", "buffer_load_dwordx4 v2, s[48:51], s76 offen sc1 lds"],
         ["buffer_load_dwordx4 v3, s[48:51], s76 offen offset:1024 sc1 lds"]]
    for p in ((0, 1) if part is None else (part,)):
        for x in L[p]: A(x)
for c in range(PDC): dmaH(c)
for t in range(4):
    A(f"ds_read_b128 a[{224+4*t}:{227+4*t}], v5 offset:{1024*t}")
def afrag_addr(ks, ft):
    return ("v6", 4096*ks + 1024*ft) if ks < 14 else ("v7", 4096*(ks-14) + 1024*ft)
def ldA(ks, ft):
    b, o = afrag_addr(ks, ft)
    r = AF + 16*(ks & 1) + 4*ft
    A(f"ds_read_b128 v[{r}:{r+3}], {b} offset:{o}")
def M(ks, t):
    b = BF + 4*ks
    r = AF + 16*(ks & 1) + 4*t
    cc = "0" if ks == 0 else f"v[{TL[t]}:{TL[t]+15}]"
    A(f"v_mfma_f32_32x32x16_bf16 v[{TL[t]}:{TL[t]+15}], v[{r}:{r+3}], v[{b}:{b+3}], {cc}")
def rdB(c, ksl):
    so = 32*(c % NSLOT)
    b = BF + 4*(2*c + ksl)
    A(f"ds_read2st64_b32 v[{b}:{b+1}], v4 offset0:{so+16*ksl} offset1:{so+16*ksl+2}")
    A(f"ds_read2st64_b32 v[{b+2}:{b+3}], v4 offset0:{so+16*ksl+4} offset1:{so+16*ksl+6}")
if SENT:
    A(f"""s_lshl_b32 s66, s38, 2
    s_add_u32 s66, s66, s3
    s_mul_i32 s66, s66, 56
    s_lshl_b32 s67, s39, 2
    s_add_u32 s66, s66, s67
    s_lshl_b32 s66, s66, 11
    v_lshl_add_u32 v240, v1, 4, s66
    v_add_u32 v241, 4096, v240
    v_mov_b32 v236, -1
    v_mov_b32 v237, -1
    v_mov_b32 v238, -1
    v_mov_b32 v239, -1""")
INLOOP = E("INLOOP", 0)
ST0 = 232
def stats(ks):
    b = BF + 4*ks
    for r in range(4):
        if ks == 0 and r < 2:
            A(f"v_dot2_f32_bf16 v{ST0+(r&1)}, v{b+r}, s73, 0")
            A(f"v_dot2_f32_bf16 v{ST0+2+(r&1)}, v{b+r}, v{b+r}, 0")
        else:
            A(f"v_dot2_f32_bf16 v{ST0+(r&1)}, v{b+r}, s73, v{ST0+(r&1)}")
            A(f"v_dot2_f32_bf16 v{ST0+2+(r&1)}, v{b+r}, v{b+r}, v{ST0+2+(r&1)}")
npf = 0
def prefill():
    global npf
    if SENT and npf < 8:
        A(f"global_store_dwordx4 v{240 + (npf >> 2)}, v[236:239], s[60:61] offset:{1024*(npf & 3)} sc1")
        npf += 1
for t in range(4): ldA(0, t)
for c in range(15):
    if c < 14:
        A(f"s_waitcnt vmcnt({2*(min(c+PDC-1, 13) - c) + npf}) lgkmcnt(0)")
    else:
        A("s_waitcnt lgkmcnt(0)")
    if c == 0:
        A("s_barrier")
        stamp(20)
        rdB(0, 0); rdB(0, 1); dmaH(PDC)
        continue
    k0, k1, k2 = 2*c-2, 2*c-1, 2*c
    M(k0, 0); ldA(k1, 0); ldA(k1, 1)
    M(k0, 1); ldA(k1, 2); ldA(k1, 3)
    if c < 14: A("s_barrier")
    if c in (4, 8, 12): stamp(20 + c//4)
    M(k0, 2)
    if c < 14: rdB(c, 0)
    M(k0, 3)
    if c < 14: rdB(c, 1)
    A(f"s_waitcnt lgkmcnt({4 if c < 14 else 0})")
    M(k1, 0)
    if c < 14: ldA(k2, 0); ldA(k2, 1)
    M(k1, 1)
    if c < 14: ldA(k2, 2); ldA(k2, 3)
    M(k1, 2)
    if c + PDC <= 13: dmaH(c + PDC, 0)
    else:
        prefill(); prefill()
    M(k1, 3)
    if c + PDC <= 13: dmaH(c + PDC, 1)
    else:
        prefill(); prefill()
    if INLOOP:
        stats(k0); stats(k1)
stamp(10)
if not INLOOP:
    for ks in range(28): stats(ks)
if SENT:
    assert npf == 8, npf
    A("s_waitcnt vmcnt(0)\ns_barrier")
    lw = A.label("s3w0")
    wave0_only(lw)
    A(f"s_add_u32 s66, s38, {CL_S3}")
    emit_signal("s66")
    A(f"{lw}:")
A(f"""s_nop 1
v_add_f32 v232, v232, v233
v_add_f32 v234, v234, v235
v_mov_b32 v233, v232
v_mov_b32 v235, v234
v_lshlrev_b32 v9, 4, v1
s_nop 0
v_permlane32_swap_b32 v232, v233
v_permlane32_swap_b32 v234, v235
s_mov_b32 s66, 0x3b124925
s_nop 0
v_add_f32 v232, v232, v233
v_add_f32 v234, v234, v235
v_mul_f32 v232, s66, v232
v_mul_f32 v234, s66, v234
v_fma_f32 v234, -v232, v232, v234
v_add_f32 v234, 0x3727c5ac, v234
v_rsq_f32 v235, v234
v_sqrt_f32 v230, v234
s_mov_b32 s66, 0xc0135761
s_mov_b32 s67, 0xbdd2d3e8
v_mul_f32 v229, s66, v235
v_mul_f32 v228, v235, v235
v_mul_f32 v228, v228, v235
v_mul_f32 v228, s67, v228
v_cvt_pk_bf16_f32 v233, v232, v232
v_and_b32 v231, s72, v233
v_sub_f32 v231, v232, v231
v_cvt_pk_bf16_f32 v236, v230, v230
v_and_b32 v237, s72, v236
v_sub_f32 v237, v230, v237
v_and_b32 v225, s72, v236
v_cvt_pk_bf16_f32 v231, v231, v231
v_and_b32 v231, 0xffff, v231
v_or_b32 v225, v225, v231
v_cvt_pk_bf16_f32 v226, v237, 0
v_mov_b32 v224, v233
v_mov_b32 v227, 0
v_cmp_gt_u32 vcc, 32, v1
s_lshl_b32 s66, s38, 2
s_add_u32 s66, s66, s3
v_cndmask_b32 v224, 0, v224, vcc
v_cndmask_b32 v225, 0, v225, vcc
v_cndmask_b32 v226, 0, v226, vcc
s_mul_i32 s66, s66, 56
s_lshl_b32 s67, s39, 2""")
for t in range(4):
    A(f"v_mfma_f32_32x32x16_bf16 v[{TL[t]}:{TL[t]+15}], a[{224+4*t}:{227+4*t}], v[224:227], v[{TL[t]}:{TL[t]+15}]")
A(f"""s_add_u32 s66, s66, s67
s_lshl_b32 s66, s66, 11
v_lshl_add_u32 v8, v1, 4, s66
v_add_u32 v11, 4096, v8""")
GT = 236
def gelu_pk(tile, grp):
    L = []
    w = [TL[tile] + 8*grp + 2*e for e in range(4)]
    t = [GT + 2*e for e in range(4)]
    P = lambda r: f"v[{r}:{r+1}]"
    L += [f"v_pk_mul_f32 {P(t[e])}, {P(w[e])}, {P(w[e])}" for e in range(4)]
    L += [f"v_pk_fma_f32 {P(t[e])}, {P(t[e])}, v[228:229], v[228:229] op_sel:[0,0,1] op_sel_hi:[1,0,1]" for e in range(4)]
    L += [f"v_pk_mul_f32 {P(t[e])}, {P(t[e])}, {P(w[e])}" for e in range(4)]
    L += [f"v_exp_f32 v{t[e]+k}, v{t[e]+k}" for e in range(4) for k in range(2)]
    L += [f"v_pk_fma_f32 {P(t[e])}, {P(t[e])}, v[230:231], v[230:231] op_sel_hi:[1,0,0]" for e in range(4)]
    L += [f"v_rcp_f32 v{t[e]+k}, v{t[e]+k}" for e in range(4) for k in range(2)]
    L += [f"v_pk_mul_f32 {P(w[e])}, {P(w[e])}, {P(t[e])}" for e in range(4)]
    return L
def cvts(tile):
    o = AF + 8*(tile & 1)
    return [f"v_cvt_pk_bf16_f32 v{o+k}, v{TL[tile]+2*k}, v{TL[tile]+2*k+1}" for k in range(8)]
def h_store(tile):
    o = AF + 8*(tile & 1)
    base, off = ("v8", 2048*tile) if tile < 2 else ("v11", 2048*(tile-2))
    return [f"global_store_dwordx4 {base}, v[{o}:{o+3}], s[60:61] offset:{off} sc1", f"global_store_dwordx4 {base}, v[{o+4}:{o+7}], s[60:61] offset:{off+1024} sc1"]
def w2f_loadB(kk):
    return [l.replace("v211", "v9") for l in w2f_load(1, kk)]
stamp(11)
A("s_nop 7")
for t in range(4):
    if SENT and t == 2:
        A(f"s_add_u32 s66, s80, {CL_S3}\ns_lshl_b32 s66, s66, 7\nv_mov_b32 v248, s66\nglobal_load_dword v249, v248, s[34:35] sc1")
    for grp in range(2):
        for x in gelu_pk(t, grp): A(x)
    for x in cvts(t) + h_store(t): A(x)
stamp(12)
ACC3 = 32; RING = 96; NS = 16
def p3_haddr():
    A(f"""s_lshl_b32 s66, s40, 1
    s_mul_i32 s66, s66, {112*1024}
    s_mul_i32 s67, s3, {28*1024}
    s_add_u32 s81, s66, s67
    s_lshr_b32 s67, s3, 1
    s_mul_i32 s67, s67, {112*1024}
    v_lshlrev_b32 v4, 4, v1
    v_add_u32 v2, s67, v4
    s_sub_u32 s67, {112*1024}, s67
    v_add_u32 v3, s67, v4""")
    srd(44, 60, S*F*2)
def p3_resid():
    A(f"""s_lshr_b32 s66, s3, 1
    s_and_b32 s67, s3, 1
    s_lshl_b32 s68, s40, 1
    s_add_u32 s68, s68, s66
    s_lshl_b32 s68, s68, 7
    s_lshl_b32 s69, s41, 1
    s_add_u32 s69, s69, s67
    s_lshl_b32 s76, s69, 17
    s_add_u32 s68, s68, s76
    v_lshrrev_b32 v12, 5, v1
    v_lshlrev_b32 v13, 14, v12
    v_and_b32 v14, 31, v1
    v_lshl_add_u32 v13, v14, 2, v13
    v_add_u32 v13, s68, v13""")
    for j in range(4):
        A(f"buffer_load_dword v{16+2*j}, v13, s[48:51], 0 offen sc1")
        A(f"v_add_u32 v14, 8192, v13")
        A(f"buffer_load_dword v{17+2*j}, v14, s[48:51], 0 offen sc1")
        if j < 3: A("v_add_u32 v13, 32768, v13")
    A(f"""s_lshl_b32 s69, s69, 6
    v_lshl_add_u32 v12, v12, 3, s69""")
    for j in range(4):
        A(f"global_load_dwordx2 v[{24+2*j}:{25+2*j}], v12, s[28:29] offset:{16*j}")
def p3_addrs():
    for sl in (1, 2, 3):
        A(f"""s_xor_b32 s66, s3, {sl}
        s_lshl_b32 s67, s66, 2
        s_add_u32 s67, s67, s3
        s_lshl_b32 s67, s67, 12
        v_add_u32 v{224+sl}, s67, v4
        s_lshl_b32 s67, s3, 2
        s_add_u32 s67, s67, s66
        s_lshl_b32 s67, s67, 12
        v_add_u32 v{228+sl}, s67, v4""")
    A(f"""s_lshr_b32 s66, s3, 1
    s_and_b32 s67, s3, 1
    s_lshl_b32 s68, s40, 1
    s_add_u32 s68, s68, s66
    s_lshl_b32 s68, s68, 5
    v_and_b32 v6, 31, v1
    v_add_u32 v6, s68, v6
    v_mul_u32_u24 v6, 896, v6
    s_lshl_b32 s69, s41, 1
    s_add_u32 s69, s69, s67
    s_lshl_b32 s69, s69, 6
    v_lshrrev_b32 v7, 5, v1
    v_lshl_add_u32 v6, v7, 4, v6
    v_add_u32 v6, s69, v6""")
def ldH(kk):
    slot = kk % NS
    if kk % 4 == 0:
        A(f"s_add_u32 s82, s81, {4096*(kk>>2)}")
    for tj in range(2):
        r = RING + 8*slot + 4*tj
        if E("NOLD3", 0): continue
        A(f"buffer_load_dwordx4 v[{r}:{r+3}], v{2+tj}, s[44:47], s82 offen offset:{1024*(kk&3)} sc1")
slow = []
if not SENT:
    A("s_waitcnt vmcnt(0)\ns_barrier")
    lw = A.label("s3w0")
    wave0_only(lw)
    A(f"s_add_u32 s66, s38, {CL_S3}")
    emit_signal("s66")
    A(f"{lw}:")
    p3_resid()
    stamp(13); rstamp(36)
    p3_haddr(); p3_addrs()
    lw = A.label("s3p")
    wave0_only(lw)
    A(f"s_add_u32 s66, s80, {CL_S3}\ns_lshl_b32 s66, s66, 7\nv_mov_b32 v10, s66")
    emit_poll("v10", "14")
    A(f"{lw}:\ns_barrier")
    stamp(14); rstamp(37)
    for kk in range(PD3): ldH(kk)
else:
    p3_haddr()
    lok = A.label("pfok")
    A(f"s_waitcnt vmcnt(4)\nv_cmp_ne_u32 vcc, 14, v249\ns_cbranch_vccz {lok}")
    emit_poll("v248", "14")
    A(f"{lok}:")
    stamp(13); rstamp(36)
    regs = [RING + 8*(kk % NS) + 4*tj for kk in range(PD3) for tj in range(2)]
    def chk0():
        A(f"v_max_u32 v10, v{regs[0]}, v{regs[1]}")
        for i in range(2, len(regs), 2):
            A(f"v_max3_u32 v10, v10, v{regs[i]}, v{regs[i+1]}")
        A("v_cmp_eq_u32 vcc, -1, v10")
    if E("RESFIRST", 1):
        p3_resid(); p3_addrs()
        for kk in range(PD3): ldH(kk)
    else:
        for kk in range(PD3): ldH(kk)
        p3_addrs(); p3_resid()
    stamp(14); rstamp(37)
    lp0 = A.label("h0"); ld0 = A.label("h0d")
    A(f"s_waitcnt vmcnt({0 if E('RESFIRST', 1) else 12})")
    chk0()
    A(f"s_cbranch_vccz {ld0}\ns_mov_b32 s68, {SPIN}\n{lp0}:")
    for kk in range(PD3): ldH(kk)
    A("s_waitcnt vmcnt(0)")
    chk0()
    A(f"""s_cbranch_vccz {ld0}
    s_sub_u32 s68, s68, 1
    s_cmp_lg_u32 s68, 0
    s_cbranch_scc1 {lp0}
    {ld0}:""")
    stamp(18)
for kk in range(28):
    A(f"s_waitcnt vmcnt({2*(min(kk+PD3-1, 27) - kk)})")
    slot = kk % NS
    if SENT and kk >= PD3:
        r0 = RING + 8*slot
        A(f"""v_max_u32 v10, v{r0}, v{r0+4}
        v_cmp_eq_u32 vcc, -1, v10
        s_cbranch_vccnz L_SLOW_{kk}
        L_BACK_{kk}:""")
        slow.append(kk)
    ms = []
    for tj in range(2):
        for dd in range(2):
            T_ = ACC3 + 16*(2*tj + dd)
            a = 4*(dd*28 + kk)
            r = RING + 8*slot + 4*tj
            c = "0" if kk == 0 else f"v[{T_}:{T_+15}]"
            ms.append(f"v_mfma_f32_32x32x16_bf16 v[{T_}:{T_+15}], a[{a}:{a+3}], v[{r}:{r+3}], {c}")
    A(ms[0]); A(ms[1])
    if kk + PD3 < 28: ldH(kk + PD3)
    A(ms[2]); A(ms[3])
    if SENT and kk == 2: A("s_waitcnt vmcnt(6)")
    if 2 <= kk < 10:
        p = kk - 2; j = p >> 1; c_ = p & 1; k = 4*j + 2*c_
        A(f"""v_lshlrev_b32 v{232+k}, 16, v{16+2*j+c_}
        v_and_b32 v{233+k}, s72, v{16+2*j+c_}
        v_lshlrev_b32 v8, 16, v{24+2*j+c_}
        v_and_b32 v9, s72, v{24+2*j+c_}
        v_add_f32 v{232+k}, v{232+k}, v8
        v_add_f32 v{233+k}, v{233+k}, v9""")
stamp(15)
A("s_nop 10")
for sl in (1, 2, 3):
    for q in range(4):
        r = ACC3 + 16*sl + 4*q
        A(f"ds_write_b128 v{224+sl}, v[{r}:{r+3}] offset:{1024*q}")
for k in range(0, 16, 2): A(f"v_pk_add_f32 {P2(ACC3+k)}, {P2(ACC3+k)}, {P2(232+k)}")
A("s_waitcnt lgkmcnt(0)\ns_barrier")
RB = 96
for sl in (1, 2, 3):
    for q in range(4):
        r = RB + 16*(sl-1) + 4*q
        A(f"ds_read_b128 v[{r}:{r+3}], v{228+sl} offset:{1024*q}")
for sl in (1, 2, 3):
    A(f"s_waitcnt lgkmcnt({4*(3-sl)})")
    for k in range(0, 16, 2): A(f"v_pk_add_f32 {P2(ACC3+k)}, {P2(ACC3+k)}, {P2(RB+16*(sl-1)+k)}")
for k in range(8): A(f"v_cvt_pk_bf16_f32 v{192+k}, v{ACC3+2*k}, v{ACC3+2*k+1}")
A("""s_nop 1
v_permlane32_swap_b32 v192, v194
v_permlane32_swap_b32 v193, v195
v_permlane32_swap_b32 v196, v198
v_permlane32_swap_b32 v197, v199
s_nop 1
""")
OF = "sc1" if E("OUTSC1", 0) else ("nt" if E("OUTNT", 0) else "")
A(f"""global_store_dwordx4 v6, v[192:195], s[30:31] {OF}
global_store_dwordx4 v6, v[196:199], s[30:31] offset:32 {OF}""")
stamp(16)
rstamp(38)
A("s_branch L_END")
for kk in slow:
    r0 = RING + 8*(kk % NS)
    A(f"""L_SLOW_{kk}:
    s_mov_b32 s68, {SPIN}
    s_add_u32 s83, s81, {4096*(kk>>2)}
    L_SLOWL_{kk}:
    buffer_load_dwordx4 v[{r0}:{r0+3}], v2, s[44:47], s83 offen offset:{1024*(kk&3)} sc1
    buffer_load_dwordx4 v[{r0+4}:{r0+7}], v3, s[44:47], s83 offen offset:{1024*(kk&3)} sc1
    s_waitcnt vmcnt(0)
    v_max_u32 v10, v{r0}, v{r0+4}
    v_cmp_eq_u32 vcc, -1, v10
    s_cbranch_vccz L_BACK_{kk}
    s_sub_u32 s68, s68, 1
    s_cmp_lg_u32 s68, 0
    s_cbranch_scc1 L_SLOWL_{kk}
    s_branch L_BACK_{kk}""")

A(f"""L_OTHER:
s_cmp_ge_u32 s2, {NWG}
s_cbranch_scc1 L_END
v_and_b32 v1, 63, v0
v_lshrrev_b32 v2, 6, v0
s_nop 0
v_readfirstlane_b32 s3, v2
s_waitcnt lgkmcnt(0)
s_cmp_lg_u32 s2, {NMAIN}
s_cbranch_scc1 L_PREF
v_mov_b32 v4, 0
v_mov_b32 v5, 0
v_mov_b32 v6, 0
v_mov_b32 v7, 0
v_lshlrev_b32 v2, 4, v0
global_store_dwordx4 v2, v[4:7], s[34:35] sc1
v_add_u32 v3, 4096, v2
global_store_dwordx4 v3, v[4:7], s[34:35] sc1
s_waitcnt vmcnt(0)
s_barrier
s_cmp_lg_u32 s3, 0
s_cbranch_scc1 L_END
v_mov_b32 v2, 0
v_mov_b32 v3, 1
s_mov_b64 exec, 1
global_store_dword v2, v3, s[32:33] sc1""")
A(f"""s_branch L_END
L_PREF:""")
A(f"""v_min_u32 v2, 8, v1
v_lshlrev_b32 v2, 21, v2
v_add_u32 v2, {0x100000}, v2
global_load_dword v8, v2, s[34:35]
v_mov_b32 v3, 0
global_load_dword v9, v3, s[30:31]
global_load_dword v10, v3, s[22:23]
global_load_dword v11, v3, s[26:27]
global_load_dword v12, v3, s[16:17]
global_load_dword v13, v3, s[24:25]
global_load_dword v14, v3, s[28:29]
global_load_dword v15, v3, s[18:19]
global_load_dword v16, v3, s[34:35]""")
if E("HW1", 0):
    A(f"""s_sub_u32 s66, s2, {NMAIN+1}
    s_mul_i32 s66, s66, {52*1024}
    s_lshl_b32 s67, s3, 10
    s_add_u32 s66, s66, s67
    v_lshl_add_u32 v2, v1, 4, s66""")
    srd(44, 22, D*F*2)
    A("s_mov_b32 s69, 0")
    for j in range(13):
        A(f"buffer_load_dwordx4 v[{20+4*j}:{23+4*j}], v2, s[44:47], s69 offen\ns_add_u32 s69, s69, 4096")
A("s_waitcnt vmcnt(0)")
A("""L_END:
s_endpgm
L_CODE_END:""")

errs = check_hazards(A.lines)
for e in errs: print("HAZARD:", e, file=sys.stderr)
hdr = open(f"cdna_kernels/{NAME}.s.ref").read().split(".amdgcn_target")[0]
hdr = "\n".join(l for l in hdr.splitlines() if not l.startswith("; @launch"))
DOC = """; Single persistent launch: 224 main workgroups (one per CU) + 1 counter-init workgroup + 8 TLB-touch workgroups.
; H is handed off per 16-byte granule against an all-ones fill written earlier in the same launch."""
out = [hdr.rstrip(), f"; @launch grid=({NWG},1,1) block=(256,1,1) lds={LDS_BYTES}", DOC,
 '.amdgcn_target "amdgcn-amd-amdhsa--gfx950"', ".text", f".globl {KN}", ".p2align 8", f".type {KN},@function", f"{KN}:",
 A.text(), '.section .rodata,"a"', ".p2align 6", f".amdhsa_kernel {KN}",
 "  .amdhsa_next_free_vgpr 512", "  .amdhsa_next_free_sgpr 100", "  .amdhsa_accum_offset 256", "  .amdhsa_group_segment_fixed_size 0",
 "  .amdhsa_kernarg_size 112", "  .amdhsa_user_sgpr_count 2", "  .amdhsa_user_sgpr_kernarg_segment_ptr 1", "  .amdhsa_system_sgpr_workgroup_id_x 1",
 "  .amdhsa_float_denorm_mode_32 3", ".end_amdhsa_kernel", ""]
dst = os.environ.get("OUT", f"cdna_kernels/{NAME}.s")
open(dst, "w").write("\n".join(out))
print("wrote", dst, "instructions:", sum(1 for l in A.lines if not l.endswith(':')), "hazards:", len(errs))
```
